```python
import torch

def _softmax(x, axis=-1):
    return torch.softmax(x, dim=axis)

def _gelu(x):
    return torch.nn.functional.gelu(x, approximate='tanh')

def _silu(x):
    return torch.nn.functional.silu(x)

def _sigmoid(x):
    return torch.sigmoid(x)

def _layernorm(x, axis=-1, eps=1e-05):
    m = x.mean(dim=axis, keepdim=True)
    v = x.var(dim=axis, keepdim=True, unbiased=False)
    return (x - m) / torch.sqrt(v + eps)

def _scatter_add(tgt, idx, src, axis=0):
    return tgt.clone().index_add_(axis, idx, src)

def _segment_sum(src, seg, n):
    out = torch.zeros((n,) + src.shape[1:], dtype=src.dtype)
    return out.index_add_(0, seg, src)

def _pad(x, pw):
    flat = tuple((v for pair in reversed(pw) for v in pair))
    return torch.nn.functional.pad(x, flat)
kernel_name = 'gated_mix__memory_aug_recurrent_mem_tr__moe_arch_mod__prompt'

def setup_inputs():

    _w = lambda a: (lambda t: t.to(torch.bfloat16) if t.is_floating_point() else t)(torch.as_tensor(a))

    def _A_setup():
        B, S, Dm = (1, 2048, 448)
        H, Dh = (16, 256)
        M, seg = (8, 32)
        seg = min(seg, S)
        S = S // seg * seg
        return {'x': _w((lambda *s: torch.randn(*s, dtype=torch.bfloat16) * 0.05)(B, S, Dm)), 'mem0': _w((lambda *s: torch.randn(*s, dtype=torch.bfloat16) * 0.8)(B, M, Dm)), 'Wq': _w((lambda *s: torch.randn(*s, dtype=torch.bfloat16) * 1.6)(Dm, H, Dh) * Dm ** (-0.5)), 'Wk': _w((lambda *s: torch.randn(*s, dtype=torch.bfloat16) * 1.6)(Dm, H, Dh) * Dm ** (-0.5)), 'Wv': _w((lambda *s: torch.randn(*s, dtype=torch.bfloat16) * 0.8)(Dm, H, Dh) * Dm ** (-0.5)), 'Wo': _w((lambda *s: torch.randn(*s, dtype=torch.bfloat16) * 0.8)(H, Dh, Dm) * (H * Dh) ** (-0.5)), 'seg_len': seg}
    _A_in = _A_setup()

    def _B_setup():
        B, S, D, F, C = (1, 2048, 448, 1792, 1)
        return {'x': _w((lambda *s: torch.randn(*s, dtype=torch.bfloat16) * 0.05)(B, S, D)), 'w_r': _w((lambda *s: torch.randn(*s, dtype=torch.bfloat16) * 1.6)(D)), 'w_gate': _w((lambda *s: torch.randn(*s, dtype=torch.bfloat16) * 0.2)(D, F)), 'w_up': _w((lambda *s: torch.randn(*s, dtype=torch.bfloat16) * 0.2)(D, F)), 'w_down': _w((lambda *s: torch.randn(*s, dtype=torch.bfloat16) * 0.2)(F, D))}
    _B_in = _B_setup()
    return {'A_x': _A_in['x'], 'A_mem0': _A_in['mem0'], 'A_Wq': _A_in['Wq'], 'A_Wk': _A_in['Wk'], 'A_Wv': _A_in['Wv'], 'A_Wo': _A_in['Wo'], 'A_seg_len': _A_in['seg_len'], 'B_x': _B_in['x'], 'B_w_r': _B_in['w_r'], 'B_w_gate': _B_in['w_gate'], 'B_w_up': _B_in['w_up'], 'B_w_down': _B_in['w_down'], 'gate_w': _w((lambda *s: torch.randn(*s, dtype=torch.bfloat16) * 0.05)(448) * 16.0)}

def reference(A_x, A_mem0, A_Wq, A_Wk, A_Wv, A_Wo, A_seg_len, B_x, B_w_r, B_w_gate, B_w_up, B_w_down, gate_w):

    def _A_ref(x, mem0, Wq, Wk, Wv, Wo, seg_len):
        B, S, Dm = x.shape
        H, Dh = (Wq.shape[1], Wq.shape[2])
        M = mem0.shape[1]
        scale = Dh ** (-0.5)
        n_seg = S // seg_len
        L = M + seg_len
        idx = torch.arange(L)
        mask = (idx[:, None] < M) | (idx[:, None] >= idx[None, :])
        mem = mem0
        outs = []
        for s in range(n_seg):
            xs = x[:, s * seg_len:(s + 1) * seg_len, :].clone()
            h = torch.concatenate([mem, xs], axis=1)
            q = torch.einsum('btd,dhe->bhte', h, Wq)
            k = torch.einsum('btd,dhe->bhte', h, Wk)
            v = torch.einsum('btd,dhe->bhte', h, Wv)
            scores = torch.einsum('bhqe,bhke->bhqk', q, k) * scale
            scores = torch.where(mask[None, None], scores, -1000000000.0)
            p = _softmax(scores, axis=-1)
            o = torch.einsum('bhqk,bhke->bhqe', p, v)
            o = torch.einsum('bhte,hed->btd', o, Wo)
            mem = o[:, :M, :].clone()
            outs.append(o[:, M:, :])
        return torch.concatenate(outs, axis=1)

    def _B_ref(x, w_r, w_gate, w_up, w_down):
        B, S, D = x.shape
        C = 1
        r = x @ w_r
        idx = torch.argsort(-r, axis=-1)[:, :C]
        idx_e = (lambda x, n, axis: torch.repeat_interleave(x, n, dim=axis))(idx.reshape(B, C, 1), D, axis=2)
        x_sel = (lambda x, i, axis: torch.take_along_dim(x, i, dim=axis))(x, idx_e, axis=1)
        g = _silu(x_sel @ w_gate)
        u = x_sel @ w_up
        y = g * u @ w_down
        r_sel = _sigmoid((lambda x, i, axis: torch.take_along_dim(x, i, dim=axis))(r, idx, axis=1))
        y = y * r_sel.reshape(B, C, 1)
        b_off = (torch.arange(B) * S).reshape(B, 1)
        flat_idx = (idx + b_off).reshape(B * C)
        zero = (x * 0.0).reshape(B * S, D)
        upd = _scatter_add(zero, flat_idx, y.reshape(B * C, D), axis=0)
        return x + upd.reshape(B, S, D)
    x = A_x
    g = _sigmoid((x * gate_w).sum(-1, keepdims=True))
    a = _A_ref(x, A_mem0, A_Wq, A_Wk, A_Wv, A_Wo, A_seg_len)
    b = _B_ref(x, B_w_r, B_w_gate, B_w_up, B_w_down)
    return g * a + (1 - g) * b
```

```python
import re

def _regs(tok):
    tok = tok.strip()
    neg = tok.startswith('-')
    if neg: tok = tok[1:]
    m = re.fullmatch(r'abs\((.*)\)', tok)
    if m: tok = m.group(1)
    m = re.fullmatch(r'\|(.*)\|', tok)
    if m: tok = m.group(1)
    m = re.fullmatch(r'([vas])(\d+)', tok)
    if m: return [(m.group(1), int(m.group(2)))]
    m = re.fullmatch(r'([vas])\[(\d+):(\d+)\]', tok)
    if m: return [(m.group(1), i) for i in range(int(m.group(2)), int(m.group(3)) + 1)]
    if tok == 'vcc': return [('vcc', 0)]
    if tok in ('vcc_lo', 'vcc_hi'): return [('vcc', 0)]
    if tok == 'exec': return [('exec', 0)]
    if tok in ('exec_lo', 'exec_hi'): return [('exec', 0)]
    if tok == 'm0': return [('m0', 0)]
    return []

TRANS = ('v_exp_f32', 'v_log_f32', 'v_rcp_f32', 'v_rsq_f32', 'v_sqrt_f32', 'v_sin_f32', 'v_cos_f32', 'v_rcp_iflag_f32')

class Ins:
    __slots__ = ('text', 'mn', 'kind', 'wr', 'rd', 'passes', 'srcc', 'ab', 'states', 'dpp', 'wide_store', 'store_data', 'lds_dma', 'is_label', 'is_branch', 'target', 'sgpr_rd_vmem')
    def __init__(self, text):
        self.text = text
        t = text.split(';')[0].strip()
        self.is_label = t.endswith(':')
        self.is_branch = False
        self.target = None
        self.kind = 'other'; self.wr = set(); self.rd = set(); self.passes = 0; self.srcc = set(); self.ab = set()
        self.states = 1; self.dpp = False; self.wide_store = False; self.store_data = set(); self.lds_dma = False
        self.sgpr_rd_vmem = set()
        if self.is_label or not t or t.startswith('.'):
            self.mn = ''; self.states = 0; self.kind = 'meta'; return
        parts = t.split(None, 1)
        mn = parts[0]; self.mn = mn
        rest = parts[1] if len(parts) > 1 else ''
        ops = []; cur = ''; depth = 0
        for ch in rest:
            if ch in '[(': depth += 1
            if ch in '])': depth -= 1
            if ch == ',' and depth == 0: ops.append(cur.strip()); cur = ''
            else: cur += ch
        if cur.strip(): ops.append(cur.strip())
        mods = ''
        if ops:
            sp = ops[-1].split(None, 1)
            ops[-1] = sp[0]
            if len(sp) > 1: mods = sp[1]
        R = lambda i: set(_regs(ops[i])) if i < len(ops) else set()
        base = re.sub(r'_(e32|e64|dpp|sdwa)$', '', mn)
        if mn == 's_nop':
            self.kind = 'nop'; self.states = int(ops[0], 0) + 1; return
        if mn.startswith('s_cbranch') or mn == 's_branch':
            self.is_branch = True; self.target = ops[0]; self.kind = 'salu'; return
        if mn.startswith('v_mfma') or mn.startswith('v_smfmac'):
            self.kind = 'mfma'
            self.wr = R(0)
            self.ab = R(1) | R(2)
            if mn.startswith('v_smfmac'):
                self.srcc = R(0); self.ab |= R(3)
            else:
                self.srcc = R(3)
            self.rd = self.ab | self.srcc
            self.passes = 8 if '32x32' in mn else 4
            return
        if mn.startswith('v_'):
            self.kind = 'valu'
            self.dpp = mn.endswith('_dpp') or 'quad_perm' in mods or 'row_' in mods
            if base.startswith('v_cmp'):
                self.wr = R(0); self.rd = R(1) | R(2)
                if base.startswith('v_cmpx'): self.wr |= {('exec', 0)}
            elif base in ('v_swap_b32', 'v_permlane32_swap_b32', 'v_permlane16_swap_b32'):
                self.wr = R(0) | R(1); self.rd = R(0) | R(1)
                if 'permlane' in base: self.kind = 'permlane'
            elif base in ('v_add_co_u32', 'v_sub_co_u32', 'v_subrev_co_u32'):
                self.wr = R(0) | R(1); self.rd = R(2) | R(3)
            elif base in ('v_addc_co_u32', 'v_subb_co_u32'):
                self.wr = R(0) | R(1); self.rd = R(2) | R(3) | R(4)
            elif base in ('v_readfirstlane_b32', 'v_readlane_b32'):
                self.kind = 'readlane'; self.wr = R(0); self.rd = R(1) | R(2)
            else:
                self.wr = R(0)
                self.rd = set()
                for i in range(1, len(ops)): self.rd |= R(i)
                if base in ('v_fmac_f32', 'v_dot2c_f32_bf16', 'v_pk_fmac_f16', 'v_writelane_b32') or self.dpp:
                    self.rd |= R(0)
                if base == 'v_cndmask_b32' and len(ops) == 3: self.rd |= {('vcc', 0)}
                if base in TRANS: self.kind = 'trans'
            return
        if mn.startswith('ds_'):
            self.kind = 'ds'
            if mn.startswith('ds_read') or mn.startswith('ds_bpermute') or mn.startswith('ds_permute') or mn.startswith('ds_swizzle'):
                self.wr = R(0)
                for i in range(1, len(ops)): self.rd |= R(i)
            else:
                for i in range(len(ops)): self.rd |= R(i)
            return
        if mn.startswith('global_') or mn.startswith('buffer_'):
            self.kind = 'vmem'
            allmods = ' ' + mods + ' '
            if mn in ('buffer_wbl2', 'buffer_inv'): return
            if 'load' in mn:
                if ' lds ' in allmods or '_lds_' in mn:
                    self.lds_dma = True
                    for i in range(len(ops)): self.rd |= R(i)
                    self.rd |= {('m0', 0)}
                else:
                    self.wr = R(0)
                    for i in range(1, len(ops)): self.rd |= R(i)
            elif 'store' in mn:
                for i in range(len(ops)): self.rd |= R(i)
                data = R(1) if mn.startswith('global_') else R(0)
                if 'x4' in mn or 'x3' in mn:
                    self.wide_store = True; self.store_data = data
            elif 'atomic' in mn:
                if ' sc0 ' in allmods:
                    self.wr = R(0)
                    for i in range(1, len(ops)): self.rd |= R(i)
                else:
                    for i in range(len(ops)): self.rd |= R(i)
            self.sgpr_rd_vmem = {r for r in self.rd if r[0] == 's' or r[0] == 'vcc'}
            return
        if mn.startswith('s_'):
            self.kind = 'salu'
            if mn.startswith('s_cmp') or mn in ('s_waitcnt', 's_barrier', 's_endpgm', 's_sleep', 's_setprio'):
                for i in range(len(ops)): self.rd |= R(i)
            else:
                self.wr = R(0)
                for i in range(1, len(ops)): self.rd |= R(i)
                if 'saveexec' in mn: self.wr |= {('exec', 0)}
            return
        raise ValueError("unknown instruction: " + text)

VALU_KINDS = ('valu', 'trans', 'permlane', 'readlane')

def need(p, c):
    n = 0
    vw = {r for r in p.wr if r[0] in 'va'}
    if p.kind in VALU_KINDS:
        if c.kind == 'mfma' and vw & c.rd: n = max(n, 2)
        if c.kind == 'permlane' and vw & c.rd: n = max(n, 2)
        if c.kind in VALU_KINDS and c.dpp and vw & c.rd: n = max(n, 2)
        if c.kind == 'readlane' and vw & c.rd: n = max(n, 1)
        sw = {r for r in p.wr if r[0] in ('s', 'vcc')}
        if sw:
            if c.kind in VALU_KINDS and sw & c.rd: n = max(n, 4 if c.kind == 'readlane' or c.mn.startswith('v_writelane') else 2)
            if c.kind == 'vmem' and sw & c.sgpr_rd_vmem: n = max(n, 5)
            if c.kind == 'salu' and sw & c.rd: n = max(n, 1)
        if ('exec', 0) in p.wr:
            if c.kind == 'mfma': n = max(n, 4)
            if c.kind in ('permlane', 'readlane'): n = max(n, 4)
            if c.kind in VALU_KINDS and c.dpp: n = max(n, 5)
        if p.kind == 'trans' and c.kind in ('valu', 'permlane', 'readlane', 'mfma') and vw & c.rd: n = max(n, 1 if c.kind != 'mfma' else 2)
        if p.kind == 'trans' and c.kind in ('vmem', 'ds') and vw & c.rd: n = max(n, 1)
    if p.kind == 'mfma':
        big = {4: 8, 8: 12}[p.passes]; ov = {4: 6, 8: 10}[p.passes]; war = {4: 3, 8: 7}[p.passes]
        if c.kind == 'mfma':
            if p.wr & c.ab: n = max(n, big)
            if p.wr & c.srcc:
                if not (p.wr == c.srcc and p.mn == c.mn): n = max(n, ov)
            elif p.wr & c.wr: n = max(n, ov)
        elif c.kind in VALU_KINDS or c.kind in ('vmem', 'ds'):
            if p.wr & (c.rd | c.wr): n = max(n, big)
            if c.kind in VALU_KINDS and p.srcc & c.wr: n = max(n, war)
    if p.wide_store:
        if p.store_data & c.wr: n = max(n, 2 if c.kind in VALU_KINDS else 1)
    if p.kind == 'salu' and ('m0', 0) in p.wr and c.lds_dma: n = max(n, 1)
    return n

class Asm:
    def __init__(self):
        self.lines = []
        self.uid = 0
        import os
        self.timing = not int(os.environ.get('CONSERVATIVE', '0'))
    def __call__(self, text):
        for ln in text.split('\n'):
            ln = ln.strip()
            if not ln: continue
            self.lines.append(Ins(ln))
    def label(self, name): self(name + ':')
    def newlabel(self, pfx='L'):
        self.uid += 1
        return f'{pfx}_{self.uid}'
    def finalize(self):
        out = []
        labels = {}
        times = []
        now = 0; mfma_free = 0
        for ins in self.lines:
            if ins.kind != 'meta':
                t_issue = now
                if ins.kind == 'mfma' and self.timing: t_issue = max(t_issue, mfma_free)
                req = 0
                for j in range(len(out) - 1, -1, -1):
                    p = out[j]
                    if p.kind == 'meta':
                        continue
                    dist = t_issue - times[j] - 1
                    if dist >= 13: break
                    nd = need(p, ins)
                    if nd > dist: req = max(req, nd - dist)
                    if p.mn in ('s_branch', 's_endpgm'): break
                if req > 0:
                    n = (t_issue + req) - now
                    while n > 0:
                        k = min(n, 16)
                        out.append(Ins(f's_nop {k-1}')); times.append(now); now += k; n -= k
                    t_issue = now
                out.append(ins); times.append(t_issue)
                now = t_issue + ins.states
                if ins.kind == 'mfma': mfma_free = t_issue + (2 if '16x16x16' in ins.mn else ins.passes)
            else:
                if ins.is_label: mfma_free = 0
                out.append(ins); times.append(now)
        changed = True
        while changed:
            changed = False
            idx = {o.text.split(';')[0].strip()[:-1]: i for i, o in enumerate(out) if o.is_label}
            for bi, b in enumerate(out):
                if not b.is_branch: continue
                if b.target not in idx: raise ValueError('unknown label ' + b.target)
                prods = []; dist = 1
                for j in range(bi - 1, -1, -1):
                    p = out[j]
                    if p.kind == 'meta': continue
                    if dist >= 13: break
                    prods.append((p, dist)); dist += p.states
                    if p.mn in ('s_branch', 's_endpgm'): break
                d2 = 0; req = 0
                for j in range(idx[b.target] + 1, len(out)):
                    c = out[j]
                    if c.kind == 'meta': continue
                    if d2 >= 13: break
                    for p, d1 in prods:
                        nd = need(p, c)
                        if nd > d1 + d2: req = max(req, nd - d1 - d2)
                    d2 += c.states
                    if c.mn in ('s_branch', 's_endpgm') or c.is_branch:
                        for p, d1 in prods:
                            if p.kind == 'mfma':
                                nd = {4: 8, 8: 12}[p.passes]
                                if nd > d1 + d2: req = max(req, nd - d1 - d2)
                        break
                if req > 0:
                    out.insert(bi, Ins(f's_nop {req-1}'))
                    changed = True
                    break
        return '\n'.join(('' if (o.is_label or o.text.startswith('.')) else '  ') + o.text for o in out) + '\n'

def vr(b, n=1): return f'v{b}' if n == 1 else f'v[{b}:{b+n-1}]'
def ar(b, n=1): return f'a{b}' if n == 1 else f'a[{b}:{b+n-1}]'
def sr(b, n=1): return f's{b}' if n == 1 else f's[{b}:{b+n-1}]'
```

```python
from asmlib import *
from layout import *

def wave_sum2(a, r0, r1, t0, t1):
    for ror in (8, 4, 2, 1):
        a(f'v_add_f32_dpp v{r0}, v{r0}, v{r0} row_ror:{ror} row_mask:0xf bank_mask:0xf')
        a(f'v_add_f32_dpp v{r1}, v{r1}, v{r1} row_ror:{ror} row_mask:0xf bank_mask:0xf')
    for sw in ('v_permlane16_swap_b32', 'v_permlane32_swap_b32'):
        a(f'v_mov_b32 v{t0}, v{r0}')
        a(f'v_mov_b32 v{t1}, v{r1}')
        a(f'{sw} v{r0}, v{t0}')
        a(f'{sw} v{r1}, v{t1}')
        a(f'v_add_f32 v{r0}, v{r0}, v{t0}')
        a(f'v_add_f32 v{r1}, v{r1}, v{t1}')

def stamp(a, i, wait=''):
    if not STAMPS: return
    if wait: a(wait)
    a(f's_memrealtime s[{60+2*i}:{61+2*i}]')
    a('s_waitcnt lgkmcnt(0)')

def stamp_end(a, kidx, ws='s[4:5]', wave='s22', n=7):
    if not STAMPS: return
    stamp(a, n, 's_waitcnt vmcnt(0)')
    a('s_mov_b64 exec, 1')
    a('s_lshl_b32 s3, s2, 3')
    a(f's_add_u32 s3, s3, {wave}')
    a('s_lshl_b32 s3, s3, 5')
    a(f's_add_u32 s3, s3, {WS_STAMP + kidx*0x20000}')
    a('v_mov_b32 v0, s3')
    for i in range(8): a(f'v_mov_b32 v{4+i}, s{60+2*i}')
    a(f'global_store_dwordx4 v0, v[4:7], {ws}')
    a(f'global_store_dwordx4 v0, v[8:11], {ws} offset:16')

def stamp_init(a):
    if not STAMPS: return
    for i in range(8): a(f's_mov_b32 s{60+2*i}, 0')
    stamp(a, 0)

def gen_k1(a, name='prep_kernel'):
    a(f'.globl {name}\n.p2align 8\n.type {name},@function\n{name}:')
    a(f's_cmp_ge_u32 s2, 256')
    a(f's_cbranch_scc1 {name}_end')
    a(f's_load_dwordx2 s[4:5], s[0:1], {KA_WS}')
    a(f's_load_dwordx4 s[8:11], s[0:1], {KA_WQ}')
    a(f's_load_dwordx4 s[12:15], s[0:1], {KA_WV}')
    a(f's_load_dwordx2 s[16:17], s[0:1], {KA_X}')
    a(f's_load_dwordx2 s[18:19], s[0:1], {KA_WR}')
    a(f's_load_dwordx2 s[20:21], s[0:1], {KA_GW}')
    stamp_init(a)
    a('s_lshl_b32 s3, s2, 13')
    a('v_lshlrev_b32 v1, 4, v0')
    a('v_add_u32 v1, s3, v1')
    a(f'v_add_u32 v1, {WS_FILL}, v1')
    for r in range(4): a(f'v_mov_b32 v{4+r}, -1')
    a('v_lshrrev_b32 v2, 6, v0')
    a('v_readfirstlane_b32 s22, v2')
    a('v_and_b32 v3, 63, v0')
    a('s_waitcnt lgkmcnt(0)')
    a('global_store_dwordx4 v1, v[4:7], s[4:5]')
    a('s_lshr_b32 s35, s2, 3')
    a('s_and_b32 s27, s2, 7')
    a('s_and_b32 s33, s27, 1')
    a('s_lshr_b32 s26, s35, 3')
    a('s_lshl_b32 s34, s33, 2')
    a('s_add_u32 s26, s26, s34')
    a('s_cmp_ge_u32 s26, 7')
    a(f's_cbranch_scc1 {name}_xprep')
    AOP, ACC, BOP = 16, 144, 208
    a('s_bfe_u32 s23, s27, 0x10001')
    a('s_and_b32 s25, s35, 7')
    a('s_lshr_b32 s33, s27, 2')
    a('s_lshl_b32 s33, s33, 3')
    a('s_add_u32 s25, s25, s33')
    a('s_cmp_eq_u32 s23, 1')
    a('s_cselect_b32 s28, s12, s8')
    a('s_cselect_b32 s29, s13, s9')
    a(f's_cselect_b32 s30, {WS_VIMG}, {WS_AIMG}')
    a('s_cselect_b32 s31, 1.0, 0x3db8aa3b')
    a('v_and_b32 v8, 15, v3')
    a('v_lshrrev_b32 v9, 4, v3')
    a('s_cmp_ge_u32 s22, 7')
    a(f's_cbranch_scc1 {name}_noA')
    a('v_lshrrev_b32 v10, 3, v8')
    a('v_lshlrev_b32 v10, 4, v10')
    a('v_bfe_u32 v11, v8, 2, 1')
    a('v_lshl_add_u32 v10, v11, 2, v10')
    a('v_and_b32 v11, 3, v8')
    a('v_add_u32 v10, v10, v11')
    a('s_lshl_b32 s32, s22, 6')
    a('v_add_u32 v10, s32, v10')
    a('v_lshlrev_b32 v10, 13, v10')
    a('s_lshl_b32 s33, s25, 9')
    a('v_lshl_add_u32 v10, v9, 4, v10')
    a('v_add_u32 v10, s33, v10')
    a('v_add_u32 v11, 0x10000, v10')
    a('v_add_u32 v12, 0x40000, v10')
    a('v_add_u32 v13, 0x50000, v10')
    for k in range(8):
        for q in range(4):
            a(f'global_load_dwordx4 {vr(AOP + 16*k + 4*q, 4)}, v{10+q}, s[28:29] offset:{64*k}')
    a.label(f'{name}_noA')
    stamp(a, 3)
    a('s_cmp_eq_u32 s23, 1')
    a(f's_cbranch_scc1 {name}_stageV')
    a('v_lshrrev_b32 v14, 5, v0')
    a('v_and_b32 v15, 31, v0')
    a('s_lshl_b32 s34, s26, 6')
    a('v_add_u32 v1, s34, v14')
    a('v_lshlrev_b32 v1, 13, v1')
    a('s_lshl_b32 s33, s25, 9')
    a('v_lshl_add_u32 v1, v15, 4, v1')
    a('v_add_u32 v1, s33, v1')
    for i in range(4):
        a(f'global_load_dwordx4 {vr(BOP + 4*i, 4)}, v1, s[10:11]')
        if i < 3: a('v_add_u32 v1, 0x20000, v1')
    a('v_mul_u32_u24 v2, 528, v14')
    a('v_lshl_add_u32 v2, v15, 4, v2')
    for i in range(4):
        a(f's_waitcnt vmcnt({3-i})')
        a(f'ds_write_b128 v2, {vr(BOP + 4*i, 4)} offset:{8448*i}')
    a('s_waitcnt lgkmcnt(0)')
    a('s_barrier')
    stamp(a, 1)
    a('s_cmp_ge_u32 s22, 7')
    a(f's_cbranch_scc1 {name}_end')
    a('v_mul_u32_u24 v2, 528, v8')
    a('v_lshl_add_u32 v2, v9, 4, v2')
    def breadA(k, dst):
        for jn in range(4):
            a(f'ds_read_b128 {vr(dst + 4*jn, 4)}, v2 offset:{8448*jn + 64*k}')
    def mainloop(bread, nrd):
        bread(0, BOP)
        for k in range(8):
            cur = BOP + 16*(k % 2); nxt = BOP + 16*((k+1) % 2)
            if k < 7:
                bread(k+1, nxt)
                a(f's_waitcnt lgkmcnt({nrd})')
            else:
                a('s_waitcnt lgkmcnt(0)')
            for q in range(4):
                for jn in range(4):
                    acc = vr(ACC + 16*q + 4*jn, 4)
                    a(f'v_mfma_f32_16x16x32_bf16 {acc}, {vr(AOP + 16*k + 4*q, 4)}, {vr(cur + 4*jn, 4)}, {acc if k else 0}')
    mainloop(breadA, 4)
    a(f's_branch {name}_epi')
    a.label(f'{name}_stageV')
    a('v_lshrrev_b32 v14, 3, v0')
    a('v_and_b32 v15, 7, v0')
    a('v_mul_u32_u24 v1, 896, v14')
    a('v_lshl_add_u32 v1, v15, 4, v1')
    a('s_mul_i32 s33, s25, 229376')
    a('s_lshl_b32 s34, s26, 7')
    a('s_add_u32 s33, s33, s34')
    a('v_add_u32 v1, s33, v1')
    for i in range(4):
        a(f'global_load_dwordx4 {vr(BOP + 4*i, 4)}, v1, s[14:15]')
        if i < 3: a('v_add_u32 v1, 57344, v1')
    a('v_mul_u32_u24 v2, 144, v14')
    a('v_lshl_add_u32 v2, v15, 4, v2')
    for i in range(4):
        a(f's_waitcnt vmcnt({3-i})')
        a(f'ds_write_b128 v2, {vr(BOP + 4*i, 4)} offset:{9216*i}')
    a('s_waitcnt lgkmcnt(0)')
    a('s_barrier')
    stamp(a, 1)
    a('s_cmp_ge_u32 s22, 7')
    a(f's_cbranch_scc1 {name}_end')
    a('v_lshrrev_b32 v2, 2, v8')
    a('v_lshl_add_u32 v2, v9, 3, v2')
    a('v_mul_u32_u24 v2, 144, v2')
    a('v_and_b32 v14, 3, v8')
    a('v_lshl_add_u32 v2, v14, 3, v2')
    def breadV(k, dst):
        for jn in range(4):
            a(f'ds_read_b64_tr_b16 {vr(dst + 4*jn, 2)}, v2 offset:{4608*k + 32*jn}')
            a(f'ds_read_b64_tr_b16 {vr(dst + 4*jn + 2, 2)}, v2 offset:{4608*k + 576 + 32*jn}')
    mainloop(breadV, 8)
    a.label(f'{name}_epi')
    stamp(a, 2)
    a('s_mul_i32 s33, s25, 28')
    a('s_lshl_b32 s34, s26, 2')
    a('s_add_u32 s33, s33, s34')
    a('s_mul_i32 s33, s33, 14')
    a('s_lshl_b32 s34, s22, 1')
    a('s_add_u32 s33, s33, s34')
    a('s_lshl_b32 s33, s33, 10')
    a('s_add_u32 s33, s33, s30')
    a('v_lshlrev_b32 v1, 4, v3')
    a('v_add_u32 v1, s33, v1')
    for jn in range(4):
        for u in range(2):
            X = ACC + 16*(2*u) + 4*jn; Y = ACC + 16*(2*u+1) + 4*jn
            for r in range(4):
                a(f'v_mul_f32 v{X+r}, s31, v{X+r}')
                a(f'v_mul_f32 v{Y+r}, s31, v{Y+r}')
            o = BOP + 4*((2*jn+u) % 8)
            a(f'v_cvt_pk_bf16_f32 v{o}, v{X}, v{X+1}')
            a(f'v_cvt_pk_bf16_f32 v{o+1}, v{Y}, v{Y+1}')
            a(f'v_cvt_pk_bf16_f32 v{o+2}, v{X+2}, v{X+3}')
            a(f'v_cvt_pk_bf16_f32 v{o+3}, v{Y+2}, v{Y+3}')
            a(f'global_store_dwordx4 v1, {vr(o,4)}, s[4:5] offset:{1024*u}')
        if jn < 3: a(f'v_add_u32 v1, {TILE_B}, v1')
    stamp_end(a, 0)
    a('s_endpgm')
    a.label(f'{name}_xprep')
    a('s_lshr_b32 s24, s27, 1')
    a('s_lshl_b32 s24, s24, 3')
    a('s_and_b32 s33, s35, 7')
    a('s_add_u32 s24, s24, s33')
    a('s_lshl_b32 s24, s24, 3')
    a('s_add_u32 s24, s24, s22')
    a('s_lshl_b32 s24, s24, 3')
    a('s_cmp_ge_u32 s24, 56')
    a(f's_cbranch_scc1 {name}_nomem0')
    a(f's_load_dwordx2 s[30:31], s[0:1], {KA_MEM0}')
    a('v_and_b32 v8, 7, v3')
    a('v_mul_u32_u24 v8, 896, v8')
    a('v_lshrrev_b32 v9, 3, v3')
    a('v_lshl_add_u32 v8, v9, 4, v8')
    a('s_lshl_b32 s32, s22, 7')
    a('v_add_u32 v8, s32, v8')
    a('s_waitcnt lgkmcnt(0)')
    a('global_load_dwordx4 v[12:15], v8, s[30:31]')
    a('s_lshl_b32 s32, s22, 10')
    a(f's_add_u32 s32, s32, {WS_MEM2}')
    a('v_lshlrev_b32 v9, 4, v3')
    a('v_add_u32 v9, s32, v9')
    a('s_waitcnt vmcnt(0)')
    a('global_store_dwordx4 v9, v[12:15], s[4:5]')
    a('s_nop 1')
    a.label(f'{name}_nomem0')
    a('v_lshrrev_b32 v8, 2, v3')
    a('v_and_b32 v9, 3, v3')
    a('v_lshlrev_b32 v10, 6, v8')
    a('v_lshrrev_b32 v11, 1, v9')
    a('v_lshl_add_u32 v10, v11, 5, v10')
    a('v_and_b32 v11, 1, v9')
    a('v_lshl_add_u32 v10, v11, 3, v10')
    a('s_mul_i32 s25, s24, 896')
    a('v_add_u32 v11, s25, v10')
    a('s_lshr_b32 s30, s24, 4')
    a('s_and_b32 s31, s24, 15')
    a('s_mul_i32 s26, s30, 14336')
    a('s_lshl_b32 s32, s31, 4')
    a('s_add_u32 s26, s26, s32')
    a(f's_add_u32 s26, s26, {WS_XP}')
    a('v_lshlrev_b32 v12, 10, v8')
    a('v_lshl_add_u32 v12, v9, 8, v12')
    a('v_add_u32 v12, s26, v12')
    a('v_lshrrev_b32 v13, 4, v3')
    a('v_bfe_u32 v14, v3, 2, 2')
    a('v_mul_u32_u24 v15, 224, v13')
    a('v_lshl_add_u32 v15, v14, 6, v15')
    a('v_lshl_add_u32 v15, v9, 3, v15')
    a('v_add_u32 v15, s25, v15')
    a('v_lshlrev_b32 v13, 13, v13')
    a('v_lshl_add_u32 v13, v14, 10, v13')
    a('v_lshl_add_u32 v13, v9, 8, v13')
    a('s_lshr_b32 s33, s30, 1')
    a('s_lshl_b32 s33, s33, 15')
    a('s_and_b32 s34, s30, 1')
    a('s_lshl_b32 s34, s34, 12')
    a('s_add_u32 s33, s33, s34')
    a('s_add_u32 s33, s33, s32')
    a(f's_add_u32 s33, s33, {WS_XK}')
    a('v_add_u32 v13, s33, v13')
    a('v_cmp_ne_u32 vcc, 3, v14')
    a('s_mov_b64 s[34:35], vcc')
    KB = 104
    for r in range(KB, KB+32): a(f'v_mov_b32 v{r}, 0')
    for t in range(8):
        if t == 4: a('v_add_u32 v15, 3584, v15')
        a(f'global_load_dwordx2 {vr(KB+4*t,2)}, v15, s[16:17] offset:{(t%4)*896}')
    a('v_subrev_u32 v15, 3584, v15')
    a('s_mov_b64 exec, s[34:35]')
    for t in range(8):
        if t == 4: a('v_add_u32 v15, 3584, v15')
        a(f'global_load_dwordx2 {vr(KB+4*t+2,2)}, v15, s[16:17] offset:{(t%4)*896+32}')
    a('s_mov_b64 exec, -1')
    for r in range(16, 16+8+32+8): a(f'v_mov_b32 v{r}, 0')
    a('s_mov_b32 s26, -1')
    a('s_mov_b32 s27, 0x00ffffff')
    a('s_mov_b64 exec, s[26:27]')
    a('global_load_dwordx2 v[16:17], v10, s[18:19]')
    a('global_load_dwordx2 v[18:19], v10, s[18:19] offset:16')
    a('global_load_dwordx2 v[20:21], v10, s[20:21]')
    a('global_load_dwordx2 v[22:23], v10, s[20:21] offset:16')
    XB = 24
    for t in range(8):
        if t == 4: a('v_add_u32 v11, 3584, v11')
        o = (t % 4) * 896
        a(f'global_load_dwordx2 {vr(XB+4*t,2)}, v11, s[16:17] offset:{o}')
        a(f'global_load_dwordx2 {vr(XB+4*t+2,2)}, v11, s[16:17] offset:{o+16}')
    a('s_mov_b64 exec, -1')
    a('s_waitcnt vmcnt(16)')
    for i in range(4):
        a(f'v_lshlrev_b32 v{64+2*i}, 16, v{16+i}')
        a(f'v_and_b32 v{65+2*i}, 0xffff0000, v{16+i}')
        a(f'v_lshlrev_b32 v{72+2*i}, 16, v{20+i}')
        a(f'v_and_b32 v{73+2*i}, 0xffff0000, v{20+i}')
    a('s_lshl_b32 s28, s24, 2')
    a(f's_add_u32 s28, s28, {WS_KEY}')
    a('s_lshl_b32 s29, s24, 3')
    a(f's_add_u32 s29, s29, {WS_G}')
    for t in range(8):
        a(f's_waitcnt vmcnt({14 + 2*t})')
        xb = XB + 4*t
        for i in range(4):
            a(f'v_lshlrev_b32 v{80+2*i}, 16, v{xb+i}')
            a(f'v_and_b32 v{81+2*i}, 0xffff0000, v{xb+i}')
        a('v_mul_f32 v96, v80, v64')
        for i in range(1, 8): a(f'v_fmac_f32 v96, v{80+i}, v{64+i}')
        for i in range(8): a(f'v_mul_f32 v{88+i}, v{80+i}, v{72+i}')
        for i in range(4): a(f'v_cvt_pk_bf16_f32 v{88+i}, v{88+2*i}, v{89+2*i}')
        a('v_lshlrev_b32 v97, 16, v88')
        a('v_and_b32 v92, 0xffff0000, v88')
        a('v_add_f32 v97, v97, v92')
        for i in range(1, 4):
            a(f'v_lshlrev_b32 v92, 16, v{88+i}')
            a(f'v_and_b32 v93, 0xffff0000, v{88+i}')
            a('v_add_f32 v97, v97, v92')
            a('v_add_f32 v97, v97, v93')
        wave_sum2(a, 96, 97, 98, 99)
        a('v_cvt_pk_bf16_f32 v98, v96, v97')
        a('v_lshlrev_b32 v99, 16, v98')
        a('v_ashrrev_i32 v100, 31, v99')
        a('v_or_b32 v100, 0x80000000, v100')
        a('v_xor_b32 v99, v99, v100')
        a('v_and_b32 v99, 0xffff0000, v99')
        a(f's_sub_u32 s30, {2047 - t}, s24')
        a('v_or_b32 v99, s30, v99')
        a('v_and_b32 v100, 0xffff0000, v98')
        a('v_mul_f32 v100, 0xbfb8aa3b, v100')
        a('v_exp_f32 v100, v100')
        a('v_add_f32 v100, 1.0, v100')
        a('v_rcp_f32 v100, v100')
        a('v_cvt_pk_bf16_f32 v100, v100, v100')
        a('v_and_b32 v100, 0xffff0000, v100')
        a('v_sub_f32 v101, 1.0, v100')
        a('v_cvt_pk_bf16_f32 v101, v101, v101')
        a('v_and_b32 v101, 0xffff0000, v101')
        a(f'v_swap_b32 v{xb+1}, v{xb+2}')
        a('s_mov_b64 exec, s[26:27]')
        a(f'global_store_dwordx4 v12, {vr(xb,4)}, s[4:5] offset:{16*t}')
        a('s_mov_b64 exec, -1')
        a(f'global_store_dwordx4 v13, {vr(KB+4*t,4)}, s[4:5] offset:{16*t}')
        a('s_mov_b64 exec, 1')
        a('v_mov_b32 v102, s28')
        a('v_mov_b32 v103, s29')
        a(f'global_store_dword v102, v99, s[4:5] offset:{4*t}')
        a(f'global_store_dwordx2 v103, v[100:101], s[4:5] offset:{8*t}')
        a('s_mov_b64 exec, -1')
    stamp_end(a, 0)
    a.label(f'{name}_end')
    a('s_endpgm')
    return dict(name=name, vgpr=240, agpr=0, sgpr=80, grid=256, block=512, lds=36864)
```

```python
WS_AIMG = 0x0000000
WS_VIMG = 0x0620000
WS_XP   = 0x0C40000
WS_XK   = 0x1C00000
WS_KEY  = 0x0E00000
WS_G    = 0x0E02000
WS_YP   = 0x0E08000
WS_FILL = 0x0F00000
WS_RING = 0x0F00000
RS = 0x24000
R_P, R_MEM, R_FP, R_FM, R_M = 0, 0x2800, 0x4400, 0x5400, 0x8000
WS_MEM2 = 0x1710000
WS_FILL_BYTES = 0x200000
WS_U    = 0x2000000
WS_M2   = 0x3C20000
WS_PX   = 0x4400000
TILE_B = 14336
KA_X, KA_MEM0, KA_WQ, KA_WK, KA_WV, KA_WO, KA_SEG, KA_BX, KA_WR, KA_WG, KA_WU, KA_WD, KA_GW, KA_OUT, KA_DBG, KA_WS = [8*i for i in range(16)]
WS_STAMP = 0x8000000
import os
STAMPS = bool(int(os.environ.get('STAMPS', '0')))
```

```python
import sys, importlib
from asmlib import *
from layout import *

HEADER = open('gated_mix__memory_aug_recurrent_mem_tr__moe_arch_mod__prompt.s.ref').read().split('; Override launch geometry')[0]

def desc(k):
    acc = (k['vgpr'] + 3) // 4 * 4
    nfv = acc + k['agpr'] if k['agpr'] else k['vgpr']
    return f""".p2align 6
.amdhsa_kernel {k['name']}
  .amdhsa_next_free_vgpr {nfv}
  .amdhsa_next_free_sgpr {k['sgpr']}
  .amdhsa_accum_offset {acc}
  .amdhsa_group_segment_fixed_size 0
  .amdhsa_kernarg_size 128
  .amdhsa_user_sgpr_count 2
  .amdhsa_user_sgpr_kernarg_segment_ptr 1
  .amdhsa_system_sgpr_workgroup_id_x 1
.end_amdhsa_kernel
"""

def build(gens, path):
    ks = []; body = ''
    for g in gens:
        a = Asm()
        k = g(a)
        ks.append(k)
        body += a.finalize()
    s = HEADER
    for k in ks:
        s += f"; @launch kernel={k['name']} grid=({k['grid']},1,1) block=({k['block']},1,1) lds={k['lds']}\n"
    s += '.amdgcn_target "amdgcn-amd-amdhsa--gfx950"\n.text\n' + body
    s += '.section .rodata,"a"\n'
    for k in ks: s += desc(k)
    open(path, 'w').write(s)
    return ks

if __name__ == '__main__':
    from k1 import gen_k1
    gens = [gen_k1]
    for modname, fn in [('k2', 'gen_k2'), ('k3', 'gen_k3'), ('k4', 'gen_k4'), ('k5', 'gen_k5')]:
        try:
            m = importlib.import_module(modname)
            gens.append(getattr(m, fn))
        except ModuleNotFoundError:
            pass
    out = sys.argv[1] if len(sys.argv) > 1 else 'gated_mix__memory_aug_recurrent_mem_tr__moe_arch_mod__prompt.s'
    ks = build(gens, out)
    print([k['name'] for k in ks])
```

```python
from asmlib import *
from layout import *

def wave_sum2(a, r0, r1, t0, t1):
    for ror in (8, 4, 2, 1):
        a(f'v_add_f32_dpp v{r0}, v{r0}, v{r0} row_ror:{ror} row_mask:0xf bank_mask:0xf')
        a(f'v_add_f32_dpp v{r1}, v{r1}, v{r1} row_ror:{ror} row_mask:0xf bank_mask:0xf')
    for sw in ('v_permlane16_swap_b32', 'v_permlane32_swap_b32'):
        a(f'v_mov_b32 v{t0}, v{r0}')
        a(f'v_mov_b32 v{t1}, v{r1}')
        a(f'{sw} v{r0}, v{t0}')
        a(f'{sw} v{r1}, v{t1}')
        a(f'v_add_f32 v{r0}, v{r0}, v{t0}')
        a(f'v_add_f32 v{r1}, v{r1}, v{t1}')

def stamp(a, i, wait=''):
    if not STAMPS: return
    if wait: a(wait)
    a(f's_memrealtime s[{60+2*i}:{61+2*i}]')
    a('s_waitcnt lgkmcnt(0)')

def stamp_end(a, kidx, ws='s[4:5]', wave='s22', n=7):
    if not STAMPS: return
    stamp(a, n, 's_waitcnt vmcnt(0)')
    a('s_mov_b64 exec, 1')
    a('s_lshl_b32 s3, s2, 3')
    a(f's_add_u32 s3, s3, {wave}')
    a('s_lshl_b32 s3, s3, 5')
    a(f's_add_u32 s3, s3, {WS_STAMP + kidx*0x20000}')
    a('v_mov_b32 v0, s3')
    for i in range(8): a(f'v_mov_b32 v{4+i}, s{60+2*i}')
    a(f'global_store_dwordx4 v0, v[4:7], {ws}')
    a(f'global_store_dwordx4 v0, v[8:11], {ws} offset:16')

def stamp_init(a):
    if not STAMPS: return
    for i in range(8): a(f's_mov_b32 s{60+2*i}, 0')
    stamp(a, 0)

def gen_k1(a, name='prep_kernel'):
    a(f'.globl {name}\n.p2align 8\n.type {name},@function\n{name}:')
    a(f's_cmp_ge_u32 s2, 256')
    a(f's_cbranch_scc1 {name}_end')
    a(f's_load_dwordx2 s[4:5], s[0:1], {KA_WS}')
    a(f's_load_dwordx4 s[8:11], s[0:1], {KA_WQ}')
    a(f's_load_dwordx4 s[12:15], s[0:1], {KA_WV}')
    a(f's_load_dwordx2 s[16:17], s[0:1], {KA_X}')
    a(f's_load_dwordx2 s[18:19], s[0:1], {KA_WR}')
    a(f's_load_dwordx2 s[20:21], s[0:1], {KA_GW}')
    stamp_init(a)
    a('s_lshl_b32 s3, s2, 13')
    a('v_lshlrev_b32 v1, 4, v0')
    a('v_add_u32 v1, s3, v1')
    a(f'v_add_u32 v1, {WS_FILL}, v1')
    for r in range(4): a(f'v_mov_b32 v{4+r}, -1')
    a('v_lshrrev_b32 v2, 6, v0')
    a('v_readfirstlane_b32 s22, v2')
    a('v_and_b32 v3, 63, v0')
    a('s_waitcnt lgkmcnt(0)')
    a(f'v_subrev_u32 v8, {WS_MEM2}, v1')
    a('v_cmp_le_u32 vcc, 7168, v8')
    a('s_and_saveexec_b64 s[24:25], vcc')
    a('global_store_dwordx4 v1, v[4:7], s[4:5]')
    a('s_mov_b64 exec, s[24:25]')
    a('v_add_u32 v1, 0x200000, v1')
    a('global_store_dwordx4 v1, v[4:7], s[4:5]')
    a('s_cmp_ge_u32 s2, 5')
    a(f's_cbranch_scc1 {name}_nocnt')
    for r in range(4): a(f'v_mov_b32 v{8+r}, 0')
    a('v_lshlrev_b32 v1, 4, v0')
    a('v_add_u32 v1, s3, v1')
    a(f'v_add_u32 v1, {WS_CNT}, v1')
    a('global_store_dwordx4 v1, v[8:11], s[4:5]')
    a('s_nop 1')
    a.label(f'{name}_nocnt')
    a('s_lshr_b32 s35, s2, 3')
    a('s_and_b32 s27, s2, 7')
    a('s_and_b32 s33, s27, 1')
    a('s_lshr_b32 s26, s35, 3')
    a('s_lshl_b32 s34, s33, 2')
    a('s_add_u32 s26, s26, s34')
    a('s_cmp_ge_u32 s26, 7')
    a(f's_cbranch_scc1 {name}_xprep')
    AOP, ACC, BOP = 16, 144, 208
    a('s_bfe_u32 s23, s27, 0x10001')
    a('s_and_b32 s25, s35, 7')
    a('s_lshr_b32 s33, s27, 2')
    a('s_lshl_b32 s33, s33, 3')
    a('s_add_u32 s25, s25, s33')
    a('s_cmp_eq_u32 s23, 1')
    a('s_cselect_b32 s28, s12, s8')
    a('s_cselect_b32 s29, s13, s9')
    a(f's_cselect_b32 s30, {WS_VIMG}, {WS_AIMG}')
    a('s_cselect_b32 s31, 1.0, 0x3db8aa3b')
    a('v_and_b32 v8, 15, v3')
    a('v_lshrrev_b32 v9, 4, v3')
    a('s_cmp_ge_u32 s22, 7')
    a(f's_cbranch_scc1 {name}_noA')
    a('v_lshrrev_b32 v10, 3, v8')
    a('v_lshlrev_b32 v10, 4, v10')
    a('v_bfe_u32 v11, v8, 2, 1')
    a('v_lshl_add_u32 v10, v11, 2, v10')
    a('v_and_b32 v11, 3, v8')
    a('v_add_u32 v10, v10, v11')
    a('s_lshl_b32 s32, s22, 6')
    a('v_add_u32 v10, s32, v10')
    a('v_lshlrev_b32 v10, 13, v10')
    a('s_lshl_b32 s33, s25, 9')
    a('v_lshl_add_u32 v10, v9, 4, v10')
    a('v_add_u32 v10, s33, v10')
    a('v_add_u32 v11, 0x10000, v10')
    a('v_add_u32 v12, 0x40000, v10')
    a('v_add_u32 v13, 0x50000, v10')
    for k in range(8):
        for q in range(4):
            a(f'global_load_dwordx4 {vr(AOP + 16*k + 4*q, 4)}, v{10+q}, s[28:29] offset:{64*k}')
    a.label(f'{name}_noA')
    stamp(a, 3)
    a('s_cmp_eq_u32 s23, 1')
    a(f's_cbranch_scc1 {name}_stageV')
    a('v_lshrrev_b32 v14, 5, v0')
    a('v_and_b32 v15, 31, v0')
    a('s_lshl_b32 s34, s26, 6')
    a('v_add_u32 v1, s34, v14')
    a('v_lshlrev_b32 v1, 13, v1')
    a('s_lshl_b32 s33, s25, 9')
    a('v_lshl_add_u32 v1, v15, 4, v1')
    a('v_add_u32 v1, s33, v1')
    for i in range(4):
        a(f'global_load_dwordx4 {vr(BOP + 4*i, 4)}, v1, s[10:11]')
        if i < 3: a('v_add_u32 v1, 0x20000, v1')
    a('v_mul_u32_u24 v2, 528, v14')
    a('v_lshl_add_u32 v2, v15, 4, v2')
    for i in range(4):
        a(f's_waitcnt vmcnt({3-i})')
        a(f'ds_write_b128 v2, {vr(BOP + 4*i, 4)} offset:{8448*i}')
    a('s_waitcnt lgkmcnt(0)')
    a('s_barrier')
    stamp(a, 1)
    a('s_cmp_ge_u32 s22, 7')
    a(f's_cbranch_scc1 {name}_end')
    a('v_mul_u32_u24 v2, 528, v8')
    a('v_lshl_add_u32 v2, v9, 4, v2')
    def breadA(k, dst):
        for jn in range(4):
            a(f'ds_read_b128 {vr(dst + 4*jn, 4)}, v2 offset:{8448*jn + 64*k}')
    def mainloop(bread, nrd):
        bread(0, BOP)
        for k in range(8):
            cur = BOP + 16*(k % 2); nxt = BOP + 16*((k+1) % 2)
            if k < 7:
                bread(k+1, nxt)
                a(f's_waitcnt lgkmcnt({nrd})')
            else:
                a('s_waitcnt lgkmcnt(0)')
            for q in range(4):
                for jn in range(4):
                    acc = vr(ACC + 16*q + 4*jn, 4)
                    a(f'v_mfma_f32_16x16x32_bf16 {acc}, {vr(AOP + 16*k + 4*q, 4)}, {vr(cur + 4*jn, 4)}, {acc if k else 0}')
    mainloop(breadA, 4)
    a(f's_branch {name}_epi')
    a.label(f'{name}_stageV')
    a('v_lshrrev_b32 v14, 3, v0')
    a('v_and_b32 v15, 7, v0')
    a('v_mul_u32_u24 v1, 896, v14')
    a('v_lshl_add_u32 v1, v15, 4, v1')
    a('s_mul_i32 s33, s25, 229376')
    a('s_lshl_b32 s34, s26, 7')
    a('s_add_u32 s33, s33, s34')
    a('v_add_u32 v1, s33, v1')
    for i in range(4):
        a(f'global_load_dwordx4 {vr(BOP + 4*i, 4)}, v1, s[14:15]')
        if i < 3: a('v_add_u32 v1, 57344, v1')
    a('v_mul_u32_u24 v2, 144, v14')
    a('v_lshl_add_u32 v2, v15, 4, v2')
    for i in range(4):
        a(f's_waitcnt vmcnt({3-i})')
        a(f'ds_write_b128 v2, {vr(BOP + 4*i, 4)} offset:{9216*i}')
    a('s_waitcnt lgkmcnt(0)')
    a('s_barrier')
    stamp(a, 1)
    a('s_cmp_ge_u32 s22, 7')
    a(f's_cbranch_scc1 {name}_end')
    a('v_lshrrev_b32 v2, 2, v8')
    a('v_lshl_add_u32 v2, v9, 3, v2')
    a('v_mul_u32_u24 v2, 144, v2')
    a('v_and_b32 v14, 3, v8')
    a('v_lshl_add_u32 v2, v14, 3, v2')
    def breadV(k, dst):
        for jn in range(4):
            a(f'ds_read_b64_tr_b16 {vr(dst + 4*jn, 2)}, v2 offset:{4608*k + 32*jn}')
            a(f'ds_read_b64_tr_b16 {vr(dst + 4*jn + 2, 2)}, v2 offset:{4608*k + 576 + 32*jn}')
    mainloop(breadV, 8)
    a.label(f'{name}_epi')
    stamp(a, 2)
    a('s_mul_i32 s33, s25, 28')
    a('s_lshl_b32 s34, s26, 2')
    a('s_add_u32 s33, s33, s34')
    a('s_mul_i32 s33, s33, 14')
    a('s_lshl_b32 s34, s22, 1')
    a('s_add_u32 s33, s33, s34')
    a('s_lshl_b32 s33, s33, 10')
    a('s_add_u32 s33, s33, s30')
    a('v_lshlrev_b32 v1, 4, v3')
    a('v_add_u32 v1, s33, v1')
    for jn in range(4):
        for u in range(2):
            X = ACC + 16*(2*u) + 4*jn; Y = ACC + 16*(2*u+1) + 4*jn
            for r in range(4):
                a(f'v_mul_f32 v{X+r}, s31, v{X+r}')
                a(f'v_mul_f32 v{Y+r}, s31, v{Y+r}')
            o = BOP + 4*((2*jn+u) % 8)
            a(f'v_cvt_pk_bf16_f32 v{o}, v{X}, v{X+1}')
            a(f'v_cvt_pk_bf16_f32 v{o+1}, v{Y}, v{Y+1}')
            a(f'v_cvt_pk_bf16_f32 v{o+2}, v{X+2}, v{X+3}')
            a(f'v_cvt_pk_bf16_f32 v{o+3}, v{Y+2}, v{Y+3}')
            a(f'global_store_dwordx4 v1, {vr(o,4)}, s[4:5] offset:{1024*u}')
        if jn < 3: a(f'v_add_u32 v1, {TILE_B}, v1')
    stamp_end(a, 0)
    a('s_endpgm')
    a.label(f'{name}_xprep')
    a('s_lshr_b32 s24, s27, 1')
    a('s_lshl_b32 s24, s24, 3')
    a('s_and_b32 s33, s35, 7')
    a('s_add_u32 s24, s24, s33')
    a('s_lshl_b32 s24, s24, 3')
    a('s_add_u32 s24, s24, s22')
    a('s_lshl_b32 s24, s24, 3')
    a('s_cmp_ge_u32 s24, 56')
    a(f's_cbranch_scc1 {name}_nomem0')
    a(f's_load_dwordx2 s[30:31], s[0:1], {KA_MEM0}')
    a('v_and_b32 v8, 7, v3')
    a('v_mul_u32_u24 v8, 896, v8')
    a('v_lshrrev_b32 v9, 3, v3')
    a('v_lshl_add_u32 v8, v9, 4, v8')
    a('s_lshl_b32 s32, s22, 7')
    a('v_add_u32 v8, s32, v8')
    a('s_waitcnt lgkmcnt(0)')
    a('global_load_dwordx4 v[12:15], v8, s[30:31]')
    a('s_lshl_b32 s32, s22, 10')
    a(f's_add_u32 s32, s32, {WS_MEM2}')
    a('v_lshlrev_b32 v9, 4, v3')
    a('v_add_u32 v9, s32, v9')
    a('s_waitcnt vmcnt(0)')
    a('global_store_dwordx4 v9, v[12:15], s[4:5]')
    a('s_nop 1')
    a.label(f'{name}_nomem0')
    a('v_lshrrev_b32 v8, 2, v3')
    a('v_and_b32 v9, 3, v3')
    a('v_lshlrev_b32 v10, 6, v8')
    a('v_lshrrev_b32 v11, 1, v9')
    a('v_lshl_add_u32 v10, v11, 5, v10')
    a('v_and_b32 v11, 1, v9')
    a('v_lshl_add_u32 v10, v11, 3, v10')
    a('s_mul_i32 s25, s24, 896')
    a('v_add_u32 v11, s25, v10')
    a('s_lshr_b32 s30, s24, 4')
    a('s_and_b32 s31, s24, 15')
    a('s_mul_i32 s26, s30, 14336')
    a('s_lshl_b32 s32, s31, 4')
    a('s_add_u32 s26, s26, s32')
    a(f's_add_u32 s26, s26, {WS_XP}')
    a('v_lshlrev_b32 v12, 10, v8')
    a('v_lshl_add_u32 v12, v9, 8, v12')
    a('v_add_u32 v12, s26, v12')
    a('v_lshrrev_b32 v13, 4, v3')
    a('v_bfe_u32 v14, v3, 2, 2')
    a('v_mul_u32_u24 v15, 224, v13')
    a('v_lshl_add_u32 v15, v14, 6, v15')
    a('v_lshl_add_u32 v15, v9, 3, v15')
    a('v_add_u32 v15, s25, v15')
    a('v_lshlrev_b32 v13, 13, v13')
    a('v_lshl_add_u32 v13, v14, 10, v13')
    a('v_lshl_add_u32 v13, v9, 8, v13')
    a('s_lshr_b32 s33, s30, 1')
    a('s_lshl_b32 s33, s33, 15')
    a('s_and_b32 s34, s30, 1')
    a('s_lshl_b32 s34, s34, 12')
    a('s_add_u32 s33, s33, s34')
    a('s_add_u32 s33, s33, s32')
    a(f's_add_u32 s33, s33, {WS_XK}')
    a('v_add_u32 v13, s33, v13')
    a('v_cmp_ne_u32 vcc, 3, v14')
    a('s_mov_b64 s[34:35], vcc')
    KB = 104
    for r in range(KB, KB+32): a(f'v_mov_b32 v{r}, 0')
    for t in range(8):
        if t == 4: a('v_add_u32 v15, 3584, v15')
        a(f'global_load_dwordx2 {vr(KB+4*t,2)}, v15, s[16:17] offset:{(t%4)*896}')
    a('v_subrev_u32 v15, 3584, v15')
    a('s_mov_b64 exec, s[34:35]')
    for t in range(8):
        if t == 4: a('v_add_u32 v15, 3584, v15')
        a(f'global_load_dwordx2 {vr(KB+4*t+2,2)}, v15, s[16:17] offset:{(t%4)*896+32}')
    a('s_mov_b64 exec, -1')
    for r in range(16, 16+8+32+8): a(f'v_mov_b32 v{r}, 0')
    a('s_mov_b32 s26, -1')
    a('s_mov_b32 s27, 0x00ffffff')
    a('s_mov_b64 exec, s[26:27]')
    a('global_load_dwordx2 v[16:17], v10, s[18:19]')
    a('global_load_dwordx2 v[18:19], v10, s[18:19] offset:16')
    a('global_load_dwordx2 v[20:21], v10, s[20:21]')
    a('global_load_dwordx2 v[22:23], v10, s[20:21] offset:16')
    XB = 24
    for t in range(8):
        if t == 4: a('v_add_u32 v11, 3584, v11')
        o = (t % 4) * 896
        a(f'global_load_dwordx2 {vr(XB+4*t,2)}, v11, s[16:17] offset:{o}')
        a(f'global_load_dwordx2 {vr(XB+4*t+2,2)}, v11, s[16:17] offset:{o+16}')
    a('s_mov_b64 exec, -1')
    a('s_waitcnt vmcnt(16)')
    for i in range(4):
        a(f'v_lshlrev_b32 v{64+2*i}, 16, v{16+i}')
        a(f'v_and_b32 v{65+2*i}, 0xffff0000, v{16+i}')
        a(f'v_lshlrev_b32 v{72+2*i}, 16, v{20+i}')
        a(f'v_and_b32 v{73+2*i}, 0xffff0000, v{20+i}')
    a('s_lshl_b32 s28, s24, 2')
    a(f's_add_u32 s28, s28, {WS_KEY}')
    a('s_lshl_b32 s29, s24, 3')
    a(f's_add_u32 s29, s29, {WS_G}')
    for t in range(8):
        a(f's_waitcnt vmcnt({14 + 2*t})')
        xb = XB + 4*t
        for i in range(4):
            a(f'v_lshlrev_b32 v{80+2*i}, 16, v{xb+i}')
            a(f'v_and_b32 v{81+2*i}, 0xffff0000, v{xb+i}')
        a('v_mul_f32 v96, v80, v64')
        for i in range(1, 8): a(f'v_fmac_f32 v96, v{80+i}, v{64+i}')
        for i in range(8): a(f'v_mul_f32 v{88+i}, v{80+i}, v{72+i}')
        for i in range(4): a(f'v_cvt_pk_bf16_f32 v{88+i}, v{88+2*i}, v{89+2*i}')
        a('v_lshlrev_b32 v97, 16, v88')
        a('v_and_b32 v92, 0xffff0000, v88')
        a('v_add_f32 v97, v97, v92')
        for i in range(1, 4):
            a(f'v_lshlrev_b32 v92, 16, v{88+i}')
            a(f'v_and_b32 v93, 0xffff0000, v{88+i}')
            a('v_add_f32 v97, v97, v92')
            a('v_add_f32 v97, v97, v93')
        wave_sum2(a, 96, 97, 98, 99)
        a('v_cvt_pk_bf16_f32 v98, v96, v97')
        a('v_lshlrev_b32 v99, 16, v98')
        a('v_ashrrev_i32 v100, 31, v99')
        a('v_or_b32 v100, 0x80000000, v100')
        a('v_xor_b32 v99, v99, v100')
        a('v_and_b32 v99, 0xffff0000, v99')
        a(f's_sub_u32 s30, {2047 - t}, s24')
        a('v_or_b32 v99, s30, v99')
        a('v_and_b32 v100, 0xffff0000, v98')
        a('v_mul_f32 v100, 0xbfb8aa3b, v100')
        a('v_exp_f32 v100, v100')
        a('v_add_f32 v100, 1.0, v100')
        a('v_rcp_f32 v100, v100')
        a('v_cvt_pk_bf16_f32 v100, v100, v100')
        a('v_and_b32 v100, 0xffff0000, v100')
        a('v_sub_f32 v101, 1.0, v100')
        a('v_cvt_pk_bf16_f32 v101, v101, v101')
        a('v_and_b32 v101, 0xffff0000, v101')
        a(f'v_swap_b32 v{xb+1}, v{xb+2}')
        a('s_mov_b64 exec, s[26:27]')
        a(f'global_store_dwordx4 v12, {vr(xb,4)}, s[4:5] offset:{16*t}')
        a('s_mov_b64 exec, -1')
        a(f'global_store_dwordx4 v13, {vr(KB+4*t,4)}, s[4:5] offset:{16*t}')
        a('s_mov_b64 exec, 1')
        a('v_mov_b32 v102, s28')
        a('v_mov_b32 v103, s29')
        a(f'global_store_dword v102, v99, s[4:5] offset:{4*t}')
        a(f'global_store_dwordx2 v103, v[100:101], s[4:5] offset:{8*t}')
        a('s_mov_b64 exec, -1')
    stamp_end(a, 0)
    a.label(f'{name}_end')
    a('s_endpgm')
    return dict(name=name, vgpr=240, agpr=0, sgpr=80, grid=256, block=512, lds=36864)
```

```python
from asmlib import *
from layout import *
from k1 import stamp, stamp_end, stamp_init
from prep import wait_flags, set_flag, WgWait, wait_prog
import os

WS_IDX = WS_YP + 28*1792

def gen_argmax(a, ws='s[4:5]'):
    a('v_lshlrev_b32 v1, 5, v0')
    a(f'v_add_u32 v1, {WS_KEY}, v1')
    a(f'global_load_dwordx4 v[4:7], v1, {ws} sc1')
    a(f'global_load_dwordx4 v[8:11], v1, {ws} offset:16 sc1')
    a('s_waitcnt vmcnt(0)')
    a('v_max3_u32 v4, v4, v5, v6')
    a('v_max3_u32 v8, v8, v9, v10')
    a('v_max3_u32 v4, v4, v7, v11')
    a('v_max_u32 v4, v4, v8')
    for ror in (8, 4, 2, 1):
        a(f'v_max_u32_dpp v4, v4, v4 row_ror:{ror} row_mask:0xf bank_mask:0xf')
    for sw in ('v_permlane16_swap_b32', 'v_permlane32_swap_b32'):
        a('v_mov_b32 v5, v4')
        a(f'{sw} v4, v5')
        a('v_max_u32 v4, v4, v5')
    a('v_lshrrev_b32 v2, 6, v0')
    a('v_lshlrev_b32 v2, 2, v2')
    a('s_barrier')
    a('ds_write_b32 v2, v4')
    a('s_waitcnt lgkmcnt(0)')
    a('s_barrier')
    a('v_mov_b32 v2, 0')
    a('ds_read_b128 v[4:7], v2')
    a('s_waitcnt lgkmcnt(0)')
    a('v_max3_u32 v4, v4, v5, v6')
    a('v_max_u32 v4, v4, v7')
    a('v_readfirstlane_b32 s26, v4')
    a('s_and_b32 s27, s26, 0x7ff')
    a('s_sub_u32 s27, 2047, s27')
    a('v_and_b32 v5, 0xffff0000, v4')
    a('v_ashrrev_i32 v6, 31, v5')
    a('v_not_b32 v6, v6')
    a('v_or_b32 v6, 0x80000000, v6')
    a('v_xor_b32 v5, v5, v6')
    a('v_and_b32 v5, 0xffff0000, v5')
    a('v_mul_f32 v5, 0xbfb8aa3b, v5')
    a('v_exp_f32 v5, v5')
    a('v_add_f32 v5, 1.0, v5')
    a('v_rcp_f32 v5, v5')
    a('v_cvt_pk_bf16_f32 v5, v5, v5')
    a('v_and_b32 v5, 0xffff0000, v5')
    a('v_readfirstlane_b32 s41, v5')
    a('s_barrier')

def gen_ffn(a, name, wg='s24', ws='s[4:5]', st=''):
    a(f's_load_dwordx2 s[8:9], s[0:1], {KA_X}')
    a(f's_load_dwordx4 s[12:15], s[0:1], {KA_WU}')
    a(f's_load_dwordx2 s[10:11], s[0:1], {KA_WG}')
    gen_argmax(a, ws)
    a('v_and_b32 v1, 7, v0')
    a('v_lshrrev_b32 v2, 3, v0')
    a('v_mul_u32_u24 v3, 28, v2')
    a('s_mul_i32 s28, s27, 896')
    a('v_add_u32 v3, s28, v3')
    for i in range(7): a(f'global_load_dword v{8+i}, v3, s[8:9] offset:{4*i}')
    a(f'v_mul_u32_u24 v4, {14*3584}, v2')
    a('v_lshl_add_u32 v4, v1, 4, v4')
    a(f's_lshl_b32 s28, {wg}, 7')
    a('v_add_u32 v4, s28, v4')
    WG_, WU_ = 64, 120
    for d in range(14):
        a(f'global_load_dwordx4 {vr(WG_+4*d,4)}, v4, s[10:11]')
        a(f'global_load_dwordx4 {vr(WU_+4*d,4)}, v4, s[12:13]')
        if d < 13: a('v_add_u32 v4, 3584, v4')
    for i in range(16): a(f'v_mov_b32 v{32+i}, 0')
    a('s_waitcnt vmcnt(28)')
    for i in range(7):
        a(f'v_lshlrev_b32 v{16+2*i}, 16, v{8+i}')
        a(f'v_and_b32 v{17+2*i}, 0xffff0000, v{8+i}')
    for d in range(14):
        a(f's_waitcnt vmcnt({26-2*d})')
        for base, acc in ((WG_, 32), (WU_, 40)):
            for i in range(4):
                a(f'v_lshlrev_b32 v48, 16, v{base+4*d+i}')
                a(f'v_and_b32 v49, 0xffff0000, v{base+4*d+i}')
                a(f'v_fmac_f32 v{acc+2*i}, v48, v{16+d}')
                a(f'v_fmac_f32 v{acc+2*i+1}, v49, v{16+d}')
    a('v_lshlrev_b32 v4, 9, v2')
    a('v_lshl_add_u32 v4, v1, 5, v4')
    a('ds_write_b128 v4, v[32:35]')
    a('ds_write_b128 v4, v[36:39] offset:16')
    a('ds_write_b128 v4, v[40:43] offset:256')
    a('ds_write_b128 v4, v[44:47] offset:272')
    a('v_mul_u32_u24 v5, 1171, v0')
    a('v_lshrrev_b32 v5, 16, v5')
    a('v_mul_u32_u24 v6, 56, v5')
    a('v_sub_u32 v6, v0, v6')
    a('v_min_u32 v5, 3, v5')
    a(f'v_mul_u32_u24 v7, {16*896}, v5')
    a('v_lshl_add_u32 v7, v6, 4, v7')
    a(f's_mul_i32 s28, {wg}, {64*896}')
    a('v_add_u32 v7, s28, v7')
    for f in range(16):
        a(f'global_load_dwordx4 {vr(WG_+4*f,4)}, v7, s[14:15] offset:{(f%4)*896}')
        if f % 4 == 3 and f < 15: a('v_add_u32 v7, 3584, v7')
    a('s_waitcnt lgkmcnt(0)')
    a('s_barrier')
    a('v_lshlrev_b32 v4, 2, v0')
    a('v_and_b32 v4, 255, v4')
    a('v_mov_b32 v32, 0')
    a('v_mov_b32 v33, 0')
    for blk in range(4):
        for i in range(8):
            a(f'ds_read_b32 v{8+i}, v4 offset:{512*(8*blk+i)}')
            a(f'ds_read_b32 v{16+i}, v4 offset:{512*(8*blk+i)+256}')
        a('s_waitcnt lgkmcnt(0)')
        for i in range(8):
            a(f'v_add_f32 v32, v32, v{8+i}')
            a(f'v_add_f32 v33, v33, v{16+i}')
    a('v_cvt_pk_bf16_f32 v34, v32, v33')
    a('v_lshlrev_b32 v32, 16, v34')
    a('v_and_b32 v33, 0xffff0000, v34')
    a('v_mul_f32 v35, 0xbfb8aa3b, v32')
    a('v_exp_f32 v35, v35')
    a('v_add_f32 v35, 1.0, v35')
    a('v_rcp_f32 v35, v35')
    a('v_mul_f32 v35, v32, v35')
    a('v_cvt_pk_bf16_f32 v35, v35, v35')
    a('v_and_b32 v35, 0xffff0000, v35')
    a('v_mul_f32 v35, v35, v33')
    a('v_cvt_pk_bf16_f32 v35, v35, v35')
    a('v_and_b32 v35, 0xffff0000, v35')
    a('ds_write_b32 v4, v35 offset:16384')
    a('s_waitcnt lgkmcnt(0)')
    a('s_barrier')
    a('v_lshlrev_b32 v4, 6, v5')
    for i in range(4): a(f'ds_read_b128 {vr(8+4*i,4)}, v4 offset:{16384+16*i}')
    for i in range(8): a(f'v_mov_b32 v{32+i}, 0')
    a('s_waitcnt lgkmcnt(0)')
    for f in range(16):
        a(f's_waitcnt vmcnt({15-f})')
        for i in range(4):
            a(f'v_lshlrev_b32 v48, 16, v{WG_+4*f+i}')
            a(f'v_and_b32 v49, 0xffff0000, v{WG_+4*f+i}')
            a(f'v_fmac_f32 v{32+2*i}, v48, v{8+f}')
            a(f'v_fmac_f32 v{33+2*i}, v49, v{8+f}')
    a('v_mul_u32_u24 v4, 1792, v5')
    a('v_lshl_add_u32 v4, v6, 5, v4')
    a('v_cmp_gt_u32 vcc, 224, v0')
    a('s_and_saveexec_b64 s[28:29], vcc')
    a('ds_write_b128 v4, v[32:35]')
    a('ds_write_b128 v4, v[36:39] offset:16')
    a('s_mov_b64 exec, s[28:29]')
    a('s_waitcnt lgkmcnt(0)')
    a('s_barrier')
    a('v_lshlrev_b32 v4, 3, v0')
    a('v_min_u32 v4, 1784, v4')
    for i in range(4): a(f'ds_read_b64 {vr(8+2*i,2)}, v4 offset:{1792*i}')
    a('s_waitcnt lgkmcnt(0)')
    for j in range(2):
        a(f'v_add_f32 v{8+j}, v{8+j}, v{10+j}')
        a(f'v_add_f32 v{12+j}, v{12+j}, v{14+j}')
        a(f'v_add_f32 v{8+j}, v{8+j}, v{12+j}')
    a(f's_mul_i32 s28, {wg}, 1792')
    a(f's_add_u32 s28, s28, {WS_YP}')
    a('v_add_u32 v4, s28, v4')
    a(f'global_store_dwordx2 v4, v[8:9], {ws} {st}')
    a('s_waitcnt vmcnt(0)')
    a('s_barrier')
    a(f's_lshl_b32 s28, {wg}, 2')
    a(f's_add_u32 s28, s28, {WS_FLG + F_FFN}')
    set_flag(a, 's28', vt=5)

def gen_ugemm(a, name, setreg, wv, nseg, stride, ws='s[4:5]', st='', sig=False):
    X, ACC, O = 16, 128, 160
    a('v_and_b32 v3, 63, v0')
    a(f's_mul_i32 s30, {setreg}, 4682')
    a('s_lshr_b32 s30, s30, 16')
    a('s_mul_i32 s31, s30, 14')
    a(f's_sub_u32 s31, {setreg}, s31')
    if sig:
        a('s_mov_b32 s40, 1000000')
        a('s_mul_i32 s32, s30, 14')
        a('s_lshr_b32 s33, s31, 1')
        a('s_add_u32 s32, s32, s33')
        a('s_lshl_b32 s32, s32, 4')
        a(f's_add_u32 s32, s32, {WS_FLG + F_IMG + 112*16}')
        with WgWait(a):
            wait_flags(a, name, 's32', 4, lane='v3', va=4, sleep=10)
            a('s_add_u32 s32, s32, 112')
            wait_flags(a, name, 's32', 4, lane='v3', va=4, sleep=10)
            wait_flags(a, name, WS_FLG + F_XP, 128, lane='v3', va=4, sleep=20)
    stamp(a, 4)
    a('s_mul_i32 s32, s30, 56')
    a('s_lshl_b32 s33, s31, 1')
    a('s_add_u32 s32, s32, s33')
    a(f's_mul_i32 s32, s32, {TILE_B}')
    a(f's_add_u32 s32, s32, {WS_VIMG}')
    a('v_lshlrev_b32 v4, 4, v3')
    a('v_add_u32 v5, s32, v4')
    a(f's_mul_i32 s34, {wv}, {28*1024}')
    a(f's_add_u32 s34, s34, {WS_XP + 4096}')
    for q in range(4):
        a(f'v_add_u32 v{11+q}, s34, v4')
        if q < 3: a('s_add_u32 s34, s34, 8192')
    def xld(blk, tt):
        j = tt*14 + blk
        return f'global_load_dwordx4 {vr(X+8*blk+4*tt,4)}, v{11 + j//8}, {ws} offset:{1024*(j%8) - 4096} {os.environ.get("XPF", "sc1")}'
    for blk in range(14):
        for tt in range(2):
            a(xld(blk, tt))
    for sel in range(2):
        for ci in range(2):
            img = 2*ci + sel
            a(f'v_add_u32 v8, {(sel*28+ci)*TILE_B}, v5')
            for blk in range(14):
                if blk % 4 == 0 and blk: a('v_add_u32 v8, 4096, v8')
                a(f'global_load_dwordx4 {ar(56*img+4*blk,4)}, v8, {ws} offset:{1024*(blk%4)} sc1')
    a(f's_mul_i32 s35, {wv}, 28')
    a('s_add_u32 s35, s35, s33')
    a('s_lshl_b32 s35, s35, 3')
    a('s_add_u32 s35, s35, s30')
    a('s_lshl_b32 s35, s35, 11')
    a(f's_add_u32 s35, s35, {WS_U}')
    a('v_add_u32 v9, s35, v4')
    a('v_add_u32 v10, 16384, v9')
    if sig:
        a(f's_mul_i32 s38, {wv}, 14')
        a('s_add_u32 s38, s38, s31')
        a('s_lshl_b32 s38, s38, 3')
        a('s_add_u32 s38, s38, s30')
        a('s_lshl_b32 s38, s38, 2')
        a(f's_add_u32 s38, s38, {WS_FLG + F_U}')
        a(f's_lshl_b32 s39, {setreg}, 2')
        a(f's_add_u32 s39, s39, {wv}')
        a('s_lshl_b32 s39, s39, 7')
        a(f's_add_u32 s39, s39, {WS_FLG + F_DUMMY}')
        a('v_mov_b32 v5, s39')
        a('v_mov_b32 v6, s20')
    a('s_mov_b32 s36, 0')
    a('s_waitcnt vmcnt(0)')
    stamp(a, 5)
    if os.environ.get('UEXIT'): a('s_endpgm')
    a.label(f'{name}_uloop')
    if sig:
        NF = int(os.environ.get('UFREE', '2'))
        lp = a.newlabel('upace')
        a(f's_cmp_lt_u32 s36, {NF}')
        a(f's_cbranch_scc1 {lp}')
        a('s_lshl_b32 s39, s36, 2')
        a('s_sub_i32 s39, s39, 9')
        a('s_max_i32 s39, s39, 1')
        a('s_waitcnt vmcnt(0)')
        a('s_mov_b64 exec, 1')
        a(f'global_store_dword v5, v6, {ws} sc1')
        a('s_mov_b64 exec, -1')
        with WgWait(a): wait_prog(a, name, 's39', va=176, sleep=50)
        a.label(lp)
    a('s_add_u32 s36, s36, 1')
    a(f's_cmp_lt_u32 s36, {nseg}')
    a(f's_cselect_b32 s37, {stride*32*896}, 0')
    for q in range(4): a(f'v_add_u32 v{11+q}, s37, v{11+q}')
    for blk in range(14):
        for tt in range(2):
            a('s_waitcnt vmcnt(27)')
            x = vr(X+8*blk+4*tt, 4)
            for img in range(4):
                acc = vr(ACC + 16*tt + 4*img, 4)
                a(f'v_mfma_f32_16x16x32_bf16 {acc}, {x}, {ar(56*img+4*blk,4)}, {acc if blk else 0}')
            a(xld(blk, tt))
    if sig:
        a('s_waitcnt vmcnt(27)')
        a('s_mov_b64 exec, 1')
        a(f'global_store_dword v5, v6, {ws} sc1')
        a('v_mov_b32 v5, s38')
        a('s_mov_b64 exec, -1')
        a(f's_add_u32 s38, s38, {stride*448}')
    for ci in range(2):
        for tt in range(2):
            A = ACC + 16*tt + 8*ci; B = A + 4; o = O + 4*(2*ci+tt)
            a(f'v_cvt_pk_bf16_f32 v{o}, v{A}, v{A+1}')
            a(f'v_cvt_pk_bf16_f32 v{o+1}, v{B}, v{B+1}')
            a(f'v_cvt_pk_bf16_f32 v{o+2}, v{A+2}, v{A+3}')
            a(f'v_cvt_pk_bf16_f32 v{o+3}, v{B+2}, v{B+3}')
            a(f'global_store_dwordx4 v{9+ci}, {vr(o,4)}, {ws} offset:{1024*tt} {st}')
    if sig:
        lq = a.newlabel('uq')
        a('s_cmp_lg_u32 s36, 1')
        a(f's_cbranch_scc1 {lq}')
        a('s_waitcnt vmcnt(0)')
        a('s_mov_b64 exec, 1')
        a(f'global_store_dword v5, v6, {ws} sc1')
        a('s_mov_b64 exec, -1')
        stamp(a, 6)
        a.label(lq)
    a(f'v_add_u32 v9, {stride*28*16384}, v9')
    a(f'v_add_u32 v10, {stride*28*16384}, v10')
    a(f's_cmp_lt_u32 s36, {nseg}')
    a(f's_cbranch_scc1 {name}_uloop')
    if sig:
        a('s_waitcnt vmcnt(0)')
        a('s_mov_b64 exec, 1')
        a(f'global_store_dword v5, v6, {ws} sc1')
        a('s_mov_b64 exec, -1')

def gen_k2(a, name='ugemm_kernel'):
    a(f'.globl {name}\n.p2align 8\n.type {name},@function\n{name}:')
    a('s_cmp_ge_u32 s2, 252')
    a(f's_cbranch_scc1 {name}_end')
    a(f's_load_dwordx2 s[4:5], s[0:1], {KA_WS}')
    stamp_init(a)
    a('v_lshrrev_b32 v2, 6, v0')
    a('v_readfirstlane_b32 s22, v2')
    a('s_waitcnt lgkmcnt(0)')
    a('s_cmp_ge_u32 s2, 224')
    a(f's_cbranch_scc1 {name}_ffn')
    a('s_and_b32 s24, s2, 7')
    a('s_mul_i32 s24, s24, 14')
    a('s_lshr_b32 s25, s2, 3')
    a('s_cmp_ge_u32 s25, 14')
    a('s_cselect_b32 s26, 14, 0')
    a('s_cselect_b32 s27, 4, 0')
    a('s_sub_u32 s25, s25, s26')
    a('s_add_u32 s24, s24, s25')
    a('s_add_u32 s27, s27, s22')
    gen_ugemm(a, name, 's24', 's27', 8, 8)
    stamp_end(a, 1)
    a('s_endpgm')
    a.label(f'{name}_ffn')
    a('s_sub_u32 s24, s2, 224')
    gen_ffn(a, name)
    stamp_end(a, 1)
    a.label(f'{name}_end')
    a('s_endpgm')
    return dict(name=name, vgpr=180, agpr=224, sgpr=80, grid=252, block=256, lds=20480)
```

```python
from asmlib import *
from layout import *
from k1 import stamp, stamp_end, stamp_init
import os
from prep import wait_flags, gen_chain_prep, set_flag, WgWait
ENV = lambda k, d: int(os.environ.get(k, d))

L_MEM, L_T, L_S, L_MISC, L_STASH, L_K1, L_U = 0, 0x2000, 0x6000, 0x9400, 0x9800, 0xA000, 0x10000
L_MS = 0x2000
LDS_BYTES = 0x20000
MA, ACC, SACC, TB, TBZ, K0, KM0, K2, CV, IDX, KM1 = 8, 36, 64, 76, 84, 88, 96, 100, 108, 112, 116
PA, MB, UB, PACC = 8, 48, 64, 96
LOG2E = 0x3fb8aa3b
A_FST, A_FL, A_TW, A_TR, A_MK, A_SR, A_PST, A_SW = 0, 2, 5, 6, 7, 113, 114, 115
A_XK = 87
A_MST = 114
A_CP = 113
A_UR, A_ML, A_MEMST, A_PERM = 100, 101, 102, 103
FR = (104, 105, 106)
TMP = 119
TMP2 = 99
NREP = ENV('NREP', 4)
RMASK = (1 << NREP) - 1
A_DM = 0

def cstamp(a, i, step=30):
    if not STAMPS or ENV('NOCST', 0): return
    l = a.newlabel('cst')
    a(f's_cmp_lg_u32 s36, {step}')
    a(f's_cbranch_scc1 {l}')
    a(f's_mem{"real" if ENV("RT",0) else ""}time s[{60+2*i}:{61+2*i}]')
    a('s_waitcnt lgkmcnt(0)')
    a.label(l)

def W(j, t):
    g = 7*j + t
    return ar(8*g, 8) if g < 32 else vr(120 + 8*(g-32), 8)

def max_ops(regs, tmp, first=True):
    r = list(regs); out = []
    while r:
        if first:
            if len(r) >= 3: out.append(f'v_max3_u32 v{tmp}, v{r[0]}, v{r[1]}, v{r[2]}'); r = r[3:]
            else: out.append(f'v_max_u32 v{tmp}, v{r[0]}, v{r[1]}'); r = r[2:]
            first = False
        elif len(r) >= 2: out.append(f'v_max3_u32 v{tmp}, v{tmp}, v{r[0]}, v{r[1]}'); r = r[2:]
        else: out.append(f'v_max_u32 v{tmp}, v{tmp}, v{r[0]}'); r = r[1:]
    return out

class Cnt:
    def __init__(self): self.n = 0; self.last = {}
    def reset(self): self.n = 0; self.last = {}
    def issue(self, tag): self.n += 1; self.last[tag] = self.n
    def need(self, tag): return self.n - self.last[tag]

def sadd64(a, lo, imm):
    a(f's_add_u32 s{lo}, s{lo}, {imm}')
    a(f's_addc_u32 s{lo+1}, s{lo+1}, 0')

def flag_ld(r): return f'global_load_dword v{r}, v{A_FL}, s[46:47] sc1'

def flag_poll(a, name, pre=0, FR=FR, extra=0):
    L = a.newlabel(name + '_fp'); D = a.newlabel(name + '_fd')
    n = len(FR)
    for r in FR[pre:n-1]:
        a(flag_ld(r))
        a('s_nop 7')
    if extra:
        a(flag_ld(FR[2]))
        a(f's_waitcnt vmcnt({2+extra})')
        a(f'v_cmp_eq_u32 vcc, -1, v{FR[0]}')
        a(f's_cbranch_vccz {D}')
        a(flag_ld(FR[0]))
        a(f's_waitcnt vmcnt({2+extra})')
        a(f'v_cmp_eq_u32 vcc, -1, v{FR[1]}')
        a(f's_cbranch_vccz {D}')
        a(f's_branch {L}_2')
    a.label(L)
    for j in range(n):
        if j == 2: a.label(f'{L}_2')
        a(flag_ld(FR[(j+n-1) % n]))
        a(f's_waitcnt vmcnt({n-1})')
        a(f'v_cmp_eq_u32 vcc, -1, v{FR[j]}')
        a(f's_cbranch_vccz {D}')
    a('s_sub_u32 s40, s40, 1')
    a(f's_cbranch_scc0 {L}')
    a('s_mov_b32 s40, 0')
    a.label(D)

def gen_chain(a, name, role='s24', merged=False):
    ws = 's[4:5]'
    NEG = 104
    a('s_mov_b32 s40, 2000000')
    if merged:
        gen_chain_prep(a, name, role)
        if ENV('BISECT', 0) == 1: a(f's_branch {name}_done')
        a('v_and_b32 v0, 63, v0')
        a(f's_mul_i32 s25, {role}, 112')
        a(f's_add_u32 s25, s25, {WS_FLG + F_IMG}')
        stamp(a, 1)
        with WgWait(a, True): wait_flags(a, name, 's25', 28, va=4, sleep=3)
        stamp(a, 2)
    a('v_and_b32 v0, 63, v0')
    a('v_lshlrev_b32 v1, 4, v0')
    a(f's_and_b32 s25, {role}, 15')
    a(f's_lshr_b32 s26, {role}, 4')
    a('s_mul_i32 s27, s25, 28')
    a('s_mul_i32 s28, s22, 7')
    a('s_add_u32 s27, s27, s28')
    a(f's_mul_i32 s27, s27, {TILE_B}')
    a(f's_mul_i32 s28, s26, {WS_VIMG - WS_AIMG}')
    a('s_add_u32 s27, s27, s28')
    a('s_lshl_b32 s29, s22, 1')
    a('v_add_u32 v2, s27, v1')
    for g in range(49):
        for u in range(2):
            dst = ar(8*g+4*u, 4) if g < 32 else vr(120 + 8*(g-32) + 4*u, 4)
            a(f'global_load_dwordx4 {dst}, v2, {ws} offset:{2048*(g%2) + 1024*u}')
        if g % 2 == 1: a('v_add_u32 v2, 4096, v2')
    if merged:
        with WgWait(a): wait_flags(a, name, WS_FLG + F_XP, 128, va=16, sleep=8)
        a('s_waitcnt vmcnt(0)')
    stamp(a, 3)
    if ENV('BISECT', 0) == 3:
        a('s_mov_b32 s88, 1'); a(f's_branch {name}_done')
    def sbase(lo, off):
        a(f's_add_u32 s{lo}, s4, {off}')
        a(f's_addc_u32 s{lo+1}, s5, 0')
    C, G, T1, T2, T3 = 8, 9, 10, 11, 12
    a(f'v_and_b32 v{C}, 15, v0')
    a(f'v_lshrrev_b32 v{G}, 4, v0')
    a(f'v_cmp_lt_u32 vcc, 7, v{C}')
    a(f'v_mov_b32 v{IDX}, 0x4444')
    a(f'v_mov_b32 v{T1}, 0xeeee')
    a(f'v_cndmask_b32 v{IDX}, v{IDX}, v{T1}, vcc')
    a('v_add_u32 v3, 4096, v1')
    a('v_add_u32 v4, 8192, v1')
    for r in (5, 6, 7, 100, 101, 102, 103, 113, 114, 115, 116): a(f'v_mov_b32 v{r}, v1')
    a(f's_lshl_b32 s30, {role}, 2')
    a('s_add_u32 s30, s30, s22')
    a('s_mul_i32 s30, s30, 4608')
    a(f's_add_u32 s30, s30, {WS_RING + 4096}')
    a(f'v_add_u32 v{T1}, s30, v1')
    for i in range(5): a(f'global_load_dwordx4 {vr(16+4*i,4)}, v{T1}, {ws} offset:{1024*i-4096 if i < 4 else -512} sc1')
    for lo in (8, 10, 12, 14, 52, 54, 56, 58): sbase(lo, WS_RING + 4*RS)
    sbase(44, WS_MEM2)
    sbase(46, WS_RING)
    sbase(48, WS_RING + 3*RS)
    sbase(50, WS_RING + RS)
    a(f's_mov_b32 s38, {2*RS}')
    a('s_mov_b32 s36, 0')
    a(f's_and_b32 s31, {role}, {NREP-1}')
    a('s_lshl_b32 s31, s31, 8')
    a(f's_add_u32 s31, s31, {R_FM}')
    a(f'v_min_u32 v{A_FL}, 27, v0')
    a(f'v_lshlrev_b32 v{A_FL}, 2, v{A_FL}')
    a(f'v_add_u32 v{A_FL}, s31, v{A_FL}')
    a('s_cmp_eq_u32 s26, 1')
    a(f's_cbranch_scc1 {name}_vsetup')
    a('s_lshl_b32 s30, s22, 12')
    a(f's_add_u32 s30, s30, {L_T}')
    a(f'v_lshlrev_b32 v{A_TW}, 5, v{C}')
    a(f'v_lshrrev_b32 v{T1}, 2, v{C}')
    a(f'v_xor_b32 v{T1}, v{T1}, v{G}')
    a(f'v_lshl_add_u32 v{A_TW}, v{T1}, 3, v{A_TW}')
    a(f'v_add_u32 v{A_TW}, s30, v{A_TW}')
    a(f'v_and_b32 v{T1}, 3, v0')
    a(f'v_xor_b32 v{T1}, v{T1}, v{G}')
    a(f'v_lshrrev_b32 v{A_TR}, 2, v0')
    a(f'v_lshlrev_b32 v{A_TR}, 5, v{A_TR}')
    a(f'v_lshl_add_u32 v{A_TR}, v{T1}, 3, v{A_TR}')
    a(f'v_add_u32 v{A_TR}, s30, v{A_TR}')
    a(f'v_lshrrev_b32 v{T1}, 1, v{G}')
    a(f'v_and_b32 v{T2}, 1, v{G}')
    a(f'v_lshlrev_b32 v{A_MK}, 7, v{T1}')
    a(f'v_lshl_add_u32 v{A_MK}, v{T2}, 3, v{A_MK}')
    a(f'v_and_b32 v{T3}, 7, v0')
    a(f'v_lshl_add_u32 v{A_MK}, v{T3}, 4, v{A_MK}')
    a('s_mul_i32 s30, s22, 1792')
    a(f'v_add_u32 v{A_MK}, s30, v{A_MK}')
    a(f'v_mul_u32_u24 v{A_SW}, 208, v{C}')
    a(f'v_lshl_add_u32 v{A_SW}, v{G}, 4, v{A_SW}')
    a('s_mul_i32 s30, s22, 3328')
    a(f's_add_u32 s30, s30, {L_S}')
    a(f'v_add_u32 v{A_SW}, s30, v{A_SW}')
    a(f'v_lshrrev_b32 v{T1}, 5, v0')
    a(f'v_add_u32 v{T1}, s29, v{T1}')
    a(f'v_and_b32 v{T2}, 31, v0')
    a(f'v_mul_u32_u24 v{A_SR}, 208, v{T1}')
    a(f'v_lshl_add_u32 v{A_SR}, v{T2}, 3, v{A_SR}')
    a(f'v_add_u32 v{A_SR}, {L_S}, v{A_SR}')
    a(f'v_lshrrev_b32 v{A_PST}, 2, v{T2}')
    a(f'v_lshlrev_b32 v{A_PST}, 8, v{A_PST}')
    a(f'v_and_b32 v{T3}, 3, v{T2}')
    a(f'v_lshl_add_u32 v{A_PST}, v{T3}, 2, v{A_PST}')
    a('s_lshr_b32 s30, s25, 1')
    a('s_lshl_b32 s30, s30, 10')
    a('s_and_b32 s31, s25, 1')
    a('s_lshl_b32 s32, s31, 7')
    a('s_add_u32 s30, s30, s32')
    a(f'v_add_u32 v{A_PST}, s30, v{A_PST}')
    a(f'v_and_b32 v{C}, 1, v{T2}')
    a(f'v_lshlrev_b32 v{C}, 7, v{C}')
    a(f'v_bfe_u32 v{G}, v{T2}, 1, 1')
    a(f'v_lshl_add_u32 v{C}, v{G}, 3, v{C}')
    a('s_lshr_b32 s30, s25, 3')
    a('s_lshl_b32 s30, s30, 10')
    a('s_bfe_u32 s32, s25, 0x20001')
    a('s_lshl_b32 s32, s32, 8')
    a('s_add_u32 s30, s30, s32')
    a('s_lshl_b32 s32, s31, 2')
    a('s_add_u32 s30, s30, s32')
    a('s_add_u32 s30, s30, 8192')
    a(f'v_add_u32 v{C}, s30, v{C}')
    a(f'v_cmp_lt_u32 vcc, 15, v{T2}')
    a(f'v_cndmask_b32 v{A_PST}, v{A_PST}, v{C}, vcc')
    a(f'v_lshl_add_u32 v{A_PST}, v{T1}, 4, v{A_PST}')
    a(f'v_cmp_gt_u32 vcc, 20, v{T2}')
    a('s_mov_b64 s[42:43], vcc')
    a('s_lshl_b32 s31, s25, 2')
    a(f's_add_u32 s31, s31, {R_FP}')
    a(f'v_lshlrev_b32 v{A_FST}, 8, v0')
    a(f'v_add_u32 v{A_FST}, s31, v{A_FST}')
    a('s_lshl_b32 s30, s22, 13')
    a(f's_add_u32 s30, s30, {WS_XK}')
    sbase(54, 's30')
    a('s_lshl_b32 s30, s25, 2')
    a('s_add_u32 s30, s30, s22')
    a(f's_mul_i32 s30, s30, {7168}')
    a(f's_add_u32 s30, s30, {WS_U + 2*28*16384}')
    sbase(8, 's30')
    a(f's_branch {name}_go')
    a.label(f'{name}_vsetup')
    a('s_and_b32 s33, s22, 1')
    a('s_lshl_b32 s30, s25, 1')
    a('s_add_u32 s33, s33, s30')
    a('s_min_u32 s41, s33, 27')
    a(f'v_lshrrev_b32 v{T1}, 1, v{G}')
    a(f'v_and_b32 v{T2}, 1, v{G}')
    a('s_and_b32 s30, s22, 1')
    a('s_lshl_b32 s30, s30, 14')
    a(f's_add_u32 s30, s30, {L_U}')
    a(f'v_add_u32 v{A_UR}, s30, v1')
    a('s_lshl_b32 s30, s41, 12')
    a(f's_add_u32 s30, s30, {R_M}')
    a(f'v_add_u32 v{A_ML}, s30, v1')
    a(f'v_lshrrev_b32 v{A_MEMST}, 3, v{C}')
    a(f'v_lshlrev_b32 v{A_MEMST}, 7, v{A_MEMST}')
    a(f'v_lshl_add_u32 v{A_MEMST}, v{T2}, 6, v{A_MEMST}')
    a(f'v_lshl_add_u32 v{A_MEMST}, v{T1}, 4, v{A_MEMST}')
    a(f'v_and_b32 v{T3}, 1, v{C}')
    a(f'v_lshl_add_u32 v{A_MEMST}, v{T3}, 5, v{A_MEMST}')
    a(f'v_bfe_u32 v{A_PERM}, v{C}, 1, 2')
    a(f'v_lshl_add_u32 v{A_MEMST}, v{A_PERM}, 2, v{A_MEMST}')
    a('s_lshl_b32 s30, s41, 8')
    a(f's_add_u32 s30, s30, {R_MEM}')
    a(f'v_add_u32 v{A_MEMST}, s30, v{A_MEMST}')
    a(f'v_cmp_eq_u32 vcc, 1, v{T3}')
    a(f'v_mov_b32 v{A_PERM}, 0x01000504')
    a(f'v_mov_b32 v{T3}, 0x07060302')
    a(f'v_cndmask_b32 v{A_PERM}, v{A_PERM}, v{T3}, vcc')
    a(f'v_and_b32 v{T2}, 31, v0')
    a(f'v_lshlrev_b32 v{T2}, 4, v{T2}')
    a(f'v_lshrrev_b32 v{T1}, 5, v0')
    a('s_lshr_b32 s30, s25, 1')
    a('s_lshl_b32 s30, s30, 9')
    a(f's_add_u32 s30, s30, {R_M}')
    a('s_and_b32 s31, s25, 1')
    a(f'v_lshl_add_u32 v6, v{T1}, 13, v{T2}')
    a('s_lshl_b32 s32, s31, 12')
    a('s_add_u32 s32, s32, s30')
    a('v_add_u32 v6, s32, v6')
    a(f'v_lshl_add_u32 v{A_MST}, v{T1}, 12, v{T2}')
    a('s_lshl_b32 s31, s31, 3')
    a('s_add_u32 s30, s30, s31')
    a('s_mul_i32 s31, s22, 28672')
    a('s_add_u32 s30, s30, s31')
    a(f'v_add_u32 v{A_MST}, s30, v{A_MST}')
    a('s_lshl_b32 s32, s25, 8')
    a(f's_add_u32 s32, s32, {R_M}')
    a(f'v_lshlrev_b32 v{A_CP}, 12, v{G}')
    a(f'v_lshl_add_u32 v{A_CP}, v{C}, 4, v{A_CP}')
    a(f'v_add_u32 v{A_CP}, s32, v{A_CP}')
    a(f'v_lshlrev_b32 v{A_TW}, 3, v0')
    a('s_mul_i32 s32, s22, 1792')
    a(f's_add_u32 s32, s32, {L_MS}')
    a(f'v_add_u32 v{A_TW}, s32, v{A_TW}')
    for r in range(4): a(f'v_mov_b32 v{NEG+r}, -1')
    a('v_mov_b32 v115, s20')
    a('v_min_u32 v7, 7, v0')
    a('v_lshlrev_b32 v7, 2, v7')
    a('s_cmp_ge_u32 s22, 2')
    a(f's_cbranch_scc1 {name}_npv')
    a(f's_and_b32 s30, s41, {NREP-1}')
    a('s_lshl_b32 s30, s30, 8')
    a(f's_add_u32 s30, s30, {R_FP}')
    a(f'v_min_u32 v{A_FL}, 15, v0')
    a(f'v_lshlrev_b32 v{A_FL}, 2, v{A_FL}')
    a(f'v_add_u32 v{A_FL}, s30, v{A_FL}')
    a.label(f'{name}_npv')
    a('s_lshl_b32 s30, s41, 2')
    a(f's_add_u32 s30, s30, {R_FM}')
    a(f'v_lshlrev_b32 v{A_FST}, 8, v0')
    a(f'v_add_u32 v{A_FST}, s30, v{A_FST}')
    sbase(52, WS_M2 - R_M - 28*4096)
    sbase(58, WS_MEM2)
    sbase(10, WS_RING + 4*RS)
    a('s_lshl_b32 s32, s33, 10')
    a(f's_add_u32 s32, s32, {WS_XK + 32768}')
    sbase(54, 's32')
    a('s_min_u32 s30, s25, 13')
    a('s_lshl_b32 s31, s30, 5')
    a(f's_add_u32 s31, s31, {WS_FLG + F_U}')
    sbase(12, 's31')
    a('s_mov_b32 s37, s31')
    a('s_lshl_b32 s32, s33, 2')
    a(f's_add_u32 s32, s32, {WS_FLG + F_M - 256}')
    sbase(14, 's32')
    a('s_lshl_b32 s30, s30, 15')
    a('s_lshl_b32 s31, s22, 13')
    a('s_add_u32 s30, s30, s31')
    a(f's_add_u32 s30, s30, {WS_U}')
    a(f's_add_u32 s32, s31, {WS_RING}')
    a('s_cmp_ge_u32 s25, 14')
    a('s_cselect_b32 s30, s32, s30')
    a(f's_cselect_b32 s39, 0, {28*16384}')
    sbase(56, 's30')
    a(f's_add_u32 s35, s31, {L_U}')
    def dma_u(i):
        return [f's_add_u32 m0, s35, {4096*(i//4)}', f'global_load_lds_dwordx4 {"v1" if i < 4 else "v3"}, s[56:57] offset:{1024*(i%4)} sc1']
    if merged:
        a('s_waitcnt vmcnt(0)')
        a('v_lshrrev_b32 v20, 4, v1')
        lpp = a.newlabel('pp')
        a(f's_cmp_lg_u32 {role}, 31')
        a(f's_cbranch_scc1 {lpp}')
        a('s_cmp_lg_u32 s22, 0')
        a(f's_cbranch_scc1 {lpp}')
        a('v_lshlrev_b32 v116, 4, v1')
        a(f'v_add_u32 v116, {WS_FLG + F_PROG}, v116')
        a('v_add_u32 v115, 1, v115')
        a('s_mov_b64 exec, 0xffff')
        a('global_store_dword v116, v115, s[4:5] sc1')
        a('s_mov_b64 exec, -1')
        a.label(lpp)
        with WgWait(a):
            wait_flags(a, name, 's37', 8, lane='v20', va=16, sleep=4)
            a('s_add_u32 s37, s37, 448')
            wait_flags(a, name, 's37', 8, lane='v20', va=16, sleep=4)
    for i in range(8):
        for o in dma_u(i): a(o)
    sadd64(a, 56, 's39'); sadd64(a, 12, 896)
    a('s_xor_b32 s35, s35, 0x8000')
    a.label(f'{name}_go')
    for r in range(28): a(f'v_mov_b32 v{ACC+r}, 0')
    a('s_waitcnt vmcnt(0) lgkmcnt(0)')
    if STAMPS:
        a('s_mov_b32 s74, s24'); a('s_memrealtime s[88:89]'); a('s_waitcnt lgkmcnt(0)')
    a('s_lshl_b32 s30, s26, 2')
    a('s_add_u32 s30, s30, s22')
    if merged:
        a('s_cmp_lt_u32 s21, 32')
        a('s_cselect_b32 s31, 8, 0')
        a('s_add_u32 s30, s30, s31')
    for k in range(16 if merged else 8):
        a(f's_cmp_eq_u32 s30, {k}')
        a(f's_cbranch_scc1 {name}_{"fs"[k//8]}{"sv"[(k//4)%2]}{k%4}_entry')

    def gaddr(off):
        if off < 4096: return 'v1', off
        if off < 8192: return 'v3', off - 4096
        return 'v4', off - 8192

    def gen_wave(kind, w, st):
        tag = f'{name}_{"s" if st else "f"}{kind}{w}'
        own = [2*w, 2*w+1, 2*w+2] if w < 3 else [6, 0, 1]
        wr = own[:2] if w < 3 else own[:1]
        others = [t for t in range(7) if t not in own]
        pvw = kind == 'v' and w < 2
        poller = (w == 1) if kind == 's' else (w == 2)
        SLOW = []
        L = Cnt(); V = Cnt()
        def emit(op):
            if isinstance(op, str): a(op); return
            text, k, tg = op
            if k == 'wl': a(f's_waitcnt lgkmcnt({L.need(text)})'); return
            if k == 'wv': a(f's_waitcnt vmcnt({V.need(text)})'); return
            a(text)
            (L if k == 'l' else V).issue(tg)
        def smf(j, t):
            a(f'v_smfmac_f32_16x16x64_bf16 {vr(ACC+4*j,4)}, {vr(MA+4*t,4)}, {W(j,t)}, v{IDX}')
        def rest_adv():
            a(f's_add_u32 s30, s38, {WS_RING}')
            a('s_add_u32 s50, s4, s30')
            a('s_addc_u32 s51, s5, 0')
            a(f's_add_u32 s38, s38, {RS}')
            a(f's_cmp_eq_u32 s38, {4*RS}')
            a('s_cselect_b32 s38, 0, s38')
            if kind == 'v':
                if w >= 2:
                    sadd64(a, 54, 32768); sadd64(a, 58, 7168)
                    if merged: sadd64(a, 12, 448)
                else:
                    a(f'v_xor_b32 v{A_UR}, 0x8000, v{A_UR}')
            else:
                sadd64(a, 8, 28*16384)
            for r in range(28): a(f'v_mov_b32 v{ACC+r}, 0')
        def mem_loads(em=True):
            for n, t in enumerate(own):
                va, im = gaddr(1024*t)
                tx = f'global_load_dwordx4 {vr(MA+4*t,4)}, {va}, s[44:45] offset:{im} sc1'
                if em: emit((tx, 'v', f'm{t}'))
                else: a(tx)
                if n < 2 and em and ENV('MSP', 1): a(f's_nop {ENV("MSPN", 3)}')
        def kreg(k, kt):
            if k == 1: return MA + 4*own[kt]
            if k == 3: return [TBZ+2, CV+2][kt]
            return {0: K0, 2: K2}[k] + 4*kt
        def xk_all():
            if ENV('NOXK', 0): return
            for k in (0, 1, 2, 3):
                for kt in range(2):
                    va = "v1" if kt == 0 else "v3"
                    if k == 1:
                        a(f's_mov_b32 m0, {L_K1 + 2048*w + 1024*kt - 1024}')
                        a(f'global_load_lds_dwordx4 {va}, s[54:55] offset:1024')
                    else:
                        n = 2 if k == 3 else 4
                        a(f'global_load_dwordx{n} {vr(kreg(k,kt),n)}, {va}, s[54:55] offset:{1024*k}')
            sadd64(a, 54, 32768)
        cps = {2: [0, 1, 2, 3], 3: [4, 5, 6]}.get(w, []) if kind == 'v' else []
        CPB, CP2 = 64, 80
        def stage_reads():
            for n, i in enumerate(cps):
                a(f'ds_read_b128 {vr(CPB+4*n,4)}, v1 offset:{L_MS + 1024*i}')
                a(f'ds_read_b128 {vr(CP2+4*n,4)}, v1 offset:{L_MEM + 1024*i}')
            a('s_waitcnt lgkmcnt(0)')
        def mem2_copy():
            l2 = a.newlabel('nm2')
            a('s_cmp_lg_u32 s25, 15')
            a(f's_cbranch_scc1 {l2}')
            for n, t in enumerate(cps):
                va, im = gaddr(1024*t)
                a(f'global_store_dwordx4 {va}, {vr(MA+4*t,4)}, s[58:59] offset:{im} sc1')
            a.label(l2)
        a.label(f'{tag}_loop')
        if poller: flag_poll(a, tag, FR=(96, 97, 98))
        a('s_barrier')
        if not pvw: cstamp(a, 5, 31)
        a.label(f'{tag}_mem')
        mem_loads()
        if kind == 'v':
            a('s_barrier')
            if pvw:
                lk = a.newlabel('w0s')
                a('s_cmp_eq_u32 s36, 0')
                a(f's_cbranch_scc1 {lk}')
                rest_adv()
                a.label(lk)
            if merged and w == 3:
                pass
            NU0 = ENV('NU0', 4)
            uq = [] if ENV('NOU', 0) else [dma_u(i) for i in range(8)]
            for _ in range(NU0):
                if uq:
                    m_, d_ = uq.pop(0); a(m_); emit((d_, 'v', 'u'))
        a.label(f'{tag}_got')
        chk = max_ops([MA+4*t+r for t in own for r in range(4)], TMP)
        fill0 = {0: [(f'm{own[1]}', 'wv', None)] + ([(f'ds_write_b128 v1, {vr(MA+4*wr[1],4)} offset:{L_MEM + 1024*wr[1]}', 'l', 'w1')] if len(wr) > 1 else []),
                 1: [chk[0]], 2: [chk[1]], 3: [chk[2]], 4: [(f'm{own[2]}', 'wv', None), chk[3]], 5: [chk[4]], 6: [chk[5]]}
        emit((f'm{own[0]}', 'wv', None))
        cstamp(a, 0)
        if not pvw: cstamp(a, 6, 31)
        emit((f'ds_write_b128 v1, {vr(MA+4*wr[0],4)} offset:{L_MEM + 1024*wr[0]}', 'l', 'w0'))
        for j in range(7):
            smf(j, own[0])
            for o in fill0[j]: emit(o)
        a(f'v_cmp_eq_u32 vcc, -1, v{TMP}')
        smf(0, own[1])
        a(f's_cbranch_vccnz {tag}_redo')
        a.label(f'{tag}_cont')
        pre = []
        if kind == 'v':
            pre += uq
            if pvw:
                pre.append([f'global_store_dword v{A_MEMST}, v{NEG}, s[10:11] {st}', f's_mov_b64 exec, {RMASK}', f'global_store_dword v{A_FST}, v{NEG}, s[10:11] {st}', 's_mov_b64 exec, -1'])
        for j in range(1, 7):
            smf(j, own[1])
            if pre:
                for o in pre.pop(0): a(o)
        a('s_waitcnt lgkmcnt(0)'); L.reset()
        a('s_barrier')
        if not pvw: cstamp(a, 1)
        for t in others: emit((f'ds_read_b128 {vr(MA+4*t,4)}, v1 offset:{L_MEM + 1024*t}', 'l', f'r{t}'))
        F = {}
        def add(sl, ops): F[sl] = F.get(sl, []) + list(ops)
        if kind == 's':
            def cvt_write(j):
                return [f'v_cvt_pk_bf16_f32 v{CV}, v{ACC+4*j}, v{ACC+4*j+1}',
                        f'v_cvt_pk_bf16_f32 v{CV+1}, v{ACC+4*j+2}, v{ACC+4*j+3}',
                        (f'ds_write_b64 v{A_TW}, {vr(CV,2)} offset:{512*j}', 'l', f'cw{j}')]
            def tbr(k): return TB + 4*(k % 2) if k < 3 else TBZ
            def s_reads(k):
                o = [(f'ds_read_b64_tr_b16 {vr(tbr(k),2)}, v{A_TR} offset:{1024*k}', 'l', f'sr{k}')]
                if k < 3: o.append((f'ds_read_b64_tr_b16 {vr(tbr(k)+2,2)}, v{A_TR} offset:{1024*k+512}', 'l', f'sr{k}'))
                return o
            def kmr(k): return KM0 if k % 2 == 0 else KM1
            def km_read(k):
                if k == 3: return (f'ds_read_b64 {vr(kmr(k),2)}, v{A_MK} offset:{512*k}', 'l', f'km{k}')
                return (f'ds_read2_b64 {vr(kmr(k),4)}, v{A_MK} offset0:{64*k} offset1:{64*k+32}', 'l', f'km{k}')
            def s_mfma(k, fill=()):
                fill = list(fill)
                deps = [f'sr{k}', f'km{k}'] + (['k1'] if k == 1 else [])
                a(f's_waitcnt lgkmcnt({min(L.need(d) for d in deps)})')
                for kt in range(3):
                    acc = vr(SACC+4*kt, 4)
                    src = kreg(k, kt) if kt < 2 else kmr(k)
                    if k == 3: a(f'v_mfma_f32_16x16x16_bf16 {acc}, {vr(src,2)}, {vr(tbr(k),2)}, {acc}')
                    else: a(f'v_mfma_f32_16x16x32_bf16 {acc}, {vr(src,4)}, {vr(tbr(k),4)}, {acc if k else 0}')
                    if fill:
                        for o in fill.pop(0): emit(o)
            f2 = [[km_read(0)], [km_read(1)],
                  [(f'ds_read_b128 {vr(kreg(1,0),4)}, v1 offset:{L_K1 + 2048*w}', 'l', 'k1')],
                  [(f'ds_read_b128 {vr(kreg(1,1),4)}, v1 offset:{L_K1 + 2048*w + 1024}', 'l', 'k1')]]
            if not ENV('NOTOUCH', 1):
                nl = ENV('NTL', 28)
                f2.insert(0, [f'v_lshlrev_b32 v{CV}, 3, v1', (f's_mov_b64 exec, {(1 << nl) - 1}' if nl < 32 else f's_mov_b32 exec_hi, {(1 << (nl - 32)) - 1}'),
                          f'global_load_dword v{2 if w != 1 else 0}, v{CV}, s[8:9] sc1', 's_mov_b64 exec, -1'])
            for j in range(7):
                smf(j, own[2])
                if f2:
                    for o in f2.pop(0): emit(o)
            for j in range(1, 7):
                cw = cvt_write(j-1)
                if j == 1 and not ENV('NOTOUCH', 1):
                    pass
                add((j, 1), [cw[0]]); add((j, 2), [cw[1]]); add((j, 3), [cw[2]])
            add((3,0), s_reads(0)); add((5,0), s_reads(1))
            for j in range(7):
                for n, t in enumerate(others):
                    if j == 0: emit((f'r{t}', 'wl', None))
                    smf(j, t)
                    for o in F.get((j, n), []): emit(o)
                if j == 4: s_mfma(0, [[km_read(2)]])
            cstamp(a, 2)
            cw6 = cvt_write(6)
            s_mfma(1, [s_reads(2), [cw6[0]], [cw6[1], cw6[2]] + s_reads(3) + [km_read(3)]])
            s_mfma(2)
            s_mfma(3)
            for kt in range(3):
                a(f'ds_write_b128 v{A_SW}, {vr(SACC+4*kt,4)} offset:{64*kt}')
            a('s_waitcnt lgkmcnt(0)'); L.reset()
            a('s_barrier')
            cstamp(a, 3)
            SR = 8
            for i in range(8):
                emit((f'ds_read_b64 {vr(SR+2*i,2)}, v{A_SR} offset:{3328*(i//2) + 1664*(i%2)}', 'l', f's{i}'))
            a('s_mov_b32 s30, 0x42800000')
            def pflag():
                if w == 0:
                    a(f's_mov_b64 exec, {RMASK}')
                    a(f'global_store_dword v{A_FST}, v{IDX}, s[46:47] {st}')
                    a('s_mov_b64 exec, -1')
            PF = ENV('PFLAG', 2)
            if PF == -1: pflag()
            def pk(d, x, y): a(f'v_pk_add_f32 {vr(SR+d,2)}, {vr(SR+x,2)}, {vr(SR+y,2)}')
            emit(('s1', 'wl', None)); pk(0, 0, 2)
            emit(('s3', 'wl', None)); pk(4, 4, 6)
            if PF == -3: pflag()
            emit(('s5', 'wl', None)); pk(8, 8, 10); pk(0, 0, 4)
            emit(('s7', 'wl', None)); pk(12, 12, 14); pk(0, 0, 8); pk(0, 0, 12)
            if PF == -2: pflag()
            m, t = SR+4, SR+5
            a(f'v_max_f32 v{m}, |v{SR}|, |v{SR+1}|')
            a(f'v_exp_f32 v{SR+2}, v{SR}')
            a(f'v_cmp_nge_f32 vcc, s30, v{m}')
            a(f'v_exp_f32 v{SR+3}, v{SR+1}')
            a('s_and_b64 vcc, vcc, s[42:43]')
            a(f's_cbranch_vccnz {tag}_smax')
            a.label(f'{tag}_smax_ret')
            a(f'v_add_f32 v{m}, v{SR+2}, v{SR+3}')
            a(f'v_cndmask_b32 v{m}, 0, v{m}, s[42:43]')
            if PF == 0: pflag()
            def slow_max():
                a.label(f'{tag}_smax')
                a(f'v_mov_b32 v{SR+16}, 0xff800000')
                a(f'v_max_f32 v{m}, v{SR}, v{SR+1}')
                a(f'v_cndmask_b32 v{m}, v{SR+16}, v{m}, s[42:43]')
                for ror in (8, 4, 2, 1):
                    a(f'v_max_f32_dpp v{m}, v{m}, v{m} row_ror:{ror} row_mask:0xf bank_mask:0xf')
                a(f'v_mov_b32 v{t}, v{m}')
                a(f'v_permlane16_swap_b32 v{m}, v{t}')
                a(f'v_max_f32 v{m}, v{m}, v{t}')
                a(f'v_sub_f32 v{SR+2}, v{SR}, v{m}')
                a(f'v_sub_f32 v{SR+3}, v{SR+1}, v{m}')
                a(f'v_exp_f32 v{SR+2}, v{SR+2}')
                a(f'v_exp_f32 v{SR+3}, v{SR+3}')
                a(f's_branch {tag}_smax_ret')
            SLOW.append(slow_max)
            for ror in (8, 4, 2, 1):
                a(f'v_add_f32_dpp v{m}, v{m}, v{m} row_ror:{ror} row_mask:0xf bank_mask:0xf')
                if PF == 1 and ror == 4: pflag()
            a(f'v_mov_b32 v{t}, v{m}')
            if PF == 2: pflag()
            a(f'v_permlane16_swap_b32 v{m}, v{t}')
            a(f'v_add_f32 v{m}, v{m}, v{t}')
            a(f'v_rcp_f32 v{m}, v{m}')
            a(f'v_mul_f32 v{SR}, v{SR+2}, v{m}')
            a(f'v_mul_f32 v{SR+1}, v{SR+3}, v{m}')
            a(f'v_cvt_pk_bf16_f32 v{SR}, v{SR}, v{SR+1}')
            a('s_mov_b64 exec, s[42:43]')
            a(f'global_store_dword v{A_PST}, v{SR}, s[46:47] {st}')
            a('s_mov_b64 exec, -1')
            cstamp(a, 4)
            xk_all()
            a(f'v_mov_b32 v{CV}, -1')
            a(f'global_store_dword v{A_PST}, v{CV}, s[48:49] {st}')
            if w == 0:
                a(f's_mov_b64 exec, {RMASK}')
                a(f'global_store_dword v{A_FST}, v{CV}, s[48:49] {st}')
                a('s_mov_b64 exec, -1')
        else:
            early = list(pre)
            if w >= 2:
                if not ENV('NOXK', 0): early.append([f'global_load_dwordx4 {vr(108,4)}, v1, s[54:55]'])
                if merged and w == 3: early.append(['global_load_dword v116, v7, s[12:13] sc1'])
            for j in range(7):
                smf(j, own[2])
                if early:
                    ops = early.pop(0)
                    if ops == ['MEM2']: mem2_copy()
                    else:
                        for o in ops: a(o)
            assert not early
            sadd64(a, 56, 's39')
            a('s_xor_b32 s35, s35, 0x8000')
            pend = []
            MC = 96
            def m_store(j, single=False):
                X = ACC + 4*j; Y = ACC + 4*(j+1) if not single else ACC
                ops = []
                if single:
                    for r in range(4): ops.append(f'v_mov_b32 v{Y+r}, v{X+r}')
                for r in range(4): ops.append(f'v_permlane32_swap_b32 v{X+r}, v{Y+r}')
                for r in range(4): ops.append(f'v_add_f32 v{X+r}, v{X+r}, v{Y+r}')
                c = MC + 2*((j//2) % 2)
                ops.append(f'v_cvt_pk_bf16_f32 v{c}, v{X}, v{X+1}')
                ops.append(f'v_cvt_pk_bf16_f32 v{c+1}, v{X+2}, v{X+3}')
                ops.append(f'v_add_u32 v{TMP}, {4096*j}, v{A_MST}')
                if single: ops.append('s_mov_b32 exec_hi, 0')
                ops.append(f'global_store_dwordx2 v{TMP}, {vr(c,2)}, s[46:47] {st}')
                if single: ops.append('s_mov_b32 exec_hi, -1')
                return ops
            for j in range(7):
                for n, t in enumerate(others):
                    if j == 0: emit((f'r{t}', 'wl', None))
                    smf(j, t)
                    if n == 1 and j in (2, 4, 6): pend += m_store(j-2)
                    for _ in range(2 if j < 6 else 4):
                        if pend: a(pend.pop(0))
            for o in pend: a(o)
            for o in m_store(6, True): a(o)
            cstamp(a, 2)
            if w >= 2:
                mem2_copy()
                for i in cps:
                    a(f'v_add_u32 v{TMP}, {16384*i}, v6')
                    a(f'global_store_dwordx4 v{TMP}, {vr(NEG,4)}, s[48:49] {st}')
            a('s_cmp_ge_u32 s36, 63')
            a(f's_cbranch_scc1 {tag}_fin')
            if merged and w == 3:
                a('s_waitcnt vmcnt(0)')
                a('v_cmp_ne_u32 vcc, v115, v116')
                a(f's_cbranch_vccnz {tag}_uwait')
                a.label(f'{tag}_uok')
        if pvw:
            skip = f'{tag}_nopv'
            if merged and w == 0:
                a('s_cmp_lg_u32 s33, 30')
                a(f's_cbranch_scc1 {tag}_npp')
                a('v_add_u32 v115, 1, v115')
                a('s_mov_b64 exec, 0xffff')
                a('global_store_dword v116, v115, s[4:5] sc1')
                a('s_mov_b64 exec, -1')
                a.label(f'{tag}_npp')
            a('s_cmp_ge_u32 s33, 28')
            a(f's_cbranch_scc1 {skip}')
            def ubreads():
                for t in range(4):
                    for u in range(2):
                        a(f'ds_read_b128 {vr(UB+8*t+4*u,4)}, v{A_UR} offset:{2048*t+1024*u}')
            ubreads()
            PFR = (108, 109, 110)
            def mloads():
                for i in range(4): a(f'global_load_dwordx4 {vr(MB+4*i,4)}, v{A_ML}, s[46:47] offset:{1024*i} sc1')
            for _ in range(ENV('MDLY', 6)): a('s_nop 15')
            mloads()
            flag_poll(a, tag, FR=PFR)
            cstamp(a, 1)
            a.label(f'{tag}_pld')
            for t in range(10):
                va, im = gaddr(1024*t)
                a(f'global_load_dwordx4 {vr(PA+4*t,4)}, {va}, s[46:47] offset:{im} sc1')
            for r in range(4): a(f'v_mov_b32 v{PACC+r}, 0')
            acc = vr(PACC, 4)
            a('s_mov_b64 s[10:11], s[46:47]')
            a.label(f'{tag}_mchk')
            for o in max_ops(range(MB, MB+16), TMP): a(o)
            a(f'v_cmp_eq_u32 vcc, -1, v{TMP}')
            a(f's_cbranch_vccnz {tag}_pre')
            a('s_waitcnt lgkmcnt(0)')
            a.label(f'{tag}_pgo')
            MF = ENV('MFLAG', 3)
            for t in range(10):
                a(f's_waitcnt vmcnt({(9 - t) + (1 if t > MF else 0)})' + (f' lgkmcnt({2*(7-t)})' if 4 <= t < 8 else ''))
                if t == 0: cstamp(a, 5)
                b = vr(MB+8*(t-8), 8) if t >= 8 else vr(UB+8*(t % 4), 8)
                a(f'v_smfmac_f32_16x16x64_bf16 {acc}, {vr(PA+4*t,4)}, {b}, v{IDX}')
                if t == MF:
                    a(f's_mov_b64 exec, {RMASK}')
                    a(f'global_store_dword v{A_FST}, v{IDX}, s[50:51] {st}')
                    a('s_mov_b64 exec, -1')
                if t < 4:
                    for u in range(2):
                        a(f'ds_read_b128 {vr(UB+8*t+4*u,4)}, v{A_UR} offset:{2048*(t+4)+1024*u}')
            a(f'v_permlane32_swap_b32 v{PACC}, v{PACC+1}')
            a(f'v_permlane32_swap_b32 v{PACC+2}, v{PACC+3}')
            a(f'v_add_f32 v{PACC}, v{PACC}, v{PACC+1}')
            a(f'v_add_f32 v{PACC+2}, v{PACC+2}, v{PACC+3}')
            a(f'v_cmp_u_f32 vcc, v{PACC}, v{PACC+2}')
            a(f'v_cvt_pk_bf16_f32 v{PACC}, v{PACC}, v{PACC+2}')
            a(f's_cbranch_vccnz {tag}_pnan')
            a.label(f'{tag}_pfin')
            a(f'v_mov_b32_dpp v{PACC+1}, v{PACC} quad_perm:[1,0,3,2] row_mask:0xf bank_mask:0xf')
            a(f'v_perm_b32 v{PACC}, v{PACC}, v{PACC+1}, v{A_PERM}')
            a(f'global_store_dword v{A_MEMST}, v{PACC}, s[50:51] {st}')
            cstamp(a, 6)
            a.label(skip)
        a('s_mov_b64 s[48:49], s[46:47]')
        a('s_mov_b64 s[46:47], s[50:51]')
        a(f's_add_u32 s44, s46, {R_MEM}')
        a('s_addc_u32 s45, s47, 0')
        a('s_add_u32 s36, s36, 1')
        if not pvw: rest_adv()
        if kind == 's':
            a('s_cmp_lt_u32 s36, 63')
            a(f's_cbranch_scc1 {tag}_loop')
            a(f's_branch {name}_done')
        else:
            a(f's_branch {tag}_loop')
            a.label(f'{tag}_fin')
            a(f's_branch {name}_done')
        a.label(f'{tag}_entry')
        if kind == 's': xk_all()
        a(f's_branch {tag}_mem')
        for f in SLOW: f()
        if merged and kind == 'v' and w == 3:
            a.label(f'{tag}_uwait')
            a('s_cmp_ge_u32 s36, 61')
            a(f's_cbranch_scc1 {tag}_uok')
            a('global_load_dword v116, v7, s[12:13] sc1')
            a('s_waitcnt vmcnt(0)')
            a('v_cmp_ne_u32 vcc, v115, v116')
            a(f's_cbranch_vccz {tag}_uok')
            a('s_sleep 4')
            a('s_sub_u32 s40, s40, 1')
            a(f's_cbranch_scc0 {tag}_uwait')
            a('s_mov_b32 s40, 0')
            a(f's_branch {tag}_uok')
        a.label(f'{tag}_redo')
        a('s_nop 7')
        if STAMPS: a('s_add_u32 s76, s76, 1')
        a('s_sub_u32 s40, s40, 1')
        a(f's_cbranch_scc1 {tag}_giveup')
        a('s_waitcnt lgkmcnt(0)')
        mem_loads(False)
        a('s_nop 7')
        for r in range(28): a(f'v_mov_b32 v{ACC+r}, 0')
        a('s_waitcnt vmcnt(0)')
        a(f's_branch {tag}_got')
        a.label(f'{tag}_giveup')
        a('s_mov_b32 s40, 0')
        a(f's_branch {tag}_cont')
        if pvw:
            a.label(f'{tag}_pre')
            if STAMPS: a('s_add_u32 s86, s86, 1')
            mloads()
            a('s_waitcnt vmcnt(0) lgkmcnt(0)')
            a('s_sub_u32 s40, s40, 1')
            a(f's_cbranch_scc0 {tag}_mchk')
            a('s_mov_b32 s40, 0')
            a(f's_branch {tag}_pgo')
            a.label(f'{tag}_pnan')
            for o in max_ops(range(PA, PA+40), TMP): a(o)
            a(f'v_cmp_eq_u32 vcc, -1, v{TMP}')
            a(f's_cbranch_vccz {tag}_pfin')
            if STAMPS: a('s_add_u32 s77, s77, 1')
            a('s_sub_u32 s40, s40, 1')
            a(f's_cbranch_scc1 {tag}_pgive')
            ubreads()
            a(f's_branch {tag}_pld')
            a.label(f'{tag}_pgive')
            a('s_mov_b32 s40, 0')
            a(f's_branch {tag}_pfin')
    for st in (('', 'sc1') if merged else ('',)):
        for kind in 'sv':
            for w in range(4): gen_wave(kind, w, st)
    a.label(f'{name}_done')

def gen_k3(a, name='chain_kernel'):
    a(f'.globl {name}\n.p2align 8\n.type {name},@function\n{name}:')
    a('s_cmp_ge_u32 s2, 256')
    a(f's_cbranch_scc1 {name}_end')
    a(f's_load_dwordx2 s[4:5], s[0:1], {KA_WS}')
    a(f's_load_dwordx2 s[6:7], s[0:1], {KA_DBG}')
    stamp_init(a)
    if STAMPS:
        a('s_mov_b32 s76, 0'); a('s_mov_b32 s77, 0'); a('s_mov_b32 s86, 0'); a('s_memrealtime s[78:79]'); a('s_memtime s[82:83]')
    a('s_getreg_b32 s23, hwreg(HW_REG_XCC_ID)')
    a('s_and_b32 s23, s23, 15')
    a('v_lshrrev_b32 v2, 6, v0')
    a('v_readfirstlane_b32 s22, v2')
    a('s_waitcnt lgkmcnt(0)')
    a('s_cmp_lg_u32 s23, 0')
    a(f's_cbranch_scc1 {name}_end')
    a('s_cmp_lg_u32 s22, 0')
    a(f's_cbranch_scc1 {name}_wait')
    a('v_mov_b32 v1, 0')
    a('v_mov_b32 v2, 1')
    a('s_mov_b64 exec, 1')
    a('global_atomic_add v3, v1, v2, s[6:7] sc0')
    a('s_waitcnt vmcnt(0)')
    a(f'v_mov_b32 v1, {L_MISC}')
    a('ds_write_b32 v1, v3')
    a('s_waitcnt lgkmcnt(0)')
    a('s_mov_b64 exec, -1')
    a.label(f'{name}_wait')
    a('s_barrier')
    a(f'v_mov_b32 v1, {L_MISC}')
    a('ds_read_b32 v3, v1')
    a('s_waitcnt lgkmcnt(0)')
    a('v_readfirstlane_b32 s24, v3')
    a('s_cmp_ge_u32 s24, 32')
    a(f's_cbranch_scc1 {name}_end')
    gen_chain(a, name)
    if STAMPS:
        a('s_memrealtime s[80:81]')
        a('s_memtime s[84:85]')
        a('s_waitcnt lgkmcnt(0) vmcnt(0)')
        a('s_mov_b64 exec, 1')
        a('s_lshl_b32 s3, s2, 2')
        a('s_add_u32 s3, s3, s22')
        a('s_lshl_b32 s3, s3, 4')
        a(f's_add_u32 s3, s3, {WS_STAMP + 3*0x20000}')
        a('s_sub_u32 s84, s84, s82')
        a('s_lshl_b32 s86, s86, 4')
        a('s_lshl_b32 s77, s77, 0')
        a('s_lshl_b32 s77, s77, 16')
        a('s_or_b32 s76, s76, s77')
        a('v_mov_b32 v0, s3')
        a('v_mov_b32 v4, s76'); a('v_mov_b32 v5, s86' if ENV('RT', 0) else 'v_mov_b32 v5, s84'); a('v_mov_b32 v6, s78'); a('v_mov_b32 v7, s80')
        a('global_store_dwordx4 v0, v[4:7], s[4:5]')
        a('s_nop 1')
    stamp_end(a, 2, n=9)
    a.label(f'{name}_end')
    a('s_endpgm')
    return dict(name=name, vgpr=256, agpr=256, sgpr=96, grid=256, block=256, lds=LDS_BYTES)
```

```python
from asmlib import *
from layout import *
from k1 import stamp, stamp_end, stamp_init
from k3 import W, sadd64, max_ops

def gen_hs(a, name, head, first, nseg, stride, merged=False):
    st_ld = ''; st_st = 'sc1' if merged else ''
    ws = 's[4:5]'
    ACC, XB, TBB, KA, SACC = 8, 64, 80, 8, 40
    a('v_and_b32 v0, 63, v0')
    a('v_lshlrev_b32 v1, 4, v0')
    a(f's_mul_i32 s27, {head}, 28')
    a('s_mul_i32 s28, s22, 7')
    a('s_add_u32 s27, s27, s28')
    a(f's_mul_i32 s27, s27, {TILE_B}')
    a(f's_add_u32 s27, s27, {WS_AIMG}')
    a('v_add_u32 v2, s27, v1')
    for g in range(49):
        for u in range(2):
            dst = ar(8*g+4*u, 4) if g < 32 else vr(120 + 8*(g-32) + 4*u, 4)
            a(f'global_load_dwordx4 {dst}, v2, {ws} offset:{2048*(g%2) + 1024*u} {st_ld}')
        if g % 2 == 1: a('v_add_u32 v2, 4096, v2')
    a('v_and_b32 v112, 15, v0')
    a('v_lshrrev_b32 v113, 4, v0')
    a('v_add_u32 v3, 4096, v1')
    a('v_lshrrev_b32 v4, 1, v113')
    a('v_lshlrev_b32 v4, 7, v4')
    a('v_and_b32 v5, 1, v113')
    a('v_lshl_add_u32 v4, v5, 3, v4')
    a('v_and_b32 v5, 7, v0')
    a('v_lshl_add_u32 v4, v5, 4, v4')
    a('s_mul_i32 s28, s22, 1792')
    a('v_add_u32 v4, s28, v4')
    a('v_mul_u32_u24 v5, 208, v112')
    a('v_lshl_add_u32 v5, v113, 4, v5')
    a('s_and_b32 s29, s22, 1')
    a('s_mul_i32 s29, s29, 3328')
    a('v_add_u32 v6, s29, v5')
    a('s_mul_i32 s28, s22, 6656')
    a('v_add_u32 v5, s28, v5')
    a('v_lshlrev_b32 v7, 3, v0')
    a('s_and_b32 s29, s22, 1')
    a('s_lshl_b32 s28, s29, 9')
    a('v_add_u32 v7, s28, v7')
    a('s_lshl_b32 s28, s29, 8')
    a('v_lshlrev_b32 v114, 3, v0')
    a('v_add_u32 v114, s28, v114')
    a('v_add_u32 v114, 2048, v114')
    a('s_lshl_b32 s28, s29, 4')
    a('v_add_u32 v115, s28, v112')
    a('v_lshlrev_b32 v116, 2, v113')
    a('v_sub_u32 v115, v115, v116')
    def sb(lo, mul, off, extra=None):
        a(f's_mul_i32 s28, {first}, {mul}')
        a(f's_add_u32 s28, s28, {off}')
        if extra: a(f's_add_u32 s28, s28, {extra}')
        a(f's_add_u32 s{lo}, s4, s28')
        a(f's_addc_u32 s{lo+1}, s5, 0')
    sb(44, 28672, WS_XP)
    a('s_lshl_b32 s30, s22, 13')
    sb(46, 32768, WS_XK, 's30')
    sb(48, 7168, WS_MEM2)
    a(f's_mul_i32 s30, {head}, 2560')
    sb(50, 16*2560, WS_PX, 's30')
    a('s_mov_b32 s36, 0')
    a('s_mov_b32 s40, 1000000')
    a(f's_mov_b32 s37, {first}')
    a('s_waitcnt vmcnt(0)')
    a.label(f'{name}_hsloop')
    def xld(blk, tt):
        j = tt*14 + blk
        return f'global_load_dwordx4 {vr(XB + 8*(blk%2) + 4*tt, 4)}, v{[1,3][(j//4)%2]}, s[52:53] offset:{1024*(j%4)} {st_ld}', j//8
    for k in range(4):
        a(f's_add_u32 s{52+2*k}, s44, {8192*k}')
        a(f's_addc_u32 s{53+2*k}, s45, 0')
    def xl(blk, tt):
        j = tt*14 + blk
        a(f'global_load_dwordx4 {vr(XB + 8*(blk%2) + 4*tt, 4)}, v{[1,3][(j//4)%2]}, s[{52+2*(j//8)}:{53+2*(j//8)}] offset:{1024*(j%4)} {st_ld}')
    for blk in range(2):
        for tt in range(2): xl(blk, tt)
    for blk in range(14):
        t, u = blk // 2, blk % 2
        for tt in range(2):
            rem = 3 if blk < 12 else (3 - (2*(blk-12) + tt))
            a(f's_waitcnt vmcnt({rem})')
            for j in range(7):
                g = 7*j + t
                wv = ar(8*g+4*u, 4) if g < 32 else vr(120 + 8*(g-32) + 4*u, 4)
                acc = vr(ACC + 8*j + 4*tt, 4)
                a(f'v_mfma_f32_16x16x32_bf16 {acc}, {wv}, {vr(XB + 8*u + 4*tt, 4)}, {acc if blk else 0}')
            if blk + 2 < 14: xl(blk+2, tt)
    for tt in range(2):
        for j in range(7):
            o = TBB + 16*tt + 4*(j//2) + 2*(j%2)
            A_ = ACC + 8*j + 4*tt
            a(f'v_cvt_pk_bf16_f32 v{o}, v{A_}, v{A_+1}')
            a(f'v_cvt_pk_bf16_f32 v{o+1}, v{A_+2}, v{A_+3}')
    for kt in range(2):
        for k in range(4):
            n = 2 if k == 3 else 4
            a(f'global_load_dwordx{n} {vr(KA + 16*kt + 4*k, n)}, v{[1,3][kt]}, s[46:47] offset:{1024*k} {st_ld}')
    a.label(f'{name}_hsmem')
    for k in range(4):
        a(f'global_load_dwordx2 {vr(XB + 4*k, 2)}, v4, s[48:49] offset:{512*k} {st_st}')
        if k < 3: a(f'global_load_dwordx2 {vr(XB + 4*k + 2, 2)}, v4, s[48:49] offset:{512*k+256} {st_st}')
    a('s_waitcnt vmcnt(0)')
    if merged:
        for o in max_ops(range(XB, XB+14), 117): a(o)
        a('v_cmp_eq_u32 vcc, -1, v117')
        a(f's_cbranch_vccz {name}_hsok')
        a('s_sleep 16')
        a('s_sub_u32 s40, s40, 1')
        a(f's_cbranch_scc0 {name}_hsmem')
        a('s_mov_b32 s40, 0')
        a.label(f'{name}_hsok')
    for k in range(4):
        for kt in range(3):
            for tt in range(2):
                acc = vr(SACC + 8*kt + 4*tt, 4)
                src = KA + 16*kt + 4*k if kt < 2 else XB + 4*k
                if k < 3: a(f'v_mfma_f32_16x16x32_bf16 {acc}, {vr(src,4)}, {vr(TBB + 16*tt + 4*k, 4)}, {acc if k else 0}')
                else: a(f'v_mfma_f32_16x16x16_bf16 {acc}, {vr(src,2)}, {vr(TBB + 16*tt + 12, 2)}, {acc}')
    a('s_barrier')
    for kt in range(3):
        for tt in range(2):
            a(f'ds_write_b128 v5, {vr(SACC + 8*kt + 4*tt, 4)} offset:{3328*tt + 64*kt}')
    a('s_waitcnt lgkmcnt(0)')
    a('s_barrier')
    a('s_cmp_ge_u32 s22, 2')
    a(f's_cbranch_scc1 {name}_hsnext')
    R = 64
    for wv in range(4):
        for kt in range(3):
            a(f'ds_read_b128 {vr(R + 12*wv + 4*kt, 4)}, v6 offset:{6656*wv + 64*kt}')
    a('s_waitcnt lgkmcnt(0)')
    for i in range(0, 12, 2):
        a(f'v_pk_add_f32 {vr(R+i,2)}, {vr(R+i,2)}, {vr(R+12+i,2)}')
        a(f'v_pk_add_f32 {vr(R+24+i,2)}, {vr(R+24+i,2)}, {vr(R+36+i,2)}')
        a(f'v_pk_add_f32 {vr(R+i,2)}, {vr(R+i,2)}, {vr(R+24+i,2)}')
    a('v_mov_b32 v8, 0xff800000')
    for u in range(2):
        for r in range(4):
            a(f'v_cmp_le_i32 vcc, {16*u + r}, v115')
            a(f'v_cndmask_b32 v{R+4*u+r}, v8, v{R+4*u+r}, vcc')
    a('v_cmp_gt_u32 vcc, 32, v0')
    for r in range(4): a(f'v_cndmask_b32 v{R+8+r}, v8, v{R+8+r}, vcc')
    a(f'v_max3_f32 v9, v{R}, v{R+1}, v{R+2}')
    for i in range(3, 11, 2): a(f'v_max3_f32 v9, v9, v{R+i}, v{R+i+1}')
    a(f'v_max_f32 v9, v9, v{R+11}')
    for sw in ('v_permlane16_swap_b32', 'v_permlane32_swap_b32'):
        a('v_mov_b32 v10, v9')
        a(f'{sw} v9, v10')
        a('v_max_f32 v9, v9, v10')
    for i in range(12):
        a(f'v_sub_f32 v{R+i}, v{R+i}, v9')
        a(f'v_exp_f32 v{R+i}, v{R+i}')
    a(f'v_add_f32 v9, v{R}, v{R+1}')
    for i in range(2, 12): a(f'v_add_f32 v9, v9, v{R+i}')
    for sw in ('v_permlane16_swap_b32', 'v_permlane32_swap_b32'):
        a('v_mov_b32 v10, v9')
        a(f'{sw} v9, v10')
        a('v_add_f32 v9, v9, v10')
    a('v_rcp_f32 v9, v9')
    for i in range(12): a(f'v_mul_f32 v{R+i}, v{R+i}, v9')
    for i in range(6): a(f'v_cvt_pk_bf16_f32 v{12+i}, v{R+2*i}, v{R+2*i+1}')
    a(f'global_store_dwordx2 v7, v[12:13], s[50:51] {st_st}')
    a(f'global_store_dwordx2 v7, v[14:15], s[50:51] offset:1024 {st_st}')
    a('s_mov_b32 exec_hi, 0')
    a(f'global_store_dwordx2 v114, v[16:17], s[50:51] {st_st}')
    a('s_mov_b32 exec_hi, -1')
    a.label(f'{name}_hsnext')
    sadd64(a, 44, stride*28672); sadd64(a, 46, stride*32768); sadd64(a, 48, stride*7168); sadd64(a, 50, stride*16*2560)
    a(f's_add_u32 s37, s37, {stride}')
    a('s_add_u32 s36, s36, 1')
    a(f's_cmp_lt_u32 s36, {nseg}')
    a(f's_cbranch_scc1 {name}_hsloop')

def gen_k4(a, name='px_kernel'):
    a(f'.globl {name}\n.p2align 8\n.type {name},@function\n{name}:')
    a('s_cmp_ge_u32 s2, 256')
    a(f's_cbranch_scc1 {name}_end')
    a(f's_load_dwordx2 s[4:5], s[0:1], {KA_WS}')
    a('v_lshrrev_b32 v2, 6, v0')
    a('v_readfirstlane_b32 s22, v2')
    a('s_and_b32 s24, s2, 7')
    a('s_lshl_b32 s24, s24, 1')
    a('s_bfe_u32 s25, s2, 0x10003')
    a('s_add_u32 s24, s24, s25')
    a('s_lshr_b32 s25, s2, 4')
    a('s_waitcnt lgkmcnt(0)')
    gen_hs(a, name, 's24', 's25', 4, 16)
    a.label(f'{name}_end')
    a('s_endpgm')
    return dict(name=name, vgpr=256, agpr=256, sgpr=90, grid=256, block=256, lds=26624)
```

```python
from asmlib import *
from layout import *
from k2 import gen_argmax
from prep import wait_flags

def gen_out_item(a, name, seg, cg, st_ld='', merged=False):
    ws = 's[4:5]'
    UA, PB, ACC = 16, 96, 8
    a('s_mov_b32 s43, 0')
    a(f's_lshl_b32 s30, {cg}, 2')
    a('s_add_u32 s30, s30, s22')
    a(f's_mul_i32 s31, {seg}, 28')
    a('s_add_u32 s31, s31, s30')
    a('s_lshl_b32 s32, s31, 14')
    a(f's_add_u32 s32, s32, {WS_U + 4096}')
    a('v_add_u32 v2, s32, v1')
    for i in range(16):
        if i == 8: a('v_add_u32 v2, 8192, v2')
        a(f'global_load_dwordx4 {vr(UA+4*i,4)}, v2, {ws} offset:{1024*(i%8) - 4096} {st_ld}')
    a('s_lshl_b32 s32, s31, 12')
    a(f's_add_u32 s32, s32, {WS_M2}')
    a('v_add_u32 v2, s32, v4')
    for t in range(2):
        for u in range(2):
            for sel in range(2):
                a(f'global_load_dwordx2 {vr(UA+64+8*t+4*u+2*sel,2)}, v2, {ws} offset:{2048*t+1024*u+256*sel} {st_ld}')
    a(f's_mul_i32 s32, {seg}, {16*2560}')
    a(f's_add_u32 s32, s32, {WS_PX}')
    a('s_add_u32 s44, s4, s32')
    a('s_addc_u32 s45, s5, 0')
    a(f's_lshl_b32 s33, {seg}, 5')
    a('s_mul_i32 s32, s33, 896')
    a('s_lshl_b32 s34, s30, 5')
    a('s_add_u32 s32, s32, s34')
    a('v_add_u32 v3, s32, v5')
    a(f'v_add_u32 v7, {16*896}, v3')
    a('global_load_dwordx2 v[132:133], v3, s[8:9]')
    a('global_load_dwordx2 v[134:135], v7, s[8:9]')
    a('s_lshl_b32 s32, s33, 3')
    a(f's_add_u32 s32, s32, {WS_G}')
    a('v_add_u32 v2, s32, v6')
    a(f'global_load_dwordx2 v[136:137], v2, {ws} sc1')
    a(f'global_load_dwordx2 v[138:139], v2, {ws} offset:128 sc1')
    a.label(f'{name}_pl0')
    a.label(f'{name}_pl')
    cur_hi = None
    for k in range(20):
        for sel in range(2):
            for tt in range(2):
                dst = ar(8*k + 4*tt + 2*sel, 2)
                if k < 16:
                    t, u = k // 2, k % 2
                    off = (2*t + sel)*2560 + u*1024 + tt*512; va = 'v128'
                else:
                    t, u = (k-16) // 2, k % 2
                    off = (8*t + 4*u + sel)*2560 + 2048 + tt*256; va = 'v129'
                hi = off // 4096
                if hi != cur_hi:
                    a(f's_add_u32 s46, s44, {hi*4096}')
                    a('s_addc_u32 s47, s45, 0')
                    cur_hi = hi
                a(f'global_load_dwordx2 {dst}, {va}, s[46:47] offset:{off % 4096} {st_ld}')
    a('s_cmp_eq_u32 s43, 1')
    a(f's_cbranch_scc1 {name}_nosw')
    a('s_waitcnt vmcnt(63)')
    a('s_waitcnt vmcnt(60)')
    for k in range(16): a(f'v_swap_b32 v{UA+4*k+1}, v{UA+4*k+2}')
    a('s_mov_b32 s43, 1')
    a.label(f'{name}_nosw')
    for k in range(20):
        a(f's_waitcnt vmcnt({min(4*(19-k), 63)})')
        for tt in range(2):
            acc = vr(ACC + 4*tt, 4)
            a(f'v_mfma_f32_16x16x32_bf16 {acc}, {vr(UA+4*k,4)}, {ar(8*k + 4*tt, 4)}, {acc if k else 0}')
    if merged:
        a('v_add_f32 v140, v8, v12')
        a('v_cmp_u_f32 vcc, v140, v140')
        a(f's_cbranch_vccz {name}_pok')
        a('s_sleep 6')
        a('s_sub_u32 s42, s42, 64')
        a(f's_cbranch_scc0 {name}_pl')
        a('s_mov_b32 s42, 0')
        a.label(f'{name}_pok')
    a('s_sub_u32 s34, s40, s33')
    a('s_cmp_lt_u32 s34, 32')
    a(f's_cbranch_scc1 {name}_ffnrow')
    a.label(f'{name}_ffnret')
    for tt in range(2):
        A_ = ACC + 4*tt; X = 132 + 2*tt; G = 136 + 2*tt
        if tt == 0 or True:
            a(f'v_lshlrev_b32 v16, 16, v{X}')
            a(f'v_and_b32 v17, 0xffff0000, v{X}')
            a(f'v_lshlrev_b32 v18, 16, v{X+1}')
            a(f'v_and_b32 v19, 0xffff0000, v{X+1}')
        a(f'v_cvt_pk_bf16_f32 v20, v{A_}, v{A_+1}')
        a(f'v_cvt_pk_bf16_f32 v21, v{A_+2}, v{A_+3}')
        a('v_lshlrev_b32 v22, 16, v20')
        a('v_and_b32 v23, 0xffff0000, v20')
        a('v_lshlrev_b32 v24, 16, v21')
        a('v_and_b32 v25, 0xffff0000, v21')
        for i in range(4):
            a(f'v_mul_f32 v{22+i}, v{G}, v{22+i}')
            a(f'v_mul_f32 v{16+i}, v{G+1}, v{16+i}')
        a('v_cvt_pk_bf16_f32 v20, v22, v23')
        a('v_cvt_pk_bf16_f32 v21, v24, v25')
        a('v_cvt_pk_bf16_f32 v26, v16, v17')
        a('v_cvt_pk_bf16_f32 v27, v18, v19')
        for i in range(2):
            a(f'v_lshlrev_b32 v22, 16, v{20+i}')
            a(f'v_and_b32 v23, 0xffff0000, v{20+i}')
            a(f'v_lshlrev_b32 v24, 16, v{26+i}')
            a(f'v_and_b32 v25, 0xffff0000, v{26+i}')
            a('v_add_f32 v22, v22, v24')
            a('v_add_f32 v23, v23, v25')
            a(f'v_cvt_pk_bf16_f32 v{28+2*tt+i}, v22, v23')
        a(f'global_store_dwordx2 v{[3,7][tt]}, {vr(28+2*tt,2)}, s[10:11]')
    return

def gen_ffnrow(a, name, st_ld='', merged=False):
    ws = 's[4:5]'
    a.label(f'{name}_ffnrow')
    if merged: wait_flags(a, name, WS_FLG + F_FFN, 28, va=16, budget='s42')
    a('v_lshrrev_b32 v2, 4, v0')
    a('v_lshlrev_b32 v2, 4, v2')
    a('s_lshl_b32 s35, s30, 6')
    a(f's_add_u32 s35, s35, {WS_YP}')
    a('v_add_u32 v2, s35, v2')
    for i in range(4): a(f'v_mov_b32 v{16+i}, 0')
    for blk in range(2):
        for p in range(14):
            if p % 2 == 0 and (p or blk): a('v_add_u32 v2, 3584, v2')
            a(f'global_load_dwordx4 {vr(32+4*p,4)}, v2, {ws} offset:{1792*(p%2)} {st_ld}')
        a('s_waitcnt vmcnt(0)')
        for p in range(14):
            for i in range(4): a(f'v_add_f32 v{16+i}, v{16+i}, v{32+4*p+i}')
    a('v_cvt_pk_bf16_f32 v20, v16, v17')
    a('v_cvt_pk_bf16_f32 v21, v18, v19')
    a('v_lshlrev_b32 v16, 16, v20')
    a('v_and_b32 v17, 0xffff0000, v20')
    a('v_lshlrev_b32 v18, 16, v21')
    a('v_and_b32 v19, 0xffff0000, v21')
    for i in range(4): a(f'v_mul_f32 v{16+i}, s41, v{16+i}')
    a('v_cvt_pk_bf16_f32 v20, v16, v17')
    a('v_cvt_pk_bf16_f32 v21, v18, v19')
    a('v_lshlrev_b32 v16, 16, v20')
    a('v_and_b32 v17, 0xffff0000, v20')
    a('v_lshlrev_b32 v18, 16, v21')
    a('v_and_b32 v19, 0xffff0000, v21')
    a('v_and_b32 v2, 15, v0')
    for tt in range(2):
        X = 132 + 2*tt
        a(f'v_lshlrev_b32 v22, 16, v{X}')
        a(f'v_and_b32 v23, 0xffff0000, v{X}')
        a(f'v_lshlrev_b32 v24, 16, v{X+1}')
        a(f'v_and_b32 v25, 0xffff0000, v{X+1}')
        for i in range(4): a(f'v_add_f32 v{22+i}, v{22+i}, v{16+i}')
        a('v_cvt_pk_bf16_f32 v20, v22, v23')
        a('v_cvt_pk_bf16_f32 v21, v24, v25')
        a(f's_sub_u32 s35, s34, {16*tt}')
        a('v_cmp_eq_u32 vcc, s35, v2')
        a(f'v_cndmask_b32 v{X}, v{X}, v20, vcc')
        a(f'v_cndmask_b32 v{X+1}, v{X+1}, v21, vcc')
    a(f's_branch {name}_ffnret')

def out_setup(a):
    a(f's_load_dwordx2 s[8:9], s[0:1], {KA_X}')
    a(f's_load_dwordx2 s[10:11], s[0:1], {KA_OUT}')
    a('v_and_b32 v0, 63, v0')
    a('v_lshlrev_b32 v1, 4, v0')
    a('v_and_b32 v2, 15, v0')
    a('v_lshrrev_b32 v3, 4, v0')
    a('v_lshrrev_b32 v4, 1, v3')
    a('v_lshlrev_b32 v4, 9, v4')
    a('v_and_b32 v5, 1, v3')
    a('v_lshl_add_u32 v4, v5, 7, v4')
    a('v_lshl_add_u32 v4, v2, 3, v4')
    a('v_lshrrev_b32 v129, 1, v3')
    a('v_mul_u32_u24 v129, 5120, v129')
    a('v_lshl_add_u32 v129, v5, 7, v129')
    a('v_lshl_add_u32 v129, v2, 3, v129')
    a('v_lshlrev_b32 v128, 3, v0')
    a('v_mul_u32_u24 v5, 896, v2')
    a('v_lshl_add_u32 v5, v3, 3, v5')
    a('v_lshlrev_b32 v6, 3, v2')
    a('v_and_b32 v130, 31, v0')
    a('v_lshrrev_b32 v131, 1, v130')
    a('v_mul_u32_u24 v131, 2560, v131')
    a('v_and_b32 v130, 1, v130')
    a('v_lshl_add_u32 v130, v130, 8, v131')
    a('v_add_u32 v130, 2048, v130')

def gen_k5(a, name='out_kernel'):
    a(f'.globl {name}\n.p2align 8\n.type {name},@function\n{name}:')
    a('s_cmp_ge_u32 s2, 448')
    a(f's_cbranch_scc1 {name}_end')
    a(f's_load_dwordx2 s[4:5], s[0:1], {KA_WS}')
    a('v_lshrrev_b32 v2, 6, v0')
    a('v_readfirstlane_b32 s22, v2')
    a('s_waitcnt lgkmcnt(0)')
    gen_argmax(a)
    a('s_mov_b32 s40, s27')
    out_setup(a)
    a('s_mul_i32 s24, s2, 9363')
    a('s_lshr_b32 s24, s24, 16')
    a('s_mul_i32 s25, s24, 7')
    a('s_sub_u32 s25, s2, s25')
    a('s_waitcnt lgkmcnt(0)')
    gen_out_item(a, name, 's24', 's25')
    a('s_endpgm')
    gen_ffnrow(a, name)
    a.label(f'{name}_end')
    a('s_endpgm')
    return dict(name=name, vgpr=144, agpr=160, sgpr=64, grid=448, block=256, lds=64)
```

```python
from asmlib import *
from layout import *
from prep import wait_flags, WgWait

def gen_mjob(a, name, wg='s24'):
    ws = 's[4:5]'
    X, ACC = 16, 80
    a('v_and_b32 v3, 63, v0')
    a(f's_lshl_b32 s29, {wg}, 2')
    a('s_add_u32 s29, s29, s22')
    a('s_mul_i32 s30, s29, 4682')
    a('s_lshr_b32 s30, s30, 16')
    a('s_mul_i32 s31, s30, 14')
    a('s_sub_u32 s31, s29, s31')
    a('s_mov_b32 s40, 2000000')
    with WgWait(a, True): wait_flags(a, name, WS_FLG + F_IMG + 112*16, 448, lane='v3', va=4, sleep=20)
    a('s_mul_i32 s32, s30, 56')
    a('s_lshl_b32 s33, s31, 1')
    a('s_add_u32 s32, s32, s33')
    a(f's_mul_i32 s32, s32, {TILE_B}')
    a(f's_add_u32 s32, s32, {WS_VIMG}')
    a('v_lshlrev_b32 v4, 4, v3')
    a('v_add_u32 v5, s32, v4')
    for sel in range(2):
        for ci in range(2):
            img = 2*ci + sel
            a(f'v_add_u32 v8, {(sel*28+ci)*TILE_B}, v5')
            for blk in range(14):
                if blk % 4 == 0 and blk: a('v_add_u32 v8, 4096, v8')
                a(f'global_load_dwordx4 {ar(56*img+4*blk,4)}, v8, {ws} offset:{1024*(blk%4)}')
    a('v_lshrrev_b32 v6, 5, v3')
    a('v_lshlrev_b32 v6, 8, v6')
    a('v_bfe_u32 v7, v3, 4, 1')
    a('v_lshl_add_u32 v6, v7, 3, v6')
    a('v_and_b32 v7, 7, v3')
    a('v_lshl_add_u32 v6, v7, 4, v6')
    a(f'v_add_u32 v6, {WS_MEM2}, v6')
    a('v_add_u32 v7, 3584, v6')
    a('s_lshl_b32 s32, s33, 12')
    a('s_lshl_b32 s34, s30, 9')
    a('s_add_u32 s32, s32, s34')
    a(f's_add_u32 s32, s32, {WS_M2}')
    a('v_lshlrev_b32 v9, 3, v3')
    a('v_add_u32 v9, s32, v9')
    a('v_add_u32 v10, 4096, v9')
    a('s_lshl_b32 s34, s31, 3')
    a('s_add_u32 s34, s34, s30')
    a('s_lshl_b32 s34, s34, 2')
    a(f's_add_u32 s34, s34, {WS_FLG + F_M}')
    a('v_mov_b32 v11, s34')
    a('v_mov_b32 v12, s20')
    a('s_mov_b32 s36, 0')
    a.label(f'{name}_ml')
    a(f'global_load_dwordx2 v[14:15], v7, {ws} offset:{512*6+128} sc1')
    a('s_waitcnt vmcnt(0)')
    a('v_cmp_eq_u32 vcc, -1, v15')
    a(f's_cbranch_vccz {name}_mg')
    a('s_sleep 14')
    a('s_sub_u32 s40, s40, 1')
    a(f's_cbranch_scc0 {name}_ml')
    a('s_mov_b32 s40, 0')
    a.label(f'{name}_mg')
    for blk in range(14):
        va, o = ('v6', 512*blk) if blk < 7 else ('v7', 512*(blk-7))
        a(f'global_load_dwordx2 {vr(X+4*blk,2)}, {va}, {ws} offset:{o} sc1')
        a(f'global_load_dwordx2 {vr(X+4*blk+2,2)}, {va}, {ws} offset:{o+128} sc1')
    for blk in range(14):
        a(f's_waitcnt vmcnt({2*(13-blk)})')
        a(f'v_swap_b32 v{X+4*blk+1}, v{X+4*blk+2}')
        for img in range(4):
            acc = vr(ACC + 4*img, 4)
            a(f'v_mfma_f32_16x16x32_bf16 {acc}, {vr(X+4*blk,4)}, {ar(56*img+4*blk,4)}, {acc if blk else 0}')
    a(f'v_add_f32 v14, v{ACC}, v{ACC+1}')
    a(f'v_add_f32 v15, v{ACC+2}, v{ACC+3}')
    a('v_cmp_u_f32 vcc, v14, v15')
    a(f's_cbranch_vccz {name}_mk')
    a('s_sub_u32 s40, s40, 16')
    a(f's_cbranch_scc0 {name}_ml')
    a('s_mov_b32 s40, 0')
    a.label(f'{name}_mk')
    for img in range(4):
        A_ = ACC + 4*img
        a(f'v_cvt_pk_bf16_f32 v{96+2*img}, v{A_}, v{A_+1}')
        a(f'v_cvt_pk_bf16_f32 v{97+2*img}, v{A_+2}, v{A_+3}')
    a('s_mov_b32 exec_hi, 0')
    for img in range(4):
        ci, sel = img // 2, img % 2
        a(f'global_store_dwordx2 v{9+ci}, {vr(96+2*img,2)}, {ws} offset:{256*sel} sc1')
    a('s_waitcnt vmcnt(0)')
    a('s_mov_b64 exec, 1')
    a(f'global_store_dword v11, v12, {ws} sc1')
    a('s_mov_b64 exec, -1')
    for r, inc in ((6, 7168), (7, 7168), (9, 28*4096), (10, 28*4096), (11, 448)): a(f'v_add_u32 v{r}, {inc}, v{r}')
    a('s_add_u32 s36, s36, 1')
    a('s_cmp_lt_u32 s36, 64')
    a(f's_cbranch_scc1 {name}_ml')
```

```python
from asmlib import *
from layout import *
from k1 import stamp, stamp_end, stamp_init
from k2 import gen_ugemm, gen_ffn, gen_argmax
from k3 import gen_chain, L_MISC, LDS_BYTES, ENV
from k4 import gen_hs
from prep import gen_img_job, wait_flags, wait_arrivals, get_tag, WgWait, wait_prog
from k6 import gen_mjob
from k5 import gen_out_item, gen_ffnrow, out_setup

NS_REP = 4
import os

def gen_main(a, name='main_kernel'):
    a(f'.globl {name}\n.p2align 8\n.type {name},@function\n{name}:')
    a('s_cmp_ge_u32 s2, 256')
    a(f's_cbranch_scc1 {name}_end')
    a(f's_load_dwordx2 s[4:5], s[0:1], {KA_WS}')
    a(f's_load_dwordx2 s[6:7], s[0:1], {KA_DBG}')
    stamp_init(a)
    if STAMPS:
        a('s_mov_b32 s76, 0'); a('s_mov_b32 s77, 0'); a('s_mov_b32 s86, 0'); a('s_mov_b32 s88, 0'); a('s_memrealtime s[78:79]'); a('s_memtime s[82:83]')
    a('s_memrealtime s[16:17]')
    a('s_getreg_b32 s23, hwreg(HW_REG_XCC_ID)')
    a('s_and_b32 s23, s23, 7')
    if ENV('FAKEXCC', 0) == 1:
        a('s_and_b32 s23, s2, 3'); a('s_add_u32 s23, s23, 1')
    if ENV('FAKEXCC', 0) == 2:
        a('s_mul_i32 s23, s2, 5'); a('s_and_b32 s23, s23, 15'); a('s_min_u32 s23, s23, 5')
    a('v_lshrrev_b32 v2, 6, v0')
    a('v_readfirstlane_b32 s22, v2')
    a('s_waitcnt lgkmcnt(0)')
    a('s_cmp_lg_u32 s22, 0')
    a(f's_cbranch_scc1 {name}_wait')
    a('s_mov_b64 exec, 1')
    a('s_and_b32 s24, s23, 3')
    a('s_lshl_b32 s24, s24, 6')
    a('s_lshr_b32 s25, s23, 2')
    a('s_lshl_b32 s25, s25, 2')
    a('s_add_u32 s24, s24, s25')
    a('v_mov_b32 v1, s24')
    a('v_mov_b32 v2, 1')
    a('global_atomic_add v3, v1, v2, s[6:7] sc0')
    a('s_waitcnt vmcnt(0)')
    a('v_readfirstlane_b32 s24, v3')
    a('v_mov_b32 v1, 0')
    a('s_cmp_lg_u32 s24, 0')
    a(f's_cbranch_scc1 {name}_notag')
    a('s_or_b32 s20, s16, 1')
    a('v_mov_b32 v6, s20')
    a('v_mov_b32 v7, 0')
    a(f'global_atomic_cmpswap v1, v[6:7], s[6:7] offset:{DBG_TAG}')
    a.label(f'{name}_notag')
    a('s_lshl_b32 s25, s23, 5')
    a('s_add_u32 s25, s25, s24')
    a('v_mov_b32 v3, s25')
    a('s_cmp_lt_u32 s24, 32')
    a(f's_cbranch_scc1 {name}_pub')
    a(f'global_atomic_add v3, v1, v2, s[6:7] offset:{DBG_OVF} sc0')
    a('s_mov_b32 s40, 1000000')
    wait_arrivals(a, name + '_o')
    a('v_readfirstlane_b32 s24, v3')
    a('s_mov_b32 s26, 255')
    for x in range(8):
        lx = a.newlabel('ovf')
        a(f'v_readfirstlane_b32 s25, v{8 + 2*(x%4) + x//4}')
        a('s_min_u32 s25, s25, 32')
        a('s_sub_u32 s27, 32, s25')
        a('s_cmp_lt_u32 s24, s27')
        a(f's_cbranch_scc0 {lx}')
        a('s_add_u32 s26, s24, s25')
        a(f's_add_u32 s26, s26, {32*x}')
        a(f's_branch {name}_ovd')
        a.label(lx)
        a('s_sub_u32 s24, s24, s27')
    a.label(f'{name}_ovd')
    a('v_mov_b32 v3, s26')
    a.label(f'{name}_pub')
    a(f'v_mov_b32 v1, {L_MISC}')
    a('ds_write_b32 v1, v3')
    a('s_waitcnt lgkmcnt(0)')
    a('s_mov_b64 exec, -1')
    a.label(f'{name}_wait')
    a('s_barrier')
    a(f'v_mov_b32 v1, {L_MISC}')
    a('ds_read_b32 v2, v1')
    a('s_waitcnt lgkmcnt(0)')
    a('v_readfirstlane_b32 s24, v2')
    a('s_cmp_ge_u32 s24, 32')
    a(f's_cbranch_scc1 {name}_helper')
    gen_chain(a, name + '_c', merged=True)
    a(f's_branch {name}_fin')
    a.label(f'{name}_helper')
    a('s_sub_u32 s24, s24, 32')
    a('v_mov_b32 v250, v0')
    a('s_mov_b32 s38, s24')
    a('s_and_b32 s21, s24, 31')
    a('s_mul_i32 s21, s21, 7')
    a('s_lshr_b32 s25, s24, 5')
    a('s_add_u32 s21, s21, s25')
    a('s_mov_b32 s24, s21')
    a('s_sub_u32 s25, s24, 140')
    a(f's_cmp_ge_u32 s25, {16*NS_REP}')
    a(f's_cbranch_scc1 {name}_nopf')
    a('s_cmp_ge_u32 s22, 3')
    a(f's_cbranch_scc1 {name}_nopf')
    a('s_mul_i32 s25, s25, 2560')
    a(f's_add_u32 s25, s25, {WS_PX}')
    a('v_min_u32 v1, 159, v0')
    a('v_lshlrev_b32 v1, 4, v1')
    a('v_add_u32 v1, s25, v1')
    for r in range(4): a(f'v_mov_b32 v{4+r}, -1')
    for i in range(64 // NS_REP):
        a('global_store_dwordx4 v1, v[4:7], s[4:5] sc1')
        a(f'v_add_u32 v1, {NS_REP*16*2560}, v1')
    a.label(f'{name}_nopf')
    a('s_lshr_b32 s25, s38, 3')
    a('s_mul_i32 s26, s25, 9363')
    a('s_lshr_b32 s26, s26, 16')
    a('s_mul_i32 s27, s26, 7')
    a('s_sub_u32 s27, s25, s27')
    a('s_lshl_b32 s26, s26, 3')
    a('s_and_b32 s25, s38, 7')
    a('s_add_u32 s26, s26, s25')
    a('s_mul_i32 s39, s26, 7')
    a('s_add_u32 s39, s39, s27')
    gen_img_job(a, name, 's39', unit='s21')
    a('s_barrier')
    a('v_mov_b32 v0, v250')
    a('s_mov_b32 s24, s21')
    if ENV('BISECT', 0) == 1 or ENV('NOH', 0): a(f's_branch {name}_fin')
    a('s_cmp_lt_u32 s24, 112')
    a(f's_cbranch_scc1 {name}_hu')
    a('s_cmp_lt_u32 s24, 140')
    a(f's_cbranch_scc1 {name}_hf')
    a(f's_cmp_lt_u32 s24, {140 + 16*NS_REP}')
    a(f's_cbranch_scc1 {name}_hs')
    a(f's_branch {name}_ho')
    a.label(f'{name}_hu')
    gen_ugemm(a, name, 's24', 's22', ENV('UN', 16), 4, st=os.environ.get('UST', 'sc1'), sig=True)
    a(f's_cmp_lt_u32 s24, {ENV("NUO", 28)}')
    a(f's_cbranch_scc0 {name}_fin')
    a(f's_branch {name}_ho')
    a.label(f'{name}_hf')
    if ENV('NOF', 0): a(f's_branch {name}_fin')
    a('s_sub_u32 s24, s24, 112')
    a('s_mov_b32 s40, 1000000')
    a('v_and_b32 v3, 63, v0')
    with WgWait(a): wait_prog(a, name, 1, va=4, sleep=80)
    gen_ffn(a, name, st='sc1')
    gen_mjob(a, name, 's24')
    a(f's_branch {name}_fin')
    a.label(f'{name}_hs')
    if ENV('NOS', 0): a(f's_branch {name}_fin')
    a('s_sub_u32 s24, s24, 140')
    a('s_lshr_b32 s25, s24, 4')
    a('s_and_b32 s24, s24, 15')
    a('s_mov_b32 s40, 1000000')
    a('v_and_b32 v3, 63, v0')
    a('s_mul_i32 s26, s24, 112')
    a(f's_add_u32 s26, s26, {WS_FLG + F_IMG}')
    with WgWait(a, True):
        wait_prog(a, name, 1, va=4, sleep=80)
        wait_flags(a, name, 's26', 28, lane='v3', va=4)
    gen_hs(a, name, 's24', 's25', 64 // NS_REP, NS_REP, merged=True)
    a(f's_branch {name}_fin')
    a.label(f'{name}_ho')
    if ENV('NOO', 0): a(f's_branch {name}_fin')
    a('s_waitcnt vmcnt(0) lgkmcnt(0)')
    a('v_mov_b32 v0, v250')
    a('s_mov_b32 s40, 1000000')
    a('v_and_b32 v3, 63, v0')
    with WgWait(a):
        wait_prog(a, name, 1, va=4, sleep=80)
        wait_flags(a, name, WS_FLG + F_IMG, 896, lane='v3', va=4, sleep=40)
    gen_argmax(a)
    a('s_mov_b32 s40, s27')
    out_setup(a)
    a('s_mov_b32 s42, 2000000')
    a('s_waitcnt lgkmcnt(0)')
    a.label(f'{name}_oloop')
    a('s_waitcnt vmcnt(0)')
    a('s_cmp_lg_u32 s22, 0')
    a(f's_cbranch_scc1 {name}_ow')
    a('s_mov_b64 exec, 1')
    a('v_mov_b32 v2, 0')
    a('v_mov_b32 v3, 1')
    a(f'global_atomic_add v7, v2, v3, s[6:7] offset:{DBG_OT} sc0')
    a('s_waitcnt vmcnt(0)')
    a('ds_write_b32 v2, v7 offset:64')
    a('s_mov_b64 exec, -1')
    a('v_readfirstlane_b32 s26, v7')
    a('s_cmp_ge_u32 s26, 448')
    a(f's_cbranch_scc1 {name}_cwd')
    a('s_mul_i32 s24, s26, 9363')
    a('s_lshr_b32 s24, s24, 16')
    a('s_mul_i32 s25, s24, 7')
    a('s_sub_u32 s25, s26, s25')
    a(f's_mul_i32 s32, s24, {16*2560}')
    a(f's_add_u32 s32, s32, {WS_PX}')
    a('v_add_u32 v2, s32, v130')
    a.label(f'{name}_pw')
    a('global_load_dword v3, v2, s[4:5] sc1')
    a('s_waitcnt vmcnt(0)')
    a('v_cmp_eq_u32 vcc, -1, v3')
    a(f's_cbranch_vccz {name}_pwd')
    a(f's_sleep {ENV("OSLP", 24)}')
    a('s_sub_u32 s42, s42, 1')
    a(f's_cbranch_scc0 {name}_pw')
    a('s_mov_b32 s42, 0')
    a.label(f'{name}_pwd')
    a('s_mul_i32 s30, s24, 448')
    a('s_lshl_b32 s31, s25, 6')
    a('s_add_u32 s30, s30, s31')
    a(f's_add_u32 s30, s30, {WS_FLG + F_U}')
    wait_flags(a, name, 's30', 16, va=140, budget='s42')
    a(f's_add_u32 s30, s30, {F_M - F_U}')
    wait_flags(a, name, 's30', 16, va=140, sleep=4, budget='s42')
    a.label(f'{name}_cwd')
    a('s_waitcnt lgkmcnt(0)')
    a.label(f'{name}_ow')
    a('s_barrier')
    a('v_mov_b32 v2, 0')
    a('ds_read_b32 v7, v2 offset:64')
    a('s_waitcnt lgkmcnt(0)')
    a('v_readfirstlane_b32 s26, v7')
    a('s_barrier')
    a('s_cmp_ge_u32 s26, 448')
    a(f's_cbranch_scc1 {name}_fin')
    a('s_mul_i32 s24, s26, 9363')
    a('s_lshr_b32 s24, s24, 16')
    a('s_mul_i32 s25, s24, 7')
    a('s_sub_u32 s25, s26, s25')
    gen_out_item(a, name, 's24', 's25', st_ld='sc1', merged=True)
    a(f's_branch {name}_oloop')
    gen_ffnrow(a, name, st_ld='sc1', merged=True)
    a.label(f'{name}_fin')
    if STAMPS:
        a('s_memrealtime s[80:81]')
        a('s_memtime s[84:85]')
        a('s_waitcnt lgkmcnt(0) vmcnt(0)')
        a('s_mov_b64 exec, 1')
        a('s_lshl_b32 s3, s2, 2')
        a('s_add_u32 s3, s3, s22')
        a('s_lshl_b32 s3, s3, 4')
        a(f's_add_u32 s3, s3, {WS_STAMP + 3*0x20000}')
        a('s_sub_u32 s84, s84, s82')
        a('s_lshl_b32 s86, s86, 24')
        a('s_or_b32 s76, s76, s86')
        a('s_lshl_b32 s77, s77, 16')
        a('s_or_b32 s76, s76, s77')
        a('v_mov_b32 v0, s3')
        a('v_mov_b32 v4, s84' if ENV('CLK', 0) else 'v_mov_b32 v4, s76'); a('v_mov_b32 v5, s88'); a('v_mov_b32 v6, s78'); a('v_mov_b32 v7, s80')
        a('global_store_dwordx4 v0, v[4:7], s[4:5]')
        a('s_nop 1')
    stamp_end(a, 2, n=9)
    a.label(f'{name}_end')
    a('s_endpgm')
    return dict(name=name, vgpr=256, agpr=256, sgpr=96, grid=256, block=256, lds=LDS_BYTES)
```

```python
WS_AIMG = 0x0000000
WS_VIMG = 0x0620000
WS_XP   = 0x0C40000
WS_XK   = 0x1C00000
WS_KEY  = 0x0E00000
WS_G    = 0x0E02000
WS_YP   = 0x0E08000
WS_FILL = 0x0F00000
WS_RING = 0x0F00000
RS = 0x24000
R_P, R_MEM, R_FP, R_FM, R_M = 0, 0x2800, 0x4400, 0x5400, 0x8000
WS_MEM2 = 0x1000000
WS_CNT  = 0x0E20000
WS_FILL_BYTES = 0x400000
WS_U    = 0x2000000
WS_M2   = 0x3C20000
WS_PX   = 0x1080000
TILE_B = 14336
KA_X, KA_MEM0, KA_WQ, KA_WK, KA_WV, KA_WO, KA_SEG, KA_BX, KA_WR, KA_WG, KA_WU, KA_WD, KA_GW, KA_OUT, KA_DBG, KA_WS = [8*i for i in range(16)]
WS_STAMP = 0x8000000
import os
STAMPS = bool(int(os.environ.get('STAMPS', '0')))
WS_FLG = 0x0E40000
F_IMG, F_XP, F_FFN, F_U, F_M = 0, 0x1000, 0x1400, 0x2000, 0x20000
F_DUMMY = 0x10000
DBG_TAG, DBG_OVF, DBG_OT = 8, 72, 136
F_RDY = 0x1800
F_PROG = 0xD000
F_IMG0 = 0x1F000
F_MD = 0xE000
```

```python
from asmlib import *
from layout import *
from k1 import wave_sum2, stamp
import os
IMGST = os.environ.get('IMGST', 'sc1')

def set_flag(a, off_sgpr_or_imm, vt=1, ws='s[4:5]'):
    a('s_waitcnt vmcnt(0)')
    a(f'v_mov_b32 v{vt}, {off_sgpr_or_imm}')
    a(f'v_mov_b32 v{vt+1}, s20')
    a('s_mov_b64 exec, 1')
    a(f'global_store_dword v{vt}, v{vt+1}, {ws} sc1')
    a('s_mov_b64 exec, -1')

def wait_flags(a, name, base, nwords, lane='v0', va=1, sleep=8, budget='s40', ws='s[4:5]'):
    k = (nwords + 63) // 64
    L = a.newlabel(name + '_wf'); D = a.newlabel(name + '_wd')
    a(f'v_lshlrev_b32 v{va}, 2, {lane}')
    if nwords < 64: a(f'v_min_u32 v{va}, {4*(nwords-1)}, v{va}')
    else: assert nwords % 64 == 0
    a(f'v_add_u32 v{va}, {base}, v{va}')
    a.label(L)
    for i in range(k): a(f'global_load_dword v{va+1+i}, v{va}, {ws} offset:{256*i} sc1')
    a('s_waitcnt vmcnt(0)')
    for i in range(k):
        a(f'v_xor_b32 v{va+1+i}, s20, v{va+1+i}')
        if i: a(f'v_or_b32 v{va+1}, v{va+1}, v{va+1+i}')
    a(f'v_cmp_ne_u32 vcc, 0, v{va+1}')
    a(f's_cbranch_vccz {D}')
    a(f's_sleep {sleep}')
    a(f's_sub_u32 {budget}, {budget}, 1')
    a(f's_cbranch_scc0 {L}')
    a(f's_mov_b32 {budget}, 0')
    a.label(D)

class WgWait:
    def __init__(self, a, inv=False): self.a = a; self.l = a.newlabel('wgw'); self.inv = inv
    def __enter__(self):
        self.a('s_cmp_lg_u32 s22, 0'); self.a(f's_cbranch_scc1 {self.l}')
    def __exit__(self, *x):
        if self.inv:
            self.a('buffer_inv sc1'); self.a('s_waitcnt vmcnt(0)')
        self.a.label(self.l); self.a('s_barrier')

def wait_prog(a, name, need, va=1, sleep=60, budget='s40'):
    L = a.newlabel(name + '_pg'); D = a.newlabel(name + '_pd')
    a('s_and_b32 s3, s2, 15')
    a('s_lshl_b32 s3, s3, 8')
    a(f's_add_u32 s3, s3, {WS_FLG + F_PROG}')
    a(f'v_mov_b32 v{va}, s3')
    a.label(L)
    a(f'global_load_dword v{va+1}, v{va}, s[4:5] sc1')
    a('s_waitcnt vmcnt(0)')
    a(f'v_readfirstlane_b32 s3, v{va+1}')
    a('s_sub_u32 s3, s3, s20')
    a(f's_sub_u32 s3, s3, {need}')
    a('s_cmp_lt_u32 s3, 128')
    a(f's_cbranch_scc1 {D}')
    a(f's_sleep {sleep}')
    a(f's_sub_u32 {budget}, {budget}, 1')
    a(f's_cbranch_scc0 {L}')
    a(f's_mov_b32 {budget}, 0')
    a.label(D)

def get_tag(a, name, v=1):
    L = a.newlabel(name + '_gt'); D = a.newlabel(name + '_gd')
    a(f'v_mov_b32 v{v}, 0')
    a.label(L)
    a(f'global_load_dword v{v+1}, v{v}, s[6:7] offset:{DBG_TAG} sc1')
    a('s_waitcnt vmcnt(0)')
    a(f'v_readfirstlane_b32 s20, v{v+1}')
    a('s_cmp_lg_u32 s20, 0')
    a(f's_cbranch_scc1 {D}')
    a('s_sleep 2')
    a('s_sub_u32 s40, s40, 1')
    a(f's_cbranch_scc0 {L}')
    a('s_mov_b32 s40, 0')
    a.label(D)

def wait_arrivals(a, name):
    L = a.newlabel(name + '_aw'); D = a.newlabel(name + '_ad')
    a('v_mov_b32 v7, 0')
    a.label(L)
    for i in range(4): a(f'global_load_dwordx2 v[{8+2*i}:{9+2*i}], v7, s[6:7] offset:{64*i} sc1')
    a('s_waitcnt vmcnt(0)')
    a('v_add3_u32 v16, v8, v9, v10')
    a('v_add3_u32 v16, v16, v11, v12')
    a('v_add3_u32 v16, v16, v13, v14')
    a('v_add_u32 v16, v16, v15')
    a('v_readfirstlane_b32 s25, v16')
    a('s_cmp_ge_u32 s25, 256')
    a(f's_cbranch_scc1 {D}')
    a('s_sleep 4')
    a('s_sub_u32 s40, s40, 1')
    a(f's_cbranch_scc0 {L}')
    a('s_mov_b32 s40, 0')
    a.label(D)

def gen_img_job(a, name, job='s24', unit='s24'):
    AOP, ACC, BOP = 16, 144, 208
    a(f's_load_dwordx4 s[8:11], s[0:1], {KA_WQ}')
    a(f's_load_dwordx4 s[12:15], s[0:1], {KA_WV}')
    a(f's_mul_i32 s25, {job}, 9363')
    a('s_lshr_b32 s25, s25, 16')
    a('s_mul_i32 s26, s25, 7')
    a(f's_sub_u32 s26, {job}, s26')
    a('s_lshr_b32 s23, s25, 4')
    a('s_and_b32 s25, s25, 15')
    a('v_and_b32 v3, 63, v0')
    a('v_and_b32 v8, 15, v3')
    a('v_lshrrev_b32 v9, 4, v3')
    a('s_waitcnt lgkmcnt(0)')
    a('s_cmp_eq_u32 s23, 1')
    a('s_cselect_b32 s28, s12, s8')
    a('s_cselect_b32 s29, s13, s9')
    a(f's_cselect_b32 s30, {WS_VIMG}, {WS_AIMG}')
    a('s_cselect_b32 s31, 1.0, 0x3db8aa3b')
    a(f's_cbranch_scc1 {name}_stV')
    a('v_lshrrev_b32 v14, 5, v0')
    a('v_and_b32 v15, 31, v0')
    a('s_lshl_b32 s34, s26, 6')
    a('v_add_u32 v1, s34, v14')
    a('v_lshlrev_b32 v1, 13, v1')
    a('s_lshl_b32 s33, s25, 9')
    a('v_lshl_add_u32 v1, v15, 4, v1')
    a('v_add_u32 v1, s33, v1')
    for i in range(8):
        a(f'global_load_dwordx4 {vr(BOP + 4*i, 4)}, v1, s[10:11]')
        if i < 7: a('v_add_u32 v1, 0x10000, v1')
    a('v_mul_u32_u24 v2, 528, v14')
    a('v_lshl_add_u32 v2, v15, 4, v2')
    a('s_mov_b32 s35, 4224')
    a(f's_branch {name}_stD')
    a.label(f'{name}_stV')
    a('v_lshrrev_b32 v14, 3, v0')
    a('v_and_b32 v15, 7, v0')
    a('v_mul_u32_u24 v1, 896, v14')
    a('v_lshl_add_u32 v1, v15, 4, v1')
    a('s_mul_i32 s33, s25, 229376')
    a('s_lshl_b32 s34, s26, 7')
    a('s_add_u32 s33, s33, s34')
    a('v_add_u32 v1, s33, v1')
    for i in range(8):
        a(f'global_load_dwordx4 {vr(BOP + 4*i, 4)}, v1, s[14:15]')
        if i < 7: a('v_add_u32 v1, 28672, v1')
    a('v_mul_u32_u24 v2, 144, v14')
    a('v_lshl_add_u32 v2, v15, 4, v2')
    a('s_mov_b32 s35, 4608')
    a.label(f'{name}_stD')
    LA = 0xA000
    a('s_add_u32 s36, s22, s26')
    a('s_cmp_ge_u32 s36, 7')
    a('s_cselect_b32 s32, 7, 0')
    a('s_sub_u32 s36, s36, s32')
    a('s_add_u32 s37, s36, 4')
    a('s_cmp_ge_u32 s37, 7')
    a('s_cselect_b32 s32, 7, 0')
    a('s_sub_u32 s37, s37, s32')
    a('v_lshlrev_b32 v10, 13, v9')
    a('v_lshl_add_u32 v10, v8, 4, v10')
    a('s_lshl_b32 s33, s25, 9')
    a('v_add_u32 v10, s33, v10')
    a('s_lshl_b32 s32, s36, 19')
    a('s_add_u32 s16, s28, s32')
    a('s_addc_u32 s17, s29, 0')
    a('s_lshl_b32 s32, s37, 19')
    a('s_add_u32 s18, s28, s32')
    a('s_addc_u32 s19, s29, 0')
    def areg(sl, hh, i): return (vr if sl == 0 else ar)((AOP if sl == 0 else 0) + 64*hh + 4*i, 4)
    def aload_ops(sl):
        ops = []
        for qd in range(4):
            ops.append([f's_add_u32 s32, s22, {qd}', 's_and_b32 s32, s32, 3', 's_lshl_b32 s32, s32, 17', 'v_add_u32 v11, s32, v10'])
            for i4 in range(4):
                for hh in range(2):
                    ops.append([f'global_load_dwordx4 {areg(sl, hh, 4*qd + i4)}, v11, s[{16+2*sl}:{17+2*sl}] offset:{256*hh}'])
                if i4 < 3: ops.append(['v_add_u32 v11, 0x8000, v11'])
        return ops
    for l in aload_ops(0):
        for o in l: a(o)
    for i in range(8):
        a(f's_waitcnt vmcnt({32 + 7 - i})')
        a(f'ds_write_b128 v2, {vr(BOP + 4*i, 4)}')
        if i < 7: a('v_add_u32 v2, s35, v2')
    a('s_mul_i32 s32, s22, 17408')
    a(f's_add_u32 s32, s32, {LA}')
    a('v_mul_u32_u24 v12, 272, v9')
    a('v_lshl_add_u32 v12, v8, 4, v12')
    a('v_add_u32 v12, s32, v12')
    a('v_lshrrev_b32 v13, 3, v8')
    a('v_lshlrev_b32 v13, 4, v13')
    a('v_bfe_u32 v11, v8, 2, 1')
    a('v_lshl_add_u32 v13, v11, 2, v13')
    a('v_and_b32 v11, 3, v8')
    a('v_add_u32 v13, v13, v11')
    a('v_mul_u32_u24 v13, 272, v13')
    a('v_lshl_add_u32 v13, v9, 4, v13')
    a('v_add_u32 v13, s32, v13')
    a('s_waitcnt lgkmcnt(0)')
    a('s_barrier')
    stamp(a, 3)
    a('s_mul_i32 s33, s25, 28')
    a('s_lshl_b32 s34, s26, 2')
    a('s_add_u32 s33, s33, s34')
    a('s_mul_i32 s33, s33, 14')
    a('s_lshl_b32 s33, s33, 10')
    a('s_add_u32 s33, s33, s30')
    a('v_lshlrev_b32 v1, 4, v3')
    a('v_add_u32 v1, s33, v1')
    a('s_lshl_b32 s34, s37, 11')
    a('v_add_u32 v15, s34, v1')
    a('s_lshl_b32 s34, s36, 11')
    a('v_add_u32 v1, s34, v1')
    def mainloop(bread, nrd, sl):
        side = aload_ops(1) if sl == 0 else []
        if sl == 0:
            pass
        for hh in range(2):
            if hh == 0: a('s_waitcnt vmcnt(8)' if sl == 1 else 's_waitcnt vmcnt(0)')
            for qd in range(4):
                a(f's_add_u32 s32, s22, {qd}'); a('s_and_b32 s32, s32, 3'); a('s_mul_i32 s32, s32, 4352'); a('v_add_u32 v14, s32, v12')
                for i4 in range(4):
                    a(f'ds_write_b128 v14, {areg(sl, hh, 4*qd + i4)} offset:{1088*i4}')
            OP = AOP + (0 if hh == 0 else 64) if sl == 0 else AOP
            a('s_waitcnt lgkmcnt(0)')
            def rd(kk, buf):
                for q in range(4):
                    a(f'ds_read_b128 {vr(OP + 16*buf + 4*q, 4)}, v13 offset:{(32*(q//2) + 8*(q%2))*272 + 64*kk}')
                bread(4*hh + kk, BOP + 16*buf)
            rd(0, 0)
            for kk in range(4):
                if kk < 3:
                    rd(kk+1, (kk+1) % 2)
                    a(f's_waitcnt lgkmcnt({min(4 + nrd, 15)})')
                else:
                    a('s_waitcnt lgkmcnt(0)')
                for q in range(4):
                    for jn in range(4):
                        acc = vr(ACC + 16*q + 4*jn, 4)
                        a(f'v_mfma_f32_16x16x32_bf16 {acc}, {vr(OP + 16*(kk%2) + 4*q, 4)}, {vr(BOP + 16*(kk%2) + 4*jn, 4)}, {acc if (kk or hh) else 0}')
                        if side and jn % 2 == 1:
                            for o in side.pop(0): a(o)
        assert not side
    def epi():
        a('v_mov_b32 v4, v1')
        for jn in range(4):
            for u in range(2):
                X = ACC + 16*(2*u) + 4*jn; Y = ACC + 16*(2*u+1) + 4*jn
                for r in range(4):
                    a(f'v_mul_f32 v{X+r}, s31, v{X+r}')
                    a(f'v_mul_f32 v{Y+r}, s31, v{Y+r}')
                o = 240 + 4*((2*jn+u) % 2)
                a(f'v_cvt_pk_bf16_f32 v{o}, v{X}, v{X+1}')
                a(f'v_cvt_pk_bf16_f32 v{o+1}, v{Y}, v{Y+1}')
                a(f'v_cvt_pk_bf16_f32 v{o+2}, v{X+2}, v{X+3}')
                a(f'v_cvt_pk_bf16_f32 v{o+3}, v{Y+2}, v{Y+3}')
                a(f'global_store_dwordx4 v4, {vr(o,4)}, s[4:5] offset:{1024*u} {IMGST}')
            if jn < 3: a(f'v_add_u32 v4, {TILE_B}, v4')
    for typ in 'AV':
        if typ == 'A':
            a('s_cmp_eq_u32 s23, 1')
            a(f's_cbranch_scc1 {name}_mV')
            a('v_mul_u32_u24 v2, 528, v8')
            a('v_lshl_add_u32 v2, v9, 4, v2')
            def bread(k, dst):
                for jn in range(4): a(f'ds_read_b128 {vr(dst + 4*jn, 4)}, v2 offset:{8448*jn + 64*k}')
            nrd = 4
        else:
            a.label(f'{name}_mV')
            a('v_lshrrev_b32 v2, 2, v8')
            a('v_lshl_add_u32 v2, v9, 3, v2')
            a('v_mul_u32_u24 v2, 144, v2')
            a('v_and_b32 v14, 3, v8')
            a('v_lshl_add_u32 v2, v14, 3, v2')
            def bread(k, dst):
                for jn in range(4):
                    a(f'ds_read_b64_tr_b16 {vr(dst + 4*jn, 2)}, v2 offset:{4608*k + 32*jn}')
                    a(f'ds_read_b64_tr_b16 {vr(dst + 4*jn + 2, 2)}, v2 offset:{4608*k + 576 + 32*jn}')
            nrd = 8
        mainloop(bread, nrd, 0)
        epi()
        a('s_cmp_eq_u32 s22, 3')
        a(f's_cbranch_scc1 {name}_jd')
        a('v_mov_b32 v1, v15')
        mainloop(bread, nrd, 1)
        epi()
        if typ == 'A': a(f's_branch {name}_jd')
    a.label(f'{name}_jd')
    stamp(a, 1)
    a('s_mov_b32 s40, 1000000')
    get_tag(a, name)
    if IMGST == '':
        a('buffer_wbl2 sc1'); a('s_waitcnt vmcnt(0)')
    a(f's_lshl_b32 s33, {job}, 2')
    a('s_add_u32 s33, s33, s22')
    a('s_lshl_b32 s33, s33, 2')
    a(f's_add_u32 s33, s33, {WS_FLG + F_IMG}')
    set_flag(a, 's33')
    stamp(a, 2)

def gen_xprep(a, name, unit, lds_base):
    a(f's_load_dwordx2 s[16:17], s[0:1], {KA_X}')
    a(f's_load_dwordx2 s[18:19], s[0:1], {KA_WR}')
    a(f's_load_dwordx2 s[12:13], s[0:1], {KA_GW}')
    a('v_lshlrev_b32 v1, 4, v3')
    a(f's_mul_i32 s25, {unit}, 14336')
    a('v_add_u32 v2, s25, v1')
    a('v_add_u32 v4, 8192, v2')
    a('v_min_u32 v5, 880, v1')
    a('s_waitcnt lgkmcnt(0)')
    for i in range(14):
        a(f'global_load_dwordx4 {vr(16+4*i,4)}, v{2 if i < 4 or (i < 8) else 4}, s[16:17] offset:{1024*i if i < 4 else (1024*(i-8) if i >= 8 else 0)}' if (i < 4 or 8 <= i < 12) else
          f'global_load_dwordx4 {vr(16+4*i,4)}, v{4 if i < 8 else 6}, s[16:17] offset:{1024*(i-8) if i < 8 else 1024*(i-12)}')
        if i == 3: a('v_add_u32 v6, 4096, v4')
    a('global_load_dwordx4 v[72:75], v5, s[18:19]')
    a('global_load_dwordx4 v[76:79], v5, s[12:13]')
    for i in range(14):
        a(f'v_add_u32 v10, {64*i}, v3')
        a('v_mul_u32_u24 v11, 1171, v10')
        a('v_lshrrev_b32 v11, 16, v11')
        a('v_add_lshl_u32 v10, v10, v11, 4')
        a(f'v_add_u32 v10, {lds_base}, v10')
        a(f's_waitcnt vmcnt({15 - i})')
        a(f'ds_write_b128 v10, {vr(16+4*i,4)}')
    a(f'v_add_u32 v10, {lds_base}, v5')
    a('s_waitcnt vmcnt(0)')
    a(f'ds_write_b128 v10, v[72:75] offset:{16*912}')
    a(f'ds_write_b128 v10, v[76:79] offset:{17*912}')
    a('v_lshrrev_b32 v11, 1, v9')
    a('v_lshlrev_b32 v11, 5, v11')
    a('v_and_b32 v12, 1, v9')
    a('v_lshl_add_u32 v11, v12, 3, v11')
    a(f'v_add_u32 v11, {lds_base}, v11')
    a('v_mul_u32_u24 v12, 912, v8')
    a('v_add_u32 v13, v12, v11')
    a('v_lshl_add_u32 v12, v9, 3, v12')
    a(f'v_add_u32 v12, {lds_base}, v12')
    a(f's_add_u32 s25, s25, {WS_XP}')
    a('v_add_u32 v2, s25, v1')
    a(f's_lshr_b32 s26, {unit}, 1')
    a('s_lshl_b32 s26, s26, 15')
    a(f's_and_b32 s27, {unit}, 1')
    a('s_lshl_b32 s27, s27, 12')
    a('s_add_u32 s26, s26, s27')
    a(f's_add_u32 s26, s26, {WS_XK}')
    a('v_add_u32 v4, s26, v1')
    a('s_waitcnt lgkmcnt(0)')
    for blk in range(14):
        a(f'ds_read2_b64 {vr(16+4*blk,4)}, v13 offset0:{8*blk} offset1:{8*blk+2}')
    for w in range(4):
        for k in range(4):
            o = (224*w + 64*k) // 8
            r = 80 + 16*w + 4*k
            if k < 3: a(f'ds_read2_b64 {vr(r,4)}, v12 offset0:{o} offset1:{o+4}')
            else:
                a(f'ds_read_b64 {vr(r,2)}, v12 offset:{8*o}')
                a(f'v_mov_b32 v{r+2}, 0'); a(f'v_mov_b32 v{r+3}, 0')
    a('s_waitcnt lgkmcnt(0)')
    for w in range(4):
        for k in range(4):
            a(f'global_store_dwordx4 v4, {vr(80+16*w+4*k,4)}, s[4:5] offset:{1024*k} sc1')
        if w < 3: a('v_add_u32 v4, 8192, v4')
    a('v_mov_b32 v14, 0')
    a('v_mov_b32 v15, 0')
    a(f'v_add_u32 v10, {16*912}, v11')
    for blk in range(14):
        x = 16 + 4*blk
        a(f'ds_read2_b64 v[144:147], v10 offset0:{8*blk} offset1:{8*blk+2}')
        a(f'ds_read2_b64 v[148:151], v10 offset0:{114+8*blk} offset1:{114+8*blk+2}')
        for i in range(4):
            a(f'v_lshlrev_b32 v{152+2*i}, 16, v{x+i}')
            a(f'v_and_b32 v{153+2*i}, 0xffff0000, v{x+i}')
        a(f'v_swap_b32 v{x+1}, v{x+2}')
        a(f'global_store_dwordx4 v2, {vr(x,4)}, s[4:5] offset:{1024*(blk%4)} sc1')
        if blk % 4 == 3: a('v_add_u32 v2, 4096, v2')
        a('s_waitcnt lgkmcnt(0)')
        for i in range(4):
            a(f'v_lshlrev_b32 v160, 16, v{144+i}')
            a(f'v_and_b32 v161, 0xffff0000, v{144+i}')
            a(f'v_fmac_f32 v14, v{152+2*i}, v160')
            a(f'v_fmac_f32 v14, v{153+2*i}, v161')
            a(f'v_lshlrev_b32 v160, 16, v{148+i}')
            a(f'v_and_b32 v161, 0xffff0000, v{148+i}')
            a(f'v_mul_f32 v160, v{152+2*i}, v160')
            a(f'v_mul_f32 v161, v{153+2*i}, v161')
            a('v_cvt_pk_bf16_f32 v160, v160, v161')
            a('v_and_b32 v161, 0xffff0000, v160')
            a('v_lshlrev_b32 v160, 16, v160')
            a('v_add_f32 v15, v15, v160')
            a('v_add_f32 v15, v15, v161')
    for sw in ('v_permlane16_swap_b32', 'v_permlane32_swap_b32'):
        a('v_mov_b32 v160, v14'); a('v_mov_b32 v161, v15')
        a(f'{sw} v14, v160'); a(f'{sw} v15, v161')
        a('v_add_f32 v14, v14, v160'); a('v_add_f32 v15, v15, v161')
    a('v_cvt_pk_bf16_f32 v98, v14, v15')
    a('v_lshlrev_b32 v99, 16, v98')
    a('v_ashrrev_i32 v100, 31, v99')
    a('v_or_b32 v100, 0x80000000, v100')
    a('v_xor_b32 v99, v99, v100')
    a('v_and_b32 v99, 0xffff0000, v99')
    a(f's_lshl_b32 s26, {unit}, 4')
    a('v_add_u32 v102, s26, v8')
    a('v_sub_u32 v103, 2047, v102')
    a('v_or_b32 v99, v103, v99')
    a('v_and_b32 v100, 0xffff0000, v98')
    a('v_mul_f32 v100, 0xbfb8aa3b, v100')
    a('v_exp_f32 v100, v100')
    a('v_add_f32 v100, 1.0, v100')
    a('v_rcp_f32 v100, v100')
    a('v_cvt_pk_bf16_f32 v100, v100, v100')
    a('v_and_b32 v100, 0xffff0000, v100')
    a('v_sub_f32 v101, 1.0, v100')
    a('v_cvt_pk_bf16_f32 v101, v101, v101')
    a('v_and_b32 v101, 0xffff0000, v101')
    a('v_lshlrev_b32 v103, 3, v102')
    a(f'v_add_u32 v103, {WS_G}, v103')
    a('v_lshlrev_b32 v102, 2, v102')
    a(f'v_add_u32 v102, {WS_KEY}, v102')
    a('s_mov_b64 exec, 0xffff')
    a('global_store_dword v102, v99, s[4:5] sc1')
    a('global_store_dwordx2 v103, v[100:101], s[4:5] sc1')
    a('s_mov_b64 exec, -1')
    a(f's_lshl_b32 s26, {unit}, 2')
    a(f's_add_u32 s26, s26, {WS_FLG + F_XP}')
    set_flag(a, 's26')

def gen_chain_prep(a, name, role='s24'):
    a(f's_load_dwordx2 s[14:15], s[0:1], {KA_MEM0}')
    a('v_and_b32 v3, 63, v0')
    for r in range(4): a(f'v_mov_b32 v{4+r}, -1')
    a(f's_lshl_b32 s25, {role}, 12')
    a(f's_add_u32 s25, s25, {WS_RING}')
    a('v_lshlrev_b32 v1, 4, v0')
    a('v_add_u32 v1, s25, v1')
    for i in range(6):
        if i == 5:
            a(f's_cmp_ge_u32 {role}, 20')
            a(f's_cbranch_scc1 {name}_rf')
        a('global_store_dwordx4 v1, v[4:7], s[4:5] sc1')
        if i < 5: a('v_add_u32 v1, 0x20000, v1')
    a.label(f'{name}_rf')
    a(f's_lshl_b32 s25, {role}, 12')
    a(f's_add_u32 s25, s25, {WS_MEM2 + 7168}')
    a('v_lshlrev_b32 v1, 4, v0')
    a('v_add_u32 v1, s25, v1')
    for i in range(4):
        if i == 3:
            a(f's_cmp_ge_u32 {role}, 15')
            a(f's_cbranch_scc1 {name}_mf')
        a('global_store_dwordx4 v1, v[4:7], s[4:5] sc1')
        if i < 3: a('v_add_u32 v1, 0x20000, v1')
    a.label(f'{name}_mf')
    a('s_waitcnt lgkmcnt(0)')
    a(f's_cmp_lg_u32 {role}, 0')
    a(f's_cbranch_scc1 {name}_nm0')
    a('v_and_b32 v8, 7, v0')
    a('v_mul_u32_u24 v8, 896, v8')
    a('v_lshrrev_b32 v9, 3, v0')
    a('v_lshl_add_u32 v8, v9, 4, v8')
    a('v_lshlrev_b32 v9, 4, v0')
    a(f'v_add_u32 v9, {WS_MEM2}, v9')
    a('v_add_u32 v10, 4096, v9')
    a('global_load_dwordx4 v[12:15], v8, s[14:15]')
    a('s_waitcnt vmcnt(0)')
    a('global_store_dwordx4 v9, v[12:15], s[4:5] sc1')
    a('s_cmp_eq_u32 s22, 3')
    a(f's_cbranch_scc1 {name}_nm0')
    a('global_load_dwordx4 v[16:19], v8, s[14:15] offset:512')
    a('s_waitcnt vmcnt(0)')
    a('global_store_dwordx4 v10, v[16:19], s[4:5] sc1')
    a('s_nop 1')
    a.label(f'{name}_nm0')
    get_tag(a, name)
    a(f's_lshl_b32 s36, {role}, 2')
    a('s_add_u32 s36, s36, s22')
    a('s_mul_i32 s34, s22, 0x4400')
    a('s_add_u32 s34, s34, 0xA000')
    a('v_and_b32 v8, 15, v3')
    a('v_lshrrev_b32 v9, 4, v3')
    gen_xprep(a, name, 's36', 's34')
    wait_arrivals(a, name)
    a('v_readfirstlane_b32 s21, v8')
```

```python
import sys, importlib, os
from asmlib import *
from layout import *

HEADER = open('gated_mix__memory_aug_recurrent_mem_tr__moe_arch_mod__prompt.s.ref').read().split('; Override launch geometry')[0]

def desc(k):
    acc = (k['vgpr'] + 3) // 4 * 4
    nfv = acc + k['agpr'] if k['agpr'] else k['vgpr']
    return f""".p2align 6
.amdhsa_kernel {k['name']}
  .amdhsa_next_free_vgpr {nfv}
  .amdhsa_next_free_sgpr {k['sgpr']}
  .amdhsa_accum_offset {acc}
  .amdhsa_group_segment_fixed_size 0
  .amdhsa_kernarg_size 128
  .amdhsa_user_sgpr_count 2
  .amdhsa_user_sgpr_kernarg_segment_ptr 1
  .amdhsa_system_sgpr_workgroup_id_x 1
.end_amdhsa_kernel
"""

def build(gens, path):
    ks = []; body = ''
    for g in gens:
        a = Asm()
        k = g(a)
        ks.append(k)
        body += a.finalize()
    s = HEADER
    for k in ks:
        kn = f"kernel={k['name']} " if (len(ks) > 1 or os.environ.get('LIST')) else ''
        s += f"; @launch {kn}grid=({k['grid']},1,1) block=({k['block']},1,1) lds={k['lds']}\n"
    s += '.amdgcn_target "amdgcn-amd-amdhsa--gfx950"\n.text\n' + body
    s += '.section .rodata,"a"\n'
    for k in ks: s += desc(k)
    open(path, 'w').write(s)
    return ks

if __name__ == '__main__':
    from k1 import gen_k1
    import os
    if os.environ.get('SPLIT'):
        gens = [gen_k1]
        for modname, fn in [('k2', 'gen_k2'), ('k3', 'gen_k3'), ('k4', 'gen_k4'), ('k5', 'gen_k5')]:
            gens.append(getattr(importlib.import_module(modname), fn))
    else:
        from kmain import gen_main
        gens = [gen_main]
    out = sys.argv[1] if len(sys.argv) > 1 else 'gated_mix__memory_aug_recurrent_mem_tr__moe_arch_mod__prompt.s'
    ks = build(gens, out)
    print([k['name'] for k in ks])
```

```python
from asmlib import *
from layout import *
from k1 import stamp, stamp_end, stamp_init
import os
from prep import wait_flags, gen_chain_prep, set_flag, WgWait
ENV = lambda k, d: int(os.environ.get(k, d))

L_MEM, L_T, L_S, L_MISC, L_STASH, L_K1, L_U = 0, 0xC000, 0x6000, 0x9400, 0x9800, 0xA000, 0x10000
L_MS = 0x2000
LDS_BYTES = 0x20000
MA, ACC, SACC, TB, TBZ, K0, KM0, K2, CV, IDX, KM1 = 8, 36, 64, 76, 84, 88, 96, 100, 108, 112, 116
PA, MB, UB, PACC = 8, 48, 64, 96
LOG2E = 0x3fb8aa3b
A_FST, A_FL, A_TW, A_TR, A_MK, A_SR, A_PST, A_SW = 0, 2, 5, 6, 7, 113, 114, 115
A_XK = 87
A_MST = 114
A_CP = 113
A_UR, A_ML, A_MEMST, A_PERM = 100, 101, 102, 103
FR = (104, 105, 106)
TMP = 119
TMP2 = 99
NREP = ENV('NREP', 4)
RMASK = (1 << NREP) - 1
A_DM = 0

def cstamp(a, i, step=30):
    if not STAMPS or ENV('NOCST', 0): return
    l = a.newlabel('cst')
    a(f's_cmp_lg_u32 s36, {step}')
    a(f's_cbranch_scc1 {l}')
    a(f's_mem{"real" if ENV("RT",0) else ""}time s[{60+2*i}:{61+2*i}]')
    a('s_waitcnt lgkmcnt(0)')
    a.label(l)

def W(j, t):
    g = 7*j + t
    return ar(8*g, 8) if g < 32 else vr(120 + 8*(g-32), 8)

def max_ops(regs, tmp, first=True):
    r = list(regs); out = []
    while r:
        if first:
            if len(r) >= 3: out.append(f'v_max3_u32 v{tmp}, v{r[0]}, v{r[1]}, v{r[2]}'); r = r[3:]
            else: out.append(f'v_max_u32 v{tmp}, v{r[0]}, v{r[1]}'); r = r[2:]
            first = False
        elif len(r) >= 2: out.append(f'v_max3_u32 v{tmp}, v{tmp}, v{r[0]}, v{r[1]}'); r = r[2:]
        else: out.append(f'v_max_u32 v{tmp}, v{tmp}, v{r[0]}'); r = r[1:]
    return out

class Cnt:
    def __init__(self): self.n = 0; self.last = {}
    def reset(self): self.n = 0; self.last = {}
    def issue(self, tag): self.n += 1; self.last[tag] = self.n
    def need(self, tag): return self.n - self.last[tag]

def sadd64(a, lo, imm):
    a(f's_add_u32 s{lo}, s{lo}, {imm}')
    a(f's_addc_u32 s{lo+1}, s{lo+1}, 0')

def flag_ld(r): return f'global_load_dword v{r}, v{A_FL}, s[46:47] sc1'

def flag_poll(a, name, FR=FR, gap=7):
    L = a.newlabel(name + '_fp'); D = a.newlabel(name + '_fd')
    n = len(FR)
    for r in FR[:n-1]:
        a(flag_ld(r))
        a(f's_nop {gap}')
    a.label(L)
    for j in range(n):
        a(flag_ld(FR[(j+n-1) % n]))
        a(f's_waitcnt vmcnt({n-1})')
        a(f'v_cmp_eq_u32 vcc, -1, v{FR[j]}')
        a(f's_cbranch_vccz {D}')
    a('s_sub_u32 s40, s40, 1')
    a(f's_cbranch_scc0 {L}')
    a('s_mov_b32 s40, 0')
    a.label(D)

def gen_chain(a, name, role='s24', merged=False):
    ws = 's[4:5]'
    NEG = 104
    a('s_mov_b32 s40, 2000000')
    if merged:
        gen_chain_prep(a, name, role)
        if ENV('BISECT', 0) == 1: a(f's_branch {name}_done')
        a('v_and_b32 v0, 63, v0')
        a(f's_mul_i32 s25, {role}, 112')
        a(f's_add_u32 s25, s25, {WS_FLG + F_IMG}')
        stamp(a, 1)
        a(f's_add_u32 s37, s25, {F_IMG0 - F_IMG}')
        a('s_mov_b32 s39, s25')
        with WgWait(a, True): wait_flags(a, name, 's37', 28, va=4, sleep=3)
        stamp(a, 2)
    a('v_and_b32 v0, 63, v0')
    a('v_lshlrev_b32 v1, 4, v0')
    a(f's_and_b32 s25, {role}, 15')
    a(f's_lshr_b32 s26, {role}, 4')
    a('s_mul_i32 s27, s25, 28')
    a('s_mul_i32 s28, s22, 7')
    a('s_add_u32 s27, s27, s28')
    a(f's_mul_i32 s27, s27, {TILE_B}')
    a(f's_mul_i32 s28, s26, {WS_VIMG - WS_AIMG}')
    a('s_add_u32 s27, s27, s28')
    a('s_lshl_b32 s29, s22, 1')
    def wloads(w, batch):
        for j in range(7):
            grp = (7*w + j) // 4
            ts = [(grp + i) % 7 for i in (range(3) if batch == 0 else range(3, 7))]
            for t in sorted(ts):
                g = 7*j + t
                off = j*TILE_B + t*2048
                a(f's_add_u32 s30, s27, {off}')
                a('v_add_u32 v2, s30, v1')
                for u in range(2):
                    dst = ar(8*g+4*u, 4) if g < 32 else vr(120 + 8*(g-32) + 4*u, 4)
                    a(f'global_load_dwordx4 {dst}, v2, {ws} offset:{1024*u}')
    for batch in range(2):
        for w in range(4):
            if w < 3:
                a(f's_cmp_lg_u32 s22, {w}')
                a(f's_cbranch_scc1 {name}_wl{batch}{w+1}')
            wloads(w, batch)
            if w < 3:
                a(f's_branch {name}_wld{batch}')
                a.label(f'{name}_wl{batch}{w+1}')
        a.label(f'{name}_wld{batch}')
        if batch == 0 and merged:
            with WgWait(a): wait_flags(a, name, 's39', 28, va=4, sleep=3)
    if merged:
        with WgWait(a): wait_flags(a, name, WS_FLG + F_XP, 256, va=16, sleep=8)
        a('s_waitcnt vmcnt(0)')
    stamp(a, 3)
    if ENV('BISECT', 0) == 3:
        a('s_mov_b32 s88, 1'); a(f's_branch {name}_done')
    def sbase(lo, off):
        a(f's_add_u32 s{lo}, s4, {off}')
        a(f's_addc_u32 s{lo+1}, s5, 0')
    C, G, T1, T2, T3 = 8, 9, 10, 11, 12
    a(f'v_and_b32 v{C}, 15, v0')
    a(f'v_lshrrev_b32 v{G}, 4, v0')
    a(f'v_cmp_lt_u32 vcc, 7, v{C}')
    a(f'v_mov_b32 v{IDX}, 0x4444')
    a(f'v_mov_b32 v{T1}, 0xeeee')
    a(f'v_cndmask_b32 v{IDX}, v{IDX}, v{T1}, vcc')
    a('v_add_u32 v3, 4096, v1')
    a('v_add_u32 v4, 8192, v1')
    for r in (5, 6, 7, 100, 101, 102, 103, 113, 114, 115, 116): a(f'v_mov_b32 v{r}, v1')
    a(f's_lshl_b32 s30, {role}, 2')
    a('s_add_u32 s30, s30, s22')
    a('s_mul_i32 s30, s30, 4608')
    a(f's_add_u32 s30, s30, {WS_RING + 4096}')
    a(f'v_add_u32 v{T1}, s30, v1')
    for i in range(5): a(f'global_load_dwordx4 {vr(16+4*i,4)}, v{T1}, {ws} offset:{1024*i-4096 if i < 4 else -512} sc1')
    for lo in (8, 10, 12, 14, 52, 54, 56, 58): sbase(lo, WS_RING + 4*RS)
    sbase(44, WS_MEM2)
    sbase(46, WS_RING)
    sbase(48, WS_RING + 3*RS)
    sbase(50, WS_RING + RS)
    a(f's_mov_b32 s38, {2*RS}')
    a('s_mov_b32 s36, 0')
    a(f's_and_b32 s31, {role}, {NREP-1}')
    a('s_lshl_b32 s31, s31, 8')
    a(f's_add_u32 s31, s31, {R_FM}')
    a(f'v_min_u32 v{A_FL}, 27, v0')
    a(f'v_lshlrev_b32 v{A_FL}, 2, v{A_FL}')
    a(f'v_add_u32 v{A_FL}, s31, v{A_FL}')
    a('s_cmp_eq_u32 s26, 1')
    a(f's_cbranch_scc1 {name}_vsetup')
    a('s_lshl_b32 s30, s22, 12')
    a(f's_add_u32 s30, s30, {L_T}')
    a(f'v_lshlrev_b32 v{A_TW}, 5, v{C}')
    a(f'v_lshrrev_b32 v{T1}, 2, v{C}')
    a(f'v_xor_b32 v{T1}, v{T1}, v{G}')
    a(f'v_lshl_add_u32 v{A_TW}, v{T1}, 3, v{A_TW}')
    a(f'v_add_u32 v{A_TW}, s30, v{A_TW}')
    a(f'v_and_b32 v{T1}, 3, v0')
    a(f'v_xor_b32 v{T1}, v{T1}, v{G}')
    a(f'v_lshrrev_b32 v{A_TR}, 2, v0')
    a(f'v_lshlrev_b32 v{A_TR}, 5, v{A_TR}')
    a(f'v_lshl_add_u32 v{A_TR}, v{T1}, 3, v{A_TR}')
    a(f'v_add_u32 v{A_TR}, s30, v{A_TR}')
    a(f'v_lshrrev_b32 v{T1}, 1, v{G}')
    a(f'v_and_b32 v{T2}, 1, v{G}')
    a(f'v_lshlrev_b32 v{A_MK}, 7, v{T1}')
    a(f'v_lshl_add_u32 v{A_MK}, v{T2}, 3, v{A_MK}')
    a(f'v_and_b32 v{T3}, 7, v0')
    a(f'v_lshl_add_u32 v{A_MK}, v{T3}, 4, v{A_MK}')
    a('s_mul_i32 s30, s22, 14')
    a('s_and_b32 s30, s30, 7')
    a('s_lshl_b32 s30, s30, 7')
    a('s_mul_i32 s31, s22, 3072')
    a('s_add_u32 s30, s30, s31')
    a(f'v_add_u32 v{A_MK}, s30, v{A_MK}')
    a(f'v_mul_u32_u24 v{A_SW}, 208, v{C}')
    a(f'v_lshl_add_u32 v{A_SW}, v{G}, 4, v{A_SW}')
    a('s_mul_i32 s30, s22, 3328')
    a(f's_add_u32 s30, s30, {L_S}')
    a(f'v_add_u32 v{A_SW}, s30, v{A_SW}')
    a(f'v_lshrrev_b32 v{T1}, 5, v0')
    a(f'v_add_u32 v{T1}, s29, v{T1}')
    a(f'v_and_b32 v{T2}, 31, v0')
    a(f'v_mul_u32_u24 v{A_SR}, 208, v{T1}')
    a(f'v_lshl_add_u32 v{A_SR}, v{T2}, 3, v{A_SR}')
    a(f'v_add_u32 v{A_SR}, {L_S}, v{A_SR}')
    a(f'v_lshrrev_b32 v{A_PST}, 2, v{T2}')
    a(f'v_lshlrev_b32 v{A_PST}, 8, v{A_PST}')
    a(f'v_and_b32 v{T3}, 3, v{T2}')
    a(f'v_lshl_add_u32 v{A_PST}, v{T3}, 2, v{A_PST}')
    a('s_lshr_b32 s30, s25, 1')
    a('s_lshl_b32 s30, s30, 10')
    a('s_and_b32 s31, s25, 1')
    a('s_lshl_b32 s32, s31, 7')
    a('s_add_u32 s30, s30, s32')
    a(f'v_add_u32 v{A_PST}, s30, v{A_PST}')
    a(f'v_and_b32 v{C}, 1, v{T2}')
    a(f'v_lshlrev_b32 v{C}, 7, v{C}')
    a(f'v_bfe_u32 v{G}, v{T2}, 1, 1')
    a(f'v_lshl_add_u32 v{C}, v{G}, 3, v{C}')
    a('s_lshr_b32 s30, s25, 3')
    a('s_lshl_b32 s30, s30, 10')
    a('s_bfe_u32 s32, s25, 0x20001')
    a('s_lshl_b32 s32, s32, 8')
    a('s_add_u32 s30, s30, s32')
    a('s_lshl_b32 s32, s31, 2')
    a('s_add_u32 s30, s30, s32')
    a('s_add_u32 s30, s30, 8192')
    a(f'v_add_u32 v{C}, s30, v{C}')
    a(f'v_cmp_lt_u32 vcc, 15, v{T2}')
    a(f'v_cndmask_b32 v{A_PST}, v{A_PST}, v{C}, vcc')
    a(f'v_lshl_add_u32 v{A_PST}, v{T1}, 4, v{A_PST}')
    a(f'v_cmp_gt_u32 vcc, 20, v{T2}')
    a('s_mov_b64 s[42:43], vcc')
    a('s_lshl_b32 s31, s25, 2')
    a(f's_add_u32 s31, s31, {R_FP}')
    a(f'v_lshlrev_b32 v{A_FST}, 8, v0')
    a(f'v_add_u32 v{A_FST}, s31, v{A_FST}')
    a('s_lshl_b32 s30, s22, 13')
    a(f's_add_u32 s30, s30, {WS_XK}')
    sbase(54, 's30')
    a('s_lshl_b32 s30, s25, 2')
    a('s_add_u32 s30, s30, s22')
    a(f's_mul_i32 s30, s30, {7168}')
    a(f's_add_u32 s30, s30, {WS_U + 2*28*16384}')
    sbase(8, 's30')
    a(f's_branch {name}_go')
    a.label(f'{name}_vsetup')
    a('s_and_b32 s33, s22, 1')
    a('s_lshl_b32 s30, s25, 1')
    a('s_add_u32 s33, s33, s30')
    a('s_min_u32 s41, s33, 27')
    a(f'v_lshrrev_b32 v{T1}, 1, v{G}')
    a(f'v_and_b32 v{T2}, 1, v{G}')
    a('s_and_b32 s30, s22, 1')
    a('s_lshl_b32 s30, s30, 14')
    a(f's_add_u32 s30, s30, {L_U}')
    a(f'v_add_u32 v{A_UR}, s30, v1')
    a('s_lshl_b32 s30, s41, 12')
    a(f's_add_u32 s30, s30, {R_M}')
    a(f'v_add_u32 v{A_ML}, s30, v1')
    a(f'v_lshrrev_b32 v{A_MEMST}, 3, v{C}')
    a(f'v_lshlrev_b32 v{A_MEMST}, 7, v{A_MEMST}')
    a(f'v_lshl_add_u32 v{A_MEMST}, v{T2}, 6, v{A_MEMST}')
    a(f'v_lshl_add_u32 v{A_MEMST}, v{T1}, 4, v{A_MEMST}')
    a(f'v_and_b32 v{T3}, 1, v{C}')
    a(f'v_lshl_add_u32 v{A_MEMST}, v{T3}, 5, v{A_MEMST}')
    a(f'v_bfe_u32 v{A_PERM}, v{C}, 1, 2')
    a(f'v_lshl_add_u32 v{A_MEMST}, v{A_PERM}, 2, v{A_MEMST}')
    a('s_lshl_b32 s30, s41, 8')
    a(f's_add_u32 s30, s30, {R_MEM}')
    a(f'v_add_u32 v{A_MEMST}, s30, v{A_MEMST}')
    a(f'v_cmp_eq_u32 vcc, 1, v{T3}')
    a(f'v_mov_b32 v{A_PERM}, 0x01000504')
    a(f'v_mov_b32 v{T3}, 0x07060302')
    a(f'v_cndmask_b32 v{A_PERM}, v{A_PERM}, v{T3}, vcc')
    a(f'v_and_b32 v{T2}, 31, v0')
    a(f'v_lshlrev_b32 v{T2}, 4, v{T2}')
    a(f'v_lshrrev_b32 v{T1}, 5, v0')
    a('s_lshr_b32 s30, s25, 1')
    a('s_lshl_b32 s30, s30, 9')
    a(f's_add_u32 s30, s30, {R_M}')
    a('s_and_b32 s31, s25, 1')
    a(f'v_lshl_add_u32 v6, v{T1}, 13, v{T2}')
    a('s_lshl_b32 s32, s31, 12')
    a('s_add_u32 s32, s32, s30')
    a('v_add_u32 v6, s32, v6')
    a(f'v_lshl_add_u32 v{A_MST}, v{T1}, 12, v{T2}')
    a('s_lshl_b32 s31, s31, 3')
    a('s_add_u32 s30, s30, s31')
    a('s_mul_i32 s31, s22, 28672')
    a('s_add_u32 s30, s30, s31')
    a(f'v_add_u32 v{A_MST}, s30, v{A_MST}')
    a('s_lshl_b32 s32, s25, 8')
    a(f's_add_u32 s32, s32, {R_M}')
    a(f'v_lshlrev_b32 v{A_CP}, 12, v{G}')
    a(f'v_lshl_add_u32 v{A_CP}, v{C}, 4, v{A_CP}')
    a(f'v_add_u32 v{A_CP}, s32, v{A_CP}')
    a(f'v_lshlrev_b32 v{A_TW}, 3, v0')
    a('s_mul_i32 s32, s22, 1792')
    a(f's_add_u32 s32, s32, {L_MS}')
    a(f'v_add_u32 v{A_TW}, s32, v{A_TW}')
    for r in range(4): a(f'v_mov_b32 v{NEG+r}, -1')
    a('v_mov_b32 v115, s20')
    a('v_min_u32 v7, 7, v0')
    a('v_lshlrev_b32 v7, 2, v7')
    a('s_cmp_ge_u32 s22, 2')
    a(f's_cbranch_scc1 {name}_npv')
    a(f's_and_b32 s30, s41, {NREP-1}')
    a('s_lshl_b32 s30, s30, 8')
    a(f's_add_u32 s30, s30, {R_FP}')
    a(f'v_min_u32 v{A_FL}, 15, v0')
    a(f'v_lshlrev_b32 v{A_FL}, 2, v{A_FL}')
    a(f'v_add_u32 v{A_FL}, s30, v{A_FL}')
    a.label(f'{name}_npv')
    a('s_lshl_b32 s30, s41, 2')
    a(f's_add_u32 s30, s30, {R_FM}')
    a(f'v_lshlrev_b32 v{A_FST}, 8, v0')
    a(f'v_add_u32 v{A_FST}, s30, v{A_FST}')
    sbase(52, WS_M2 - R_M - 28*4096)
    sbase(58, WS_MEM2)
    sbase(10, WS_RING + 4*RS)
    a('s_lshl_b32 s32, s33, 10')
    a(f's_add_u32 s32, s32, {WS_XK + 32768}')
    sbase(54, 's32')
    a('s_min_u32 s30, s25, 13')
    a('s_lshl_b32 s31, s30, 5')
    a(f's_add_u32 s31, s31, {WS_FLG + F_U}')
    sbase(12, 's31')
    a('s_mov_b32 s37, s31')
    a('s_lshl_b32 s32, s33, 2')
    a(f's_add_u32 s32, s32, {WS_FLG + F_M - 256}')
    sbase(14, 's32')
    a('s_lshl_b32 s30, s30, 15')
    a('s_lshl_b32 s31, s22, 13')
    a('s_add_u32 s30, s30, s31')
    a(f's_add_u32 s30, s30, {WS_U}')
    a(f's_add_u32 s32, s31, {WS_RING}')
    a('s_cmp_ge_u32 s25, 14')
    a('s_cselect_b32 s30, s32, s30')
    a(f's_cselect_b32 s39, 0, {28*16384}')
    sbase(56, 's30')
    a(f's_add_u32 s35, s31, {L_U}')
    def dma_u(i):
        return [f's_add_u32 m0, s35, {4096*(i//4)}', f'global_load_lds_dwordx4 {"v1" if i < 4 else "v3"}, s[56:57] offset:{1024*(i%4)} sc1']
    if merged:
        a('s_waitcnt vmcnt(0)')
        a('v_lshrrev_b32 v20, 4, v1')
        lpp = a.newlabel('pp')
        a(f's_cmp_lg_u32 {role}, 31')
        a(f's_cbranch_scc1 {lpp}')
        a('s_cmp_lg_u32 s22, 0')
        a(f's_cbranch_scc1 {lpp}')
        a('v_lshlrev_b32 v116, 4, v1')
        a(f'v_add_u32 v116, {WS_FLG + F_PROG}, v116')
        a('v_add_u32 v115, 1, v115')
        a('s_mov_b64 exec, 0xffff')
        a('global_store_dword v116, v115, s[4:5] sc1')
        a('s_mov_b64 exec, -1')
        a.label(lpp)
        with WgWait(a):
            wait_flags(a, name, 's37', 8, lane='v20', va=16, sleep=4)
            a('s_add_u32 s37, s37, 448')
            wait_flags(a, name, 's37', 8, lane='v20', va=16, sleep=4)
    for i in range(8):
        for o in dma_u(i): a(o)
    sadd64(a, 56, 's39'); sadd64(a, 12, 896)
    a('s_xor_b32 s35, s35, 0x8000')
    a.label(f'{name}_go')
    for r in range(28): a(f'v_mov_b32 v{ACC+r}, 0')
    a('s_waitcnt vmcnt(0) lgkmcnt(0)')
    if STAMPS:
        a('s_mov_b32 s74, s24'); a('s_memrealtime s[88:89]'); a('s_waitcnt lgkmcnt(0)')
    a('s_lshl_b32 s30, s26, 2')
    a('s_add_u32 s30, s30, s22')
    if merged:
        a('s_cmp_lt_u32 s21, 32')
        a('s_cselect_b32 s31, 8, 0')
        a('s_add_u32 s30, s30, s31')
    for k in range(16 if merged else 8):
        a(f's_cmp_eq_u32 s30, {k}')
        a(f's_cbranch_scc1 {name}_{"fs"[k//8]}{"sv"[(k//4)%2]}{k%4}_entry')

    def gaddr(off):
        if off < 4096: return 'v1', off
        if off < 8192: return 'v3', off - 4096
        return 'v4', off - 8192

    def gen_wave(kind, w, st):
        tag = f'{name}_{"s" if st else "f"}{kind}{w}'
        own = [2*w, 2*w+1, 2*w+2] if w < 3 else [6, 0, 1]
        wr = own[:2] if w < 3 else own[:1]
        others = [t for t in range(7) if t not in own]
        pvw = kind == 'v' and w < 2
        poller = (w == 1) if kind == 's' else (w == 2)
        SLOW = []
        L = Cnt(); V = Cnt()
        def emit(op):
            if isinstance(op, str): a(op); return
            text, k, tg = op
            if k == 'wl': a(f's_waitcnt lgkmcnt({L.need(text)})'); return
            if k == 'wv': a(f's_waitcnt vmcnt({V.need(text)})'); return
            a(text)
            (L if k == 'l' else V).issue(tg)
        def smf(j, t):
            a(f'v_smfmac_f32_16x16x64_bf16 {vr(ACC+4*j,4)}, {vr(MA+4*t,4)}, {W(j,t)}, v{IDX}')
        def rest_adv():
            a(f's_add_u32 s30, s38, {WS_RING}')
            a('s_add_u32 s50, s4, s30')
            a('s_addc_u32 s51, s5, 0')
            a(f's_add_u32 s38, s38, {RS}')
            a(f's_cmp_eq_u32 s38, {4*RS}')
            a('s_cselect_b32 s38, 0, s38')
            if kind == 'v':
                if w >= 2:
                    sadd64(a, 54, 32768); sadd64(a, 58, 7168)
                    if merged: sadd64(a, 12, 448)
                else:
                    a(f'v_xor_b32 v{A_UR}, 0x8000, v{A_UR}')
            else:
                sadd64(a, 8, 28*16384)
            for r in range(28): a(f'v_mov_b32 v{ACC+r}, 0')
        def mem_loads(em=True):
            for n, t in enumerate(own):
                va, im = gaddr(1024*t)
                tx = f'global_load_dwordx4 {vr(MA+4*t,4)}, {va}, s[44:45] offset:{im} sc1'
                if em: emit((tx, 'v', f'm{t}'))
                else: a(tx)
                if n < 2 and em and ENV('MSP', 1): a(f's_nop {ENV("MSPN", 3)}')
        def kreg(k, kt):
            if k == 1: return MA + 4*own[kt]
            if k == 3: return [TBZ+2, CV+2][kt]
            return {0: K0, 2: K2}[k] + 4*kt
        def xk_all():
            if ENV('NOXK', 0): return
            for k in (0, 1, 2, 3):
                for kt in range(2):
                    va = "v1" if kt == 0 else "v3"
                    if k == 1:
                        a(f's_mov_b32 m0, {L_K1 + 2048*w + 1024*kt - 1024}')
                        a(f'global_load_lds_dwordx4 {va}, s[54:55] offset:1024')
                    else:
                        n = 2 if k == 3 else 4
                        a(f'global_load_dwordx{n} {vr(kreg(k,kt),n)}, {va}, s[54:55] offset:{1024*k}')
            sadd64(a, 54, 32768)
        cps = {2: [0, 1, 2, 3], 3: [4, 5, 6]}.get(w, []) if kind == 'v' else []
        CPB, CP2 = 64, 80
        def stage_reads():
            for n, i in enumerate(cps):
                a(f'ds_read_b128 {vr(CPB+4*n,4)}, v1 offset:{L_MS + 1024*i}')
                a(f'ds_read_b128 {vr(CP2+4*n,4)}, v1 offset:{L_MEM + 1024*i}')
            a('s_waitcnt lgkmcnt(0)')
        def mem2_copy():
            l2 = a.newlabel('nm2')
            a('s_cmp_lg_u32 s25, 15')
            a(f's_cbranch_scc1 {l2}')
            for n, t in enumerate(cps):
                va, im = gaddr(1024*t)
                a(f'global_store_dwordx4 {va}, {vr(MA+4*t,4)}, s[58:59] offset:{im} sc1')
            a.label(l2)
        a.label(f'{tag}_loop')
        if poller: flag_poll(a, tag, FR=(96, 97, 98, 99, 117, 118)[:ENV('NMP', 5)], gap=ENV('MGAP', 11))
        a('s_barrier')
        if not pvw: cstamp(a, 5, 31)
        a.label(f'{tag}_mem')
        DIRECT = kind == 's' and ENV('DIRECT', 1)
        if DIRECT:
            others.sort(key=lambda t: (t - own[0]) % 7)
            def mld(t):
                va, im = gaddr(1024*t)
                return (f'global_load_dwordx4 {vr(MA+4*t,4)}, {va}, s[44:45] offset:{im} sc1', 'v', f'm{t}')
            seq = own + others
            NPRE = ENV('NPRE', 4)
            for n in range(NPRE):
                emit(mld(seq[n]))
                if n < NPRE - 1: a(f's_nop {ENV("DSP", 11)}')
            need = sorted(set(range((14*w)//8, (14*w+13)//8 + 1)))
            def pw(t): return (f'ds_write_b128 v1, {vr(MA+4*t,4)} offset:{L_MEM + 3072*w + 1024*(t - need[0])}', 'l', f'pw{t}')
            fl = {}
            for n in range(NPRE, 7): fl.setdefault((0, 2*(n-NPRE)+1), []).append(mld(seq[n]))
            for p in range(3):
                if own[p] in need: fl.setdefault((p, 0), []).append(pw(own[p]))
            for p in range(3):
                emit((f'm{own[p]}', 'wv', None))
                if p == 0:
                    cstamp(a, 0); cstamp(a, 6, 31)
                if p == 2: break
                for j in range(7):
                    smf(j, own[p])
                    for o in fl.get((p, j), []): emit(o)
            cstamp(a, 1)
            late_w = [t for t in need if t not in own[:2]]
        else:
            mem_loads()
            if kind == 'v':
                a('s_barrier')
                if pvw:
                    lk = a.newlabel('w0s')
                    a('s_cmp_eq_u32 s36, 0')
                    a(f's_cbranch_scc1 {lk}')
                    rest_adv()
                    a.label(lk)
                NU0 = ENV('NU0', 4)
                uq = [] if ENV('NOU', 0) else [dma_u(i) for i in range(8)]
                for _ in range(NU0):
                    if uq:
                        m_, d_ = uq.pop(0); a(m_); emit((d_, 'v', 'u'))
            a.label(f'{tag}_got')
            chk = max_ops([MA+4*t+r for t in own[:2] for r in range(4)], TMP)
            fill0 = {0: [(f'm{own[1]}', 'wv', None)] + ([(f'ds_write_b128 v1, {vr(MA+4*wr[1],4)} offset:{L_MEM + 1024*wr[1]}', 'l', 'w1')] if len(wr) > 1 else []),
                     1: [chk[0]], 2: [chk[1]], 3: [chk[2]], 4: [chk[3]], 5: [f'v_cmp_eq_u32 vcc, -1, v{TMP}'], 6: [f's_cbranch_vccnz {tag}_redo']}
            emit((f'm{own[0]}', 'wv', None))
            cstamp(a, 0)
            if not pvw: cstamp(a, 6, 31)
            emit((f'ds_write_b128 v1, {vr(MA+4*wr[0],4)} offset:{L_MEM + 1024*wr[0]}', 'l', 'w0'))
            for j in range(7):
                smf(j, own[0])
                for o in fill0[j]: emit(o)
            a.label(f'{tag}_cont')
            smf(0, own[1])
            pre = []
            if kind == 'v':
                pre += uq
                if pvw:
                    pre.append([f'global_store_dword v{A_MEMST}, v{NEG}, s[10:11] {st}', f's_mov_b64 exec, {RMASK}', f'global_store_dword v{A_FST}, v{NEG}, s[10:11] {st}', 's_mov_b64 exec, -1'])
            c2 = MA + 4*own[2]
            for j in range(1, 7):
                smf(j, own[1])
                if pre:
                    ops = pre.pop(0)
                    for o in ops:
                        a(o)
                        if o.startswith('global_'): V.issue('x')
                if j == 4:
                    emit((f'm{own[2]}', 'wv', None))
                    a(f'v_max3_u32 v{TMP}, v{c2}, v{c2+1}, v{c2+2}')
                if j == 5: a(f'v_max_u32 v{TMP}, v{TMP}, v{c2+3}')
                if j == 6: a(f'v_cmp_eq_u32 vcc, -1, v{TMP}')
            a('s_waitcnt lgkmcnt(0)'); L.reset()
            a('s_barrier')
            a(f's_cbranch_vccnz {tag}_fix2')
            a.label(f'{tag}_fix2r')
            if not pvw: cstamp(a, 1)
            for t in others: emit((f'ds_read_b128 {vr(MA+4*t,4)}, v1 offset:{L_MEM + 1024*t}', 'l', f'r{t}'))
        F = {}
        def add(sl, ops): F[sl] = F.get(sl, []) + list(ops)
        if kind == 's':
            def cvt_write(j):
                return [f'v_cvt_pk_bf16_f32 v{CV}, v{ACC+4*j}, v{ACC+4*j+1}',
                        f'v_cvt_pk_bf16_f32 v{CV+1}, v{ACC+4*j+2}, v{ACC+4*j+3}',
                        (f'ds_write_b64 v{A_TW}, {vr(CV,2)} offset:{512*j}', 'l', f'cw{j}')]
            def tbr(k): return TB + 4*(k % 2) if k < 3 else TBZ
            def s_reads(k):
                o = [(f'ds_read_b64_tr_b16 {vr(tbr(k),2)}, v{A_TR} offset:{1024*k}', 'l', f'sr{k}')]
                if k < 3: o.append((f'ds_read_b64_tr_b16 {vr(tbr(k)+2,2)}, v{A_TR} offset:{1024*k+512}', 'l', f'sr{k}'))
                return o
            def kmr(k): return KM0 if k % 2 == 0 else KM1
            def km_read(k):
                if k == 3: return (f'ds_read_b64 {vr(kmr(k),2)}, v{A_MK} offset:{512*k}', 'l', f'km{k}')
                return (f'ds_read2_b64 {vr(kmr(k),4)}, v{A_MK} offset0:{64*k} offset1:{64*k+32}', 'l', f'km{k}')
            def s_mfma(k, fill=()):
                fill = list(fill)
                deps = [f'sr{k}', f'km{k}'] + (['k1'] if k == 1 else [])
                a(f's_waitcnt lgkmcnt({min(L.need(d) for d in deps)})')
                for kt in range(3):
                    acc = vr(SACC+4*kt, 4)
                    src = kreg(k, kt) if kt < 2 else kmr(k)
                    if k == 3: a(f'v_mfma_f32_16x16x16_bf16 {acc}, {vr(src,2)}, {vr(tbr(k),2)}, {acc}')
                    else: a(f'v_mfma_f32_16x16x32_bf16 {acc}, {vr(src,4)}, {vr(tbr(k),4)}, {acc if k else 0}')
                    if fill:
                        for o in fill.pop(0): emit(o)
            assert DIRECT
            f2 = [[(f'ds_read_b128 {vr(kreg(1,0),4)}, v1 offset:{L_K1 + 2048*w}', 'l', 'k1')],
                  [(f'ds_read_b128 {vr(kreg(1,1),4)}, v1 offset:{L_K1 + 2048*w + 1024}', 'l', 'k1')]]
            if own[2] in late_w: f2.insert(0, [pw(own[2])])
            for j in range(7):
                smf(j, own[2])
                if f2:
                    for o in f2.pop(0): emit(o)
            for n, t in enumerate(others):
                if t in late_w: add((0, n), [pw(t)])
            add((1, 0), [km_read(0)]); add((2, 0), [km_read(1)])
            for j in range(1, 7):
                cw = cvt_write(j-1)
                add((j, 1), [cw[0]]); add((j, 2), [cw[1]]); add((j, 3), [cw[2]])
            add((3,0), s_reads(0)); add((5,0), s_reads(1))
            for j in range(7):
                for n, t in enumerate(others):
                    if j == 0: emit((f'm{t}', 'wv', None))
                    smf(j, t)
                    for o in F.get((j, n), []): emit(o)
                if j == 4: s_mfma(0, [[], [], [km_read(2)]])
            cstamp(a, 2)
            cw6 = cvt_write(6)
            s_mfma(1, [s_reads(2), [cw6[0]], [cw6[1], cw6[2]] + s_reads(3) + [km_read(3)]])
            s_mfma(2)
            s_mfma(3)
            for kt in range(3):
                a(f'ds_write_b128 v{A_SW}, {vr(SACC+4*kt,4)} offset:{64*kt}')
                if kt == 0: a(f'v_cmp_u_f32 vcc, v{SACC}, v{SACC}')
            a(f's_cbranch_vccnz {tag}_redo')
            a.label(f'{tag}_cont')
            a('s_waitcnt lgkmcnt(0)'); L.reset()
            a('s_barrier')
            cstamp(a, 3)
            SR = 8
            for i in range(8):
                emit((f'ds_read_b64 {vr(SR+2*i,2)}, v{A_SR} offset:{3328*(i//2) + 1664*(i%2)}', 'l', f's{i}'))
            a('s_mov_b32 s30, 0x42800000')
            def pflag():
                if w == 0:
                    a(f's_mov_b64 exec, {RMASK}')
                    a(f'global_store_dword v{A_FST}, v{IDX}, s[46:47] {st}')
                    a('s_mov_b64 exec, -1')
            PF = ENV('PFLAG', 2)
            if PF == -1: pflag()
            def pk(d, x, y): a(f'v_pk_add_f32 {vr(SR+d,2)}, {vr(SR+x,2)}, {vr(SR+y,2)}')
            emit(('s1', 'wl', None)); pk(0, 0, 2)
            emit(('s3', 'wl', None)); pk(4, 4, 6)
            if PF == -3: pflag()
            emit(('s5', 'wl', None)); pk(8, 8, 10); pk(0, 0, 4)
            emit(('s7', 'wl', None)); pk(12, 12, 14); pk(0, 0, 8); pk(0, 0, 12)
            if PF == -2: pflag()
            m, t = SR+4, SR+5
            a(f'v_max_f32 v{m}, |v{SR}|, |v{SR+1}|')
            a(f'v_exp_f32 v{SR+2}, v{SR}')
            a(f'v_cmp_nge_f32 vcc, s30, v{m}')
            a(f'v_exp_f32 v{SR+3}, v{SR+1}')
            a('s_and_b64 vcc, vcc, s[42:43]')
            a(f's_cbranch_vccnz {tag}_smax')
            a.label(f'{tag}_smax_ret')
            a(f'v_add_f32 v{m}, v{SR+2}, v{SR+3}')
            a(f'v_cndmask_b32 v{m}, 0, v{m}, s[42:43]')
            if PF == 0: pflag()
            def slow_max():
                a.label(f'{tag}_smax')
                a(f'v_mov_b32 v{SR+16}, 0xff800000')
                a(f'v_max_f32 v{m}, v{SR}, v{SR+1}')
                a(f'v_cndmask_b32 v{m}, v{SR+16}, v{m}, s[42:43]')
                for ror in (8, 4, 2, 1):
                    a(f'v_max_f32_dpp v{m}, v{m}, v{m} row_ror:{ror} row_mask:0xf bank_mask:0xf')
                a(f'v_mov_b32 v{t}, v{m}')
                a(f'v_permlane16_swap_b32 v{m}, v{t}')
                a(f'v_max_f32 v{m}, v{m}, v{t}')
                a(f'v_sub_f32 v{SR+2}, v{SR}, v{m}')
                a(f'v_sub_f32 v{SR+3}, v{SR+1}, v{m}')
                a(f'v_exp_f32 v{SR+2}, v{SR+2}')
                a(f'v_exp_f32 v{SR+3}, v{SR+3}')
                a(f's_branch {tag}_smax_ret')
            SLOW.append(slow_max)
            for ror in (8, 4, 2, 1):
                a(f'v_add_f32_dpp v{m}, v{m}, v{m} row_ror:{ror} row_mask:0xf bank_mask:0xf')
                if PF == 1 and ror == 4: pflag()
            a(f'v_mov_b32 v{t}, v{m}')
            if PF == 2: pflag()
            a(f'v_permlane16_swap_b32 v{m}, v{t}')
            a(f'v_add_f32 v{m}, v{m}, v{t}')
            a(f'v_rcp_f32 v{m}, v{m}')
            a(f'v_mul_f32 v{SR}, v{SR+2}, v{m}')
            a(f'v_mul_f32 v{SR+1}, v{SR+3}, v{m}')
            a(f'v_cvt_pk_bf16_f32 v{SR}, v{SR}, v{SR+1}')
            a('s_mov_b64 exec, s[42:43]')
            a(f'global_store_dword v{A_PST}, v{SR}, s[46:47] {st}')
            a('s_mov_b64 exec, -1')
            if PF == 3: pflag()
            cstamp(a, 4)
            xk_all()
            a(f'v_mov_b32 v{CV}, -1')
            a(f'global_store_dword v{A_PST}, v{CV}, s[48:49] {st}')
            if w == 0:
                a(f's_mov_b64 exec, {RMASK}')
                a(f'global_store_dword v{A_FST}, v{CV}, s[48:49] {st}')
                a('s_mov_b64 exec, -1')
        else:
            early = list(pre)
            if w >= 2:
                if not ENV('NOXK', 0): early.append([f'global_load_dwordx4 {vr(108,4)}, v1, s[54:55]'])
                if merged and w == 3: early.append(['global_load_dword v116, v7, s[12:13] sc1'])
            for j in range(7):
                smf(j, own[2])
                if early:
                    ops = early.pop(0)
                    if ops == ['MEM2']: mem2_copy()
                    else:
                        for o in ops: a(o)
            assert not early
            sadd64(a, 56, 's39')
            a('s_xor_b32 s35, s35, 0x8000')
            pend = []
            MC = 96
            def m_store(j, single=False):
                X = ACC + 4*j; Y = ACC + 4*(j+1) if not single else ACC
                ops = []
                if single:
                    for r in range(4): ops.append(f'v_mov_b32 v{Y+r}, v{X+r}')
                for r in range(4): ops.append(f'v_permlane32_swap_b32 v{X+r}, v{Y+r}')
                for r in range(4): ops.append(f'v_add_f32 v{X+r}, v{X+r}, v{Y+r}')
                c = MC + 2*((j//2) % 2)
                ops.append(f'v_cvt_pk_bf16_f32 v{c}, v{X}, v{X+1}')
                ops.append(f'v_cvt_pk_bf16_f32 v{c+1}, v{X+2}, v{X+3}')
                ops.append(f'v_add_u32 v{TMP}, {4096*j}, v{A_MST}')
                if single: ops.append('s_mov_b32 exec_hi, 0')
                ops.append(f'global_store_dwordx2 v{TMP}, {vr(c,2)}, s[46:47] {st}')
                if single: ops.append('s_mov_b32 exec_hi, -1')
                return ops
            for j in range(7):
                for n, t in enumerate(others):
                    if j == 0: emit((f'r{t}', 'wl', None))
                    smf(j, t)
                    if n == 1 and j in (2, 4, 6): pend += m_store(j-2)
                    for _ in range(2 if j < 6 else 4):
                        if pend: a(pend.pop(0))
            for o in pend: a(o)
            for o in m_store(6, True): a(o)
            cstamp(a, 2)
            if w >= 2:
                mem2_copy()
                for i in cps:
                    a(f'v_add_u32 v{TMP}, {16384*i}, v6')
                    a(f'global_store_dwordx4 v{TMP}, {vr(NEG,4)}, s[48:49] {st}')
            a('s_cmp_ge_u32 s36, 63')
            a(f's_cbranch_scc1 {tag}_fin')
            if merged and w == 3:
                a('s_waitcnt vmcnt(0)')
                a('v_cmp_ne_u32 vcc, v115, v116')
                a(f's_cbranch_vccnz {tag}_uwait')
                a.label(f'{tag}_uok')
        if pvw:
            skip = f'{tag}_nopv'
            if merged and w == 0:
                a('s_cmp_lg_u32 s33, 30')
                a(f's_cbranch_scc1 {tag}_npp')
                a('v_add_u32 v115, 1, v115')
                a('s_mov_b64 exec, 0xffff')
                a('global_store_dword v116, v115, s[4:5] sc1')
                a('s_mov_b64 exec, -1')
                a.label(f'{tag}_npp')
            a('s_cmp_ge_u32 s33, 28')
            a(f's_cbranch_scc1 {skip}')
            def ubreads():
                for t in range(4):
                    for u in range(2):
                        a(f'ds_read_b128 {vr(UB+8*t+4*u,4)}, v{A_UR} offset:{2048*t+1024*u}')
            ubreads()
            PFR = (108, 109, 110, 111, 116, 117, 118)[:ENV('NPP', 7)]
            def mloads():
                for i in range(4): a(f'global_load_dwordx4 {vr(MB+4*i,4)}, v{A_ML}, s[46:47] offset:{1024*i} sc1')
            MB_ = ENV('MBEH', 1)
            for _ in range(0 if MB_ else ENV('MDLY', 4)): a('s_nop 15')
            if ENV('MST', 0):
                a('s_waitcnt vmcnt(0)'); cstamp(a, 4)
            if not MB_: mloads()
            if ENV('MST', 0):
                a('s_waitcnt vmcnt(0)'); cstamp(a, 3)
            flag_poll(a, tag, FR=PFR, gap=ENV('PGAP', 12))
            cstamp(a, 1)
            a.label(f'{tag}_pld')
            for t in range(10):
                va, im = gaddr(1024*t)
                a(f'global_load_dwordx4 {vr(PA+4*t,4)}, {va}, s[46:47] offset:{im} sc1')
            if MB_: mloads()
            for r in range(4): a(f'v_mov_b32 v{PACC+r}, 0')
            acc = vr(PACC, 4)
            a('s_mov_b64 s[10:11], s[46:47]')
            a.label(f'{tag}_mchk')
            if not MB_:
                for o in max_ops(range(MB, MB+16), TMP): a(o)
                a(f'v_cmp_eq_u32 vcc, -1, v{TMP}')
                a(f's_cbranch_vccnz {tag}_pre')
            a('s_waitcnt lgkmcnt(0)')
            a.label(f'{tag}_pgo')
            MF = ENV('MFLAG', 5)
            for t in range(10):
                a(f's_waitcnt vmcnt({((9 - t) if not MB_ else ((9 - t) + 4 if t < 8 else 2*(9 - t))) + (1 if t > MF else 0)})' + (f' lgkmcnt({2*(7-t)})' if 4 <= t < 8 else ''))
                if t == 0: cstamp(a, 5)
                b = vr(MB+8*(t-8), 8) if t >= 8 else vr(UB+8*(t % 4), 8)
                a(f'v_smfmac_f32_16x16x64_bf16 {acc}, {vr(PA+4*t,4)}, {b}, v{IDX}')
                if t == MF:
                    a(f's_mov_b64 exec, {RMASK}')
                    a(f'global_store_dword v{A_FST}, v{IDX}, s[50:51] {st}')
                    a('s_mov_b64 exec, -1')
                if t < 4:
                    for u in range(2):
                        a(f'ds_read_b128 {vr(UB+8*t+4*u,4)}, v{A_UR} offset:{2048*(t+4)+1024*u}')
            a(f'v_permlane32_swap_b32 v{PACC}, v{PACC+1}')
            a(f'v_permlane32_swap_b32 v{PACC+2}, v{PACC+3}')
            a(f'v_add_f32 v{PACC}, v{PACC}, v{PACC+1}')
            a(f'v_add_f32 v{PACC+2}, v{PACC+2}, v{PACC+3}')
            a(f'v_cmp_u_f32 vcc, v{PACC}, v{PACC+2}')
            a(f'v_cvt_pk_bf16_f32 v{PACC}, v{PACC}, v{PACC+2}')
            a(f's_cbranch_vccnz {tag}_pnan')
            a.label(f'{tag}_pfin')
            a(f'v_mov_b32_dpp v{PACC+1}, v{PACC} quad_perm:[1,0,3,2] row_mask:0xf bank_mask:0xf')
            a(f'v_perm_b32 v{PACC}, v{PACC}, v{PACC+1}, v{A_PERM}')
            a(f'global_store_dword v{A_MEMST}, v{PACC}, s[50:51] {st}')
            cstamp(a, 6)
            a.label(skip)
        a('s_mov_b64 s[48:49], s[46:47]')
        a('s_mov_b64 s[46:47], s[50:51]')
        a(f's_add_u32 s44, s46, {R_MEM}')
        a('s_addc_u32 s45, s47, 0')
        a('s_add_u32 s36, s36, 1')
        if not pvw: rest_adv()
        if kind == 's':
            a('s_cmp_lt_u32 s36, 63')
            a(f's_cbranch_scc1 {tag}_loop')
            a(f's_branch {name}_done')
        else:
            a(f's_branch {tag}_loop')
            a.label(f'{tag}_fin')
            a(f's_branch {name}_done')
        a.label(f'{tag}_entry')
        if kind == 's': xk_all()
        a(f's_branch {tag}_mem')
        for f in SLOW: f()
        if merged and kind == 'v' and w == 3:
            a.label(f'{tag}_uwait')
            a('s_cmp_ge_u32 s36, 61')
            a(f's_cbranch_scc1 {tag}_uok')
            a('global_load_dword v116, v7, s[12:13] sc1')
            a('s_waitcnt vmcnt(0)')
            a('v_cmp_ne_u32 vcc, v115, v116')
            a(f's_cbranch_vccz {tag}_uok')
            a('s_sleep 4')
            a('s_sub_u32 s40, s40, 1')
            a(f's_cbranch_scc0 {tag}_uwait')
            a('s_mov_b32 s40, 0')
            a(f's_branch {tag}_uok')
        if kind == 's':
            a.label(f'{tag}_redo')
            a('s_nop 7')
            if STAMPS: a('s_add_u32 s76, s76, 1')
            a('s_sub_u32 s40, s40, 2000')
            a(f's_cbranch_scc1 {tag}_giveup')
            for r in range(28): a(f'v_mov_b32 v{ACC+r}, 0')
            a('s_waitcnt lgkmcnt(0)')
            a(f's_branch {tag}_mem')
        else:
            a.label(f'{tag}_fix2')
            a(f'ds_read_b128 {vr(MA+4*own[2],4)}, v1 offset:{L_MEM + 1024*own[2]}')
            a('s_waitcnt lgkmcnt(0)')
            a(f's_branch {tag}_fix2r')
            a.label(f'{tag}_redo')
            a('s_nop 7')
            if STAMPS: a('s_add_u32 s76, s76, 1')
            a('s_sub_u32 s40, s40, 1')
            a(f's_cbranch_scc1 {tag}_giveup')
            a('s_waitcnt lgkmcnt(0)')
            mem_loads(False)
            a('s_nop 7')
            for r in range(28): a(f'v_mov_b32 v{ACC+r}, 0')
            a('s_waitcnt vmcnt(0)')
            a(f's_branch {tag}_got')
        a.label(f'{tag}_giveup')
        a('s_mov_b32 s40, 0')
        a(f's_branch {tag}_cont')
        if pvw:
            a.label(f'{tag}_pre')
            if STAMPS: a('s_add_u32 s86, s86, 1')
            mloads()
            a('s_waitcnt vmcnt(0) lgkmcnt(0)')
            a('s_sub_u32 s40, s40, 1')
            a(f's_cbranch_scc0 {tag}_mchk')
            a('s_mov_b32 s40, 0')
            a(f's_branch {tag}_pgo')
            a.label(f'{tag}_pnan')
            for o in max_ops(range(PA, PA+56), TMP): a(o)
            a(f'v_cmp_eq_u32 vcc, -1, v{TMP}')
            a(f's_cbranch_vccz {tag}_pfin')
            if STAMPS: a('s_add_u32 s77, s77, 1')
            a('s_sub_u32 s40, s40, 1')
            a(f's_cbranch_scc1 {tag}_pgive')
            ubreads()
            mloads()
            a('s_waitcnt vmcnt(0)')
            a(f's_branch {tag}_pld')
            a.label(f'{tag}_pgive')
            a('s_mov_b32 s40, 0')
            a(f's_branch {tag}_pfin')
    for st in (('', 'sc1') if merged else ('',)):
        for kind in 'sv':
            for w in range(4): gen_wave(kind, w, st)
    a.label(f'{name}_done')

def gen_k3(a, name='chain_kernel'):
    a(f'.globl {name}\n.p2align 8\n.type {name},@function\n{name}:')
    a('s_cmp_ge_u32 s2, 256')
    a(f's_cbranch_scc1 {name}_end')
    a(f's_load_dwordx2 s[4:5], s[0:1], {KA_WS}')
    a(f's_load_dwordx2 s[6:7], s[0:1], {KA_DBG}')
    stamp_init(a)
    if STAMPS:
        a('s_mov_b32 s76, 0'); a('s_mov_b32 s77, 0'); a('s_mov_b32 s86, 0'); a('s_memrealtime s[78:79]'); a('s_memtime s[82:83]')
    a('s_getreg_b32 s23, hwreg(HW_REG_XCC_ID)')
    a('s_and_b32 s23, s23, 15')
    a('v_lshrrev_b32 v2, 6, v0')
    a('v_readfirstlane_b32 s22, v2')
    a('s_waitcnt lgkmcnt(0)')
    a('s_cmp_lg_u32 s23, 0')
    a(f's_cbranch_scc1 {name}_end')
    a('s_cmp_lg_u32 s22, 0')
    a(f's_cbranch_scc1 {name}_wait')
    a('v_mov_b32 v1, 0')
    a('v_mov_b32 v2, 1')
    a('s_mov_b64 exec, 1')
    a('global_atomic_add v3, v1, v2, s[6:7] sc0')
    a('s_waitcnt vmcnt(0)')
    a(f'v_mov_b32 v1, {L_MISC}')
    a('ds_write_b32 v1, v3')
    a('s_waitcnt lgkmcnt(0)')
    a('s_mov_b64 exec, -1')
    a.label(f'{name}_wait')
    a('s_barrier')
    a(f'v_mov_b32 v1, {L_MISC}')
    a('ds_read_b32 v3, v1')
    a('s_waitcnt lgkmcnt(0)')
    a('v_readfirstlane_b32 s24, v3')
    a('s_cmp_ge_u32 s24, 32')
    a(f's_cbranch_scc1 {name}_end')
    gen_chain(a, name)
    if STAMPS:
        a('s_memrealtime s[80:81]')
        a('s_memtime s[84:85]')
        a('s_waitcnt lgkmcnt(0) vmcnt(0)')
        a('s_mov_b64 exec, 1')
        a('s_lshl_b32 s3, s2, 2')
        a('s_add_u32 s3, s3, s22')
        a('s_lshl_b32 s3, s3, 4')
        a(f's_add_u32 s3, s3, {WS_STAMP + 3*0x20000}')
        a('s_sub_u32 s84, s84, s82')
        a('s_lshl_b32 s86, s86, 4')
        a('s_lshl_b32 s77, s77, 0')
        a('s_lshl_b32 s77, s77, 16')
        a('s_or_b32 s76, s76, s77')
        a('v_mov_b32 v0, s3')
        a('v_mov_b32 v4, s76'); a('v_mov_b32 v5, s86' if ENV('RT', 0) else 'v_mov_b32 v5, s84'); a('v_mov_b32 v6, s78'); a('v_mov_b32 v7, s80')
        a('global_store_dwordx4 v0, v[4:7], s[4:5]')
        a('s_nop 1')
    stamp_end(a, 2, n=9)
    a.label(f'{name}_end')
    a('s_endpgm')
    return dict(name=name, vgpr=256, agpr=256, sgpr=96, grid=256, block=256, lds=LDS_BYTES)
```

```python
from asmlib import *
from layout import *
from k1 import stamp, stamp_end, stamp_init
from k3 import W, sadd64, max_ops

def gen_hs(a, name, head, first, nseg, stride, merged=False):
    st_ld = ''; st_st = 'sc1' if merged else ''
    ws = 's[4:5]'
    ACC, XB, TBB, KA, SACC = 8, 64, 80, 8, 40
    a('v_and_b32 v0, 63, v0')
    a('v_lshlrev_b32 v1, 4, v0')
    a(f's_mul_i32 s27, {head}, 28')
    a('s_mul_i32 s28, s22, 7')
    a('s_add_u32 s27, s27, s28')
    a(f's_mul_i32 s27, s27, {TILE_B}')
    a(f's_add_u32 s27, s27, {WS_AIMG}')
    a('v_add_u32 v2, s27, v1')
    for g in range(49):
        for u in range(2):
            dst = ar(8*g+4*u, 4) if g < 32 else vr(120 + 8*(g-32) + 4*u, 4)
            a(f'global_load_dwordx4 {dst}, v2, {ws} offset:{2048*(g%2) + 1024*u} {st_ld}')
        if g % 2 == 1: a('v_add_u32 v2, 4096, v2')
    a('v_and_b32 v112, 15, v0')
    a('v_lshrrev_b32 v113, 4, v0')
    a('v_add_u32 v3, 4096, v1')
    a('v_lshrrev_b32 v4, 1, v113')
    a('v_lshlrev_b32 v4, 4, v4')
    a('v_and_b32 v5, 1, v113')
    a('v_lshl_add_u32 v4, v5, 3, v4')
    a('v_and_b32 v5, 7, v0')
    a('v_lshl_add_u32 v4, v5, 5, v4')
    a('s_mul_i32 s28, s22, 1792')
    a('v_add_u32 v4, s28, v4')
    a('v_mul_u32_u24 v5, 208, v112')
    a('v_lshl_add_u32 v5, v113, 4, v5')
    a('s_and_b32 s29, s22, 1')
    a('s_mul_i32 s29, s29, 3328')
    a('v_add_u32 v6, s29, v5')
    a('s_mul_i32 s28, s22, 6656')
    a('v_add_u32 v5, s28, v5')
    a('v_lshlrev_b32 v7, 3, v0')
    a('s_and_b32 s29, s22, 1')
    a('s_lshl_b32 s28, s29, 9')
    a('v_add_u32 v7, s28, v7')
    a('s_lshl_b32 s28, s29, 8')
    a('v_lshlrev_b32 v114, 3, v0')
    a('v_add_u32 v114, s28, v114')
    a('v_add_u32 v114, 2048, v114')
    a('s_lshl_b32 s28, s29, 4')
    a('v_add_u32 v115, s28, v112')
    a('v_lshlrev_b32 v116, 2, v113')
    a('v_sub_u32 v115, v115, v116')
    def sb(lo, mul, off, extra=None):
        a(f's_mul_i32 s28, {first}, {mul}')
        a(f's_add_u32 s28, s28, {off}')
        if extra: a(f's_add_u32 s28, s28, {extra}')
        a(f's_add_u32 s{lo}, s4, s28')
        a(f's_addc_u32 s{lo+1}, s5, 0')
    sb(44, 28672, WS_XP)
    a('s_lshl_b32 s30, s22, 13')
    sb(46, 32768, WS_XK, 's30')
    sb(48, 7168, WS_MEM2)
    a(f's_mul_i32 s30, {head}, 2560')
    sb(50, 16*2560, WS_PX, 's30')
    a('s_mov_b32 s36, 0')
    a('s_mov_b32 s40, 1000000')
    a(f's_mov_b32 s37, {first}')
    a('s_waitcnt vmcnt(0)')
    a.label(f'{name}_hsloop')
    def xld(blk, tt):
        j = tt*14 + blk
        return f'global_load_dwordx4 {vr(XB + 8*(blk%2) + 4*tt, 4)}, v{[1,3][(j//4)%2]}, s[52:53] offset:{1024*(j%4)} {st_ld}', j//8
    for k in range(4):
        a(f's_add_u32 s{52+2*k}, s44, {8192*k}')
        a(f's_addc_u32 s{53+2*k}, s45, 0')
    def xl(blk, tt):
        j = tt*14 + blk
        a(f'global_load_dwordx4 {vr(XB + 8*(blk%2) + 4*tt, 4)}, v{[1,3][(j//4)%2]}, s[{52+2*(j//8)}:{53+2*(j//8)}] offset:{1024*(j%4)} {st_ld}')
    for blk in range(2):
        for tt in range(2): xl(blk, tt)
    for blk in range(14):
        t, u = blk // 2, blk % 2
        for tt in range(2):
            rem = 3 if blk < 12 else (3 - (2*(blk-12) + tt))
            a(f's_waitcnt vmcnt({rem})')
            for j in range(7):
                g = 7*j + t
                wv = ar(8*g+4*u, 4) if g < 32 else vr(120 + 8*(g-32) + 4*u, 4)
                acc = vr(ACC + 8*j + 4*tt, 4)
                a(f'v_mfma_f32_16x16x32_bf16 {acc}, {wv}, {vr(XB + 8*u + 4*tt, 4)}, {acc if blk else 0}')
            if blk + 2 < 14: xl(blk+2, tt)
    for tt in range(2):
        for j in range(7):
            o = TBB + 16*tt + 4*(j//2) + 2*(j%2)
            A_ = ACC + 8*j + 4*tt
            a(f'v_cvt_pk_bf16_f32 v{o}, v{A_}, v{A_+1}')
            a(f'v_cvt_pk_bf16_f32 v{o+1}, v{A_+2}, v{A_+3}')
    for kt in range(2):
        for k in range(4):
            n = 2 if k == 3 else 4
            a(f'global_load_dwordx{n} {vr(KA + 16*kt + 4*k, n)}, v{[1,3][kt]}, s[46:47] offset:{1024*k} {st_ld}')
    a.label(f'{name}_hsmem')
    for k in range(4):
        a(f'global_load_dwordx2 {vr(XB + 4*k, 2)}, v4, s[48:49] offset:{512*k} {st_st}')
        if k < 3: a(f'global_load_dwordx2 {vr(XB + 4*k + 2, 2)}, v4, s[48:49] offset:{512*k+256} {st_st}')
    a('s_waitcnt vmcnt(0)')
    if merged:
        for o in max_ops(range(XB, XB+14), 117): a(o)
        a('v_cmp_eq_u32 vcc, -1, v117')
        a(f's_cbranch_vccz {name}_hsok')
        a('s_sleep 2')
        a('s_cmp_ge_u32 s37, 62')
        a(f's_cbranch_scc1 {name}_hss')
        a('s_sleep 16')
        a.label(f'{name}_hss')
        a('s_sub_u32 s40, s40, 1')
        a(f's_cbranch_scc0 {name}_hsmem')
        a('s_mov_b32 s40, 0')
        a.label(f'{name}_hsok')
    for k in range(4):
        for kt in range(3):
            for tt in range(2):
                acc = vr(SACC + 8*kt + 4*tt, 4)
                src = KA + 16*kt + 4*k if kt < 2 else XB + 4*k
                if k < 3: a(f'v_mfma_f32_16x16x32_bf16 {acc}, {vr(src,4)}, {vr(TBB + 16*tt + 4*k, 4)}, {acc if k else 0}')
                else: a(f'v_mfma_f32_16x16x16_bf16 {acc}, {vr(src,2)}, {vr(TBB + 16*tt + 12, 2)}, {acc}')
    a('s_barrier')
    for kt in range(3):
        for tt in range(2):
            a(f'ds_write_b128 v5, {vr(SACC + 8*kt + 4*tt, 4)} offset:{3328*tt + 64*kt}')
    a('s_waitcnt lgkmcnt(0)')
    a('s_barrier')
    a('s_cmp_ge_u32 s22, 2')
    a(f's_cbranch_scc1 {name}_hsnext')
    R = 64
    for wv in range(4):
        for kt in range(3):
            a(f'ds_read_b128 {vr(R + 12*wv + 4*kt, 4)}, v6 offset:{6656*wv + 64*kt}')
    a('s_waitcnt lgkmcnt(0)')
    for i in range(0, 12, 2):
        a(f'v_pk_add_f32 {vr(R+i,2)}, {vr(R+i,2)}, {vr(R+12+i,2)}')
        a(f'v_pk_add_f32 {vr(R+24+i,2)}, {vr(R+24+i,2)}, {vr(R+36+i,2)}')
        a(f'v_pk_add_f32 {vr(R+i,2)}, {vr(R+i,2)}, {vr(R+24+i,2)}')
    a('v_mov_b32 v8, 0xff800000')
    for u in range(2):
        for r in range(4):
            a(f'v_cmp_le_i32 vcc, {16*u + r}, v115')
            a(f'v_cndmask_b32 v{R+4*u+r}, v8, v{R+4*u+r}, vcc')
    a('v_cmp_gt_u32 vcc, 32, v0')
    for r in range(4): a(f'v_cndmask_b32 v{R+8+r}, v8, v{R+8+r}, vcc')
    a(f'v_max3_f32 v9, v{R}, v{R+1}, v{R+2}')
    for i in range(3, 11, 2): a(f'v_max3_f32 v9, v9, v{R+i}, v{R+i+1}')
    a(f'v_max_f32 v9, v9, v{R+11}')
    for sw in ('v_permlane16_swap_b32', 'v_permlane32_swap_b32'):
        a('v_mov_b32 v10, v9')
        a(f'{sw} v9, v10')
        a('v_max_f32 v9, v9, v10')
    for i in range(12):
        a(f'v_sub_f32 v{R+i}, v{R+i}, v9')
        a(f'v_exp_f32 v{R+i}, v{R+i}')
    a(f'v_add_f32 v9, v{R}, v{R+1}')
    for i in range(2, 12): a(f'v_add_f32 v9, v9, v{R+i}')
    for sw in ('v_permlane16_swap_b32', 'v_permlane32_swap_b32'):
        a('v_mov_b32 v10, v9')
        a(f'{sw} v9, v10')
        a('v_add_f32 v9, v9, v10')
    a('v_rcp_f32 v9, v9')
    for i in range(12): a(f'v_mul_f32 v{R+i}, v{R+i}, v9')
    for i in range(6): a(f'v_cvt_pk_bf16_f32 v{12+i}, v{R+2*i}, v{R+2*i+1}')
    a(f'global_store_dwordx2 v7, v[12:13], s[50:51] {st_st}')
    a(f'global_store_dwordx2 v7, v[14:15], s[50:51] offset:1024 {st_st}')
    a('s_mov_b32 exec_hi, 0')
    a(f'global_store_dwordx2 v114, v[16:17], s[50:51] {st_st}')
    a('s_mov_b32 exec_hi, -1')
    a.label(f'{name}_hsnext')
    sadd64(a, 44, stride*28672); sadd64(a, 46, stride*32768); sadd64(a, 48, stride*7168); sadd64(a, 50, stride*16*2560)
    a(f's_add_u32 s37, s37, {stride}')
    a('s_add_u32 s36, s36, 1')
    a(f's_cmp_lt_u32 s36, {nseg}')
    a(f's_cbranch_scc1 {name}_hsloop')

def gen_k4(a, name='px_kernel'):
    a(f'.globl {name}\n.p2align 8\n.type {name},@function\n{name}:')
    a('s_cmp_ge_u32 s2, 256')
    a(f's_cbranch_scc1 {name}_end')
    a(f's_load_dwordx2 s[4:5], s[0:1], {KA_WS}')
    a('v_lshrrev_b32 v2, 6, v0')
    a('v_readfirstlane_b32 s22, v2')
    a('s_and_b32 s24, s2, 7')
    a('s_lshl_b32 s24, s24, 1')
    a('s_bfe_u32 s25, s2, 0x10003')
    a('s_add_u32 s24, s24, s25')
    a('s_lshr_b32 s25, s2, 4')
    a('s_waitcnt lgkmcnt(0)')
    gen_hs(a, name, 's24', 's25', 4, 16)
    a.label(f'{name}_end')
    a('s_endpgm')
    return dict(name=name, vgpr=256, agpr=256, sgpr=90, grid=256, block=256, lds=26624)
```

```python
from asmlib import *
from layout import *
from prep import wait_flags, WgWait

def gen_mjob(a, name, wg='s24'):
    ws = 's[4:5]'
    X, ACC = 16, 80
    a('v_and_b32 v3, 63, v0')
    a(f's_lshl_b32 s29, {wg}, 2')
    a('s_add_u32 s29, s29, s22')
    a('s_mul_i32 s30, s29, 4682')
    a('s_lshr_b32 s30, s30, 16')
    a('s_mul_i32 s31, s30, 14')
    a('s_sub_u32 s31, s29, s31')
    a('s_mov_b32 s40, 2000000')
    with WgWait(a, True): wait_flags(a, name, WS_FLG + F_IMG + 112*16, 448, lane='v3', va=4, sleep=20)
    a('s_mul_i32 s32, s30, 56')
    a('s_lshl_b32 s33, s31, 1')
    a('s_add_u32 s32, s32, s33')
    a(f's_mul_i32 s32, s32, {TILE_B}')
    a(f's_add_u32 s32, s32, {WS_VIMG}')
    a('v_lshlrev_b32 v4, 4, v3')
    a('v_add_u32 v5, s32, v4')
    for sel in range(2):
        for ci in range(2):
            img = 2*ci + sel
            a(f'v_add_u32 v8, {(sel*28+ci)*TILE_B}, v5')
            for blk in range(14):
                if blk % 4 == 0 and blk: a('v_add_u32 v8, 4096, v8')
                a(f'global_load_dwordx4 {ar(56*img+4*blk,4)}, v8, {ws} offset:{1024*(blk%4)}')
    a('v_lshrrev_b32 v6, 5, v3')
    a('v_lshlrev_b32 v6, 8, v6')
    a('v_bfe_u32 v7, v3, 4, 1')
    a('v_lshl_add_u32 v6, v7, 3, v6')
    a('v_and_b32 v7, 7, v3')
    a('v_lshl_add_u32 v6, v7, 4, v6')
    a(f'v_add_u32 v6, {WS_MEM2}, v6')
    a('v_add_u32 v7, 3584, v6')
    a('s_lshl_b32 s32, s33, 12')
    a('s_lshl_b32 s34, s30, 9')
    a('s_add_u32 s32, s32, s34')
    a(f's_add_u32 s32, s32, {WS_M2}')
    a('v_lshlrev_b32 v9, 3, v3')
    a('v_add_u32 v9, s32, v9')
    a('v_add_u32 v10, 4096, v9')
    a('s_lshl_b32 s34, s31, 3')
    a('s_add_u32 s34, s34, s30')
    a('s_lshl_b32 s34, s34, 2')
    a(f's_add_u32 s34, s34, {WS_FLG + F_M}')
    a('v_mov_b32 v11, s34')
    a('v_mov_b32 v12, s20')
    a('s_mov_b32 s36, 0')
    a.label(f'{name}_ml')
    a(f'global_load_dwordx2 v[14:15], v7, {ws} offset:{512*6+128} sc1')
    a('s_waitcnt vmcnt(0)')
    a('v_cmp_eq_u32 vcc, -1, v15')
    a(f's_cbranch_vccz {name}_mg')
    a('s_sleep 3')
    a('s_cmp_ge_u32 s36, 63')
    a(f's_cbranch_scc1 {name}_mss')
    a('s_sleep 14')
    a.label(f'{name}_mss')
    a('s_sub_u32 s40, s40, 1')
    a(f's_cbranch_scc0 {name}_ml')
    a('s_mov_b32 s40, 0')
    a.label(f'{name}_mg')
    for blk in range(14):
        va, o = ('v6', 512*blk) if blk < 7 else ('v7', 512*(blk-7))
        a(f'global_load_dwordx2 {vr(X+4*blk,2)}, {va}, {ws} offset:{o} sc1')
        a(f'global_load_dwordx2 {vr(X+4*blk+2,2)}, {va}, {ws} offset:{o+128} sc1')
    for blk in range(14):
        a(f's_waitcnt vmcnt({2*(13-blk)})')
        a(f'v_swap_b32 v{X+4*blk+1}, v{X+4*blk+2}')
        for img in range(4):
            acc = vr(ACC + 4*img, 4)
            a(f'v_mfma_f32_16x16x32_bf16 {acc}, {vr(X+4*blk,4)}, {ar(56*img+4*blk,4)}, {acc if blk else 0}')
    a(f'v_add_f32 v14, v{ACC}, v{ACC+1}')
    a(f'v_add_f32 v15, v{ACC+2}, v{ACC+3}')
    a('v_cmp_u_f32 vcc, v14, v15')
    a(f's_cbranch_vccz {name}_mk')
    a('s_sub_u32 s40, s40, 16')
    a(f's_cbranch_scc0 {name}_ml')
    a('s_mov_b32 s40, 0')
    a.label(f'{name}_mk')
    for img in range(4):
        A_ = ACC + 4*img
        a(f'v_cvt_pk_bf16_f32 v{96+2*img}, v{A_}, v{A_+1}')
        a(f'v_cvt_pk_bf16_f32 v{97+2*img}, v{A_+2}, v{A_+3}')
    a('s_mov_b32 exec_hi, 0')
    for img in range(4):
        ci, sel = img // 2, img % 2
        a(f'global_store_dwordx2 v{9+ci}, {vr(96+2*img,2)}, {ws} offset:{256*sel} sc1')
    a('s_waitcnt vmcnt(0)')
    a('s_mov_b64 exec, 1')
    a(f'global_store_dword v11, v12, {ws} sc1')
    a('s_mov_b64 exec, -1')
    for r, inc in ((6, 7168), (7, 7168), (9, 28*4096), (10, 28*4096), (11, 448)): a(f'v_add_u32 v{r}, {inc}, v{r}')
    a('s_add_u32 s36, s36, 1')
    a('s_cmp_lt_u32 s36, 64')
    a(f's_cbranch_scc1 {name}_ml')
```

```python
from asmlib import *
from layout import *
from k1 import stamp, stamp_end, stamp_init
from k2 import gen_ugemm, gen_ffn, gen_argmax
from k3 import gen_chain, L_MISC, LDS_BYTES, ENV
from k4 import gen_hs
from prep import gen_img_job, wait_flags, wait_arrivals, get_tag, WgWait, wait_prog
from k6 import gen_mjob
from k5 import gen_out_item, gen_ffnrow, out_setup

NS_REP = 4
import os

def gen_main(a, name='main_kernel'):
    a(f'.globl {name}\n.p2align 8\n.type {name},@function\n{name}:')
    a('s_cmp_ge_u32 s2, 256')
    a(f's_cbranch_scc1 {name}_end')
    a(f's_load_dwordx2 s[4:5], s[0:1], {KA_WS}')
    a(f's_load_dwordx2 s[6:7], s[0:1], {KA_DBG}')
    stamp_init(a)
    if STAMPS:
        a('s_mov_b32 s76, 0'); a('s_mov_b32 s77, 0'); a('s_mov_b32 s86, 0'); a('s_mov_b32 s88, 0'); a('s_memrealtime s[78:79]'); a('s_memtime s[82:83]')
    a('s_memrealtime s[16:17]')
    a('s_getreg_b32 s23, hwreg(HW_REG_XCC_ID)')
    a('s_and_b32 s23, s23, 7')
    if ENV('FAKEXCC', 0) == 1:
        a('s_and_b32 s23, s2, 3'); a('s_add_u32 s23, s23, 1')
    if ENV('FAKEXCC', 0) == 2:
        a('s_mul_i32 s23, s2, 5'); a('s_and_b32 s23, s23, 15'); a('s_min_u32 s23, s23, 5')
    a('v_lshrrev_b32 v2, 6, v0')
    a('v_readfirstlane_b32 s22, v2')
    a('s_waitcnt lgkmcnt(0)')
    a('s_cmp_lg_u32 s22, 0')
    a(f's_cbranch_scc1 {name}_wait')
    a('s_mov_b64 exec, 1')
    a('s_and_b32 s24, s23, 3')
    a('s_lshl_b32 s24, s24, 6')
    a('s_lshr_b32 s25, s23, 2')
    a('s_lshl_b32 s25, s25, 2')
    a('s_add_u32 s24, s24, s25')
    a('v_mov_b32 v1, s24')
    a('v_mov_b32 v2, 1')
    a('global_atomic_add v3, v1, v2, s[6:7] sc0')
    a('s_waitcnt vmcnt(0)')
    a('v_readfirstlane_b32 s24, v3')
    a('v_mov_b32 v1, 0')
    a('s_cmp_lg_u32 s24, 0')
    a(f's_cbranch_scc1 {name}_notag')
    a('s_or_b32 s20, s16, 1')
    a('v_mov_b32 v6, s20')
    a('v_mov_b32 v7, 0')
    a(f'global_atomic_cmpswap v1, v[6:7], s[6:7] offset:{DBG_TAG}')
    a.label(f'{name}_notag')
    a('s_lshl_b32 s25, s23, 5')
    a('s_add_u32 s25, s25, s24')
    a('v_mov_b32 v3, s25')
    a('s_cmp_lt_u32 s24, 32')
    a(f's_cbranch_scc1 {name}_pub')
    a(f'global_atomic_add v3, v1, v2, s[6:7] offset:{DBG_OVF} sc0')
    a('s_mov_b32 s40, 1000000')
    wait_arrivals(a, name + '_o')
    a('v_readfirstlane_b32 s24, v3')
    a('s_mov_b32 s26, 255')
    for x in range(8):
        lx = a.newlabel('ovf')
        a(f'v_readfirstlane_b32 s25, v{8 + 2*(x%4) + x//4}')
        a('s_min_u32 s25, s25, 32')
        a('s_sub_u32 s27, 32, s25')
        a('s_cmp_lt_u32 s24, s27')
        a(f's_cbranch_scc0 {lx}')
        a('s_add_u32 s26, s24, s25')
        a(f's_add_u32 s26, s26, {32*x}')
        a(f's_branch {name}_ovd')
        a.label(lx)
        a('s_sub_u32 s24, s24, s27')
    a.label(f'{name}_ovd')
    a('v_mov_b32 v3, s26')
    a.label(f'{name}_pub')
    a(f'v_mov_b32 v1, {L_MISC}')
    a('ds_write_b32 v1, v3')
    a('s_waitcnt lgkmcnt(0)')
    a('s_mov_b64 exec, -1')
    a.label(f'{name}_wait')
    a('s_barrier')
    a(f'v_mov_b32 v1, {L_MISC}')
    a('ds_read_b32 v2, v1')
    a('s_waitcnt lgkmcnt(0)')
    a('v_readfirstlane_b32 s24, v2')
    a('s_cmp_ge_u32 s24, 32')
    a(f's_cbranch_scc1 {name}_helper')
    gen_chain(a, name + '_c', merged=True)
    a(f's_branch {name}_fin')
    a.label(f'{name}_helper')
    a('s_sub_u32 s24, s24, 32')
    a('v_mov_b32 v250, v0')
    a('s_mov_b32 s38, s24')
    a('s_and_b32 s21, s24, 31')
    a('s_mul_i32 s21, s21, 7')
    a('s_lshr_b32 s25, s24, 5')
    a('s_add_u32 s21, s21, s25')
    a('s_mov_b32 s24, s21')
    a('s_sub_u32 s25, s24, 140')
    a(f's_cmp_ge_u32 s25, {16*NS_REP}')
    a(f's_cbranch_scc1 {name}_nopf')
    a('s_cmp_ge_u32 s22, 3')
    a(f's_cbranch_scc1 {name}_nopf')
    a('s_mul_i32 s25, s25, 2560')
    a(f's_add_u32 s25, s25, {WS_PX}')
    a('v_min_u32 v1, 159, v0')
    a('v_lshlrev_b32 v1, 4, v1')
    a('v_add_u32 v1, s25, v1')
    for r in range(4): a(f'v_mov_b32 v{4+r}, -1')
    for i in range(64 // NS_REP):
        a('global_store_dwordx4 v1, v[4:7], s[4:5] sc1')
        a(f'v_add_u32 v1, {NS_REP*16*2560}, v1')
    a.label(f'{name}_nopf')
    a('s_lshr_b32 s25, s38, 3')
    a('s_mul_i32 s26, s25, 9363')
    a('s_lshr_b32 s26, s26, 16')
    a('s_mul_i32 s27, s26, 7')
    a('s_sub_u32 s27, s25, s27')
    a('s_lshl_b32 s26, s26, 3')
    a('s_and_b32 s25, s38, 7')
    a('s_add_u32 s26, s26, s25')
    a('s_mul_i32 s39, s26, 7')
    a('s_add_u32 s39, s39, s27')
    gen_img_job(a, name, 's39', unit='s21')
    a('s_barrier')
    a('v_mov_b32 v0, v250')
    a('s_mov_b32 s24, s21')
    if ENV('BISECT', 0) == 1 or ENV('NOH', 0): a(f's_branch {name}_fin')
    a('s_cmp_lt_u32 s24, 112')
    a(f's_cbranch_scc1 {name}_hu')
    a('s_cmp_lt_u32 s24, 140')
    a(f's_cbranch_scc1 {name}_hf')
    a(f's_cmp_lt_u32 s24, {140 + 16*NS_REP}')
    a(f's_cbranch_scc1 {name}_hs')
    a(f's_branch {name}_ho')
    a.label(f'{name}_hu')
    gen_ugemm(a, name, 's24', 's22', ENV('UN', 16), 4, st=os.environ.get('UST', 'sc1'), sig=True)
    a(f's_cmp_lt_u32 s24, {ENV("NUO", 28)}')
    a(f's_cbranch_scc0 {name}_fin')
    a(f's_branch {name}_ho')
    a.label(f'{name}_hf')
    if ENV('NOF', 0): a(f's_branch {name}_fin')
    a('s_sub_u32 s24, s24, 112')
    a('s_mov_b32 s40, 1000000')
    a('v_and_b32 v3, 63, v0')
    with WgWait(a): wait_prog(a, name, 1, va=4, sleep=80)
    gen_ffn(a, name, st='sc1')
    gen_mjob(a, name, 's24')
    a(f's_branch {name}_fin')
    a.label(f'{name}_hs')
    if ENV('NOS', 0): a(f's_branch {name}_fin')
    a('s_sub_u32 s24, s24, 140')
    a('s_lshr_b32 s25, s24, 4')
    a('s_and_b32 s24, s24, 15')
    a('s_mov_b32 s40, 1000000')
    a('v_and_b32 v3, 63, v0')
    a('s_mul_i32 s26, s24, 112')
    a(f's_add_u32 s26, s26, {WS_FLG + F_IMG}')
    with WgWait(a, True):
        wait_prog(a, name, 1, va=4, sleep=80)
        wait_flags(a, name, 's26', 28, lane='v3', va=4)
    gen_hs(a, name, 's24', 's25', 64 // NS_REP, NS_REP, merged=True)
    a(f's_branch {name}_fin')
    a.label(f'{name}_ho')
    if ENV('NOO', 0): a(f's_branch {name}_fin')
    a('s_waitcnt vmcnt(0) lgkmcnt(0)')
    a('v_mov_b32 v0, v250')
    a('s_mov_b32 s40, 1000000')
    a('v_and_b32 v3, 63, v0')
    with WgWait(a):
        wait_prog(a, name, 1, va=4, sleep=80)
        wait_flags(a, name, WS_FLG + F_IMG, 896, lane='v3', va=4, sleep=40)
    gen_argmax(a)
    a('s_mov_b32 s40, s27')
    out_setup(a)
    a('s_mov_b32 s42, 2000000')
    a('s_waitcnt lgkmcnt(0)')
    a.label(f'{name}_oloop')
    a('s_waitcnt vmcnt(0)')
    a('s_cmp_lg_u32 s22, 0')
    a(f's_cbranch_scc1 {name}_ow')
    a('s_mov_b64 exec, 1')
    a('v_mov_b32 v2, 0')
    a('v_mov_b32 v3, 1')
    a(f'global_atomic_add v7, v2, v3, s[6:7] offset:{DBG_OT} sc0')
    a('s_waitcnt vmcnt(0)')
    a('ds_write_b32 v2, v7 offset:64')
    a('s_mov_b64 exec, -1')
    a('v_readfirstlane_b32 s26, v7')
    a('s_cmp_ge_u32 s26, 448')
    a(f's_cbranch_scc1 {name}_cwd')
    a('s_mul_i32 s24, s26, 9363')
    a('s_lshr_b32 s24, s24, 16')
    a('s_mul_i32 s25, s24, 7')
    a('s_sub_u32 s25, s26, s25')
    a(f's_mul_i32 s32, s24, {16*2560}')
    a(f's_add_u32 s32, s32, {WS_PX}')
    a('v_add_u32 v2, s32, v130')
    a.label(f'{name}_pw')
    a('global_load_dword v3, v2, s[4:5] sc1')
    a('s_waitcnt vmcnt(0)')
    a('v_cmp_eq_u32 vcc, -1, v3')
    a(f's_cbranch_vccz {name}_pwd')
    a('s_sleep 3')
    a('s_cmp_ge_u32 s24, 61')
    a(f's_cbranch_scc1 {name}_pws')
    a(f's_sleep {ENV("OSLP", 24)}')
    a.label(f'{name}_pws')
    a('s_sub_u32 s42, s42, 1')
    a(f's_cbranch_scc0 {name}_pw')
    a('s_mov_b32 s42, 0')
    a.label(f'{name}_pwd')
    a('s_mul_i32 s30, s24, 448')
    a('s_lshl_b32 s31, s25, 6')
    a('s_add_u32 s30, s30, s31')
    a(f's_add_u32 s30, s30, {WS_FLG + F_U}')
    wait_flags(a, name, 's30', 16, va=140, budget='s42')
    a(f's_add_u32 s30, s30, {F_M - F_U}')
    wait_flags(a, name, 's30', 16, va=140, sleep=4, budget='s42')
    a.label(f'{name}_cwd')
    a('s_waitcnt lgkmcnt(0)')
    a.label(f'{name}_ow')
    a('s_barrier')
    a('v_mov_b32 v2, 0')
    a('ds_read_b32 v7, v2 offset:64')
    a('s_waitcnt lgkmcnt(0)')
    a('v_readfirstlane_b32 s26, v7')
    a('s_barrier')
    a('s_cmp_ge_u32 s26, 448')
    a(f's_cbranch_scc1 {name}_fin')
    a('s_mul_i32 s24, s26, 9363')
    a('s_lshr_b32 s24, s24, 16')
    a('s_mul_i32 s25, s24, 7')
    a('s_sub_u32 s25, s26, s25')
    gen_out_item(a, name, 's24', 's25', st_ld='sc1', merged=True)
    a(f's_branch {name}_oloop')
    gen_ffnrow(a, name, st_ld='sc1', merged=True)
    a.label(f'{name}_fin')
    if STAMPS:
        a('s_memrealtime s[80:81]')
        a('s_memtime s[84:85]')
        a('s_waitcnt lgkmcnt(0) vmcnt(0)')
        a('s_mov_b64 exec, 1')
        a('s_lshl_b32 s3, s2, 2')
        a('s_add_u32 s3, s3, s22')
        a('s_lshl_b32 s3, s3, 4')
        a(f's_add_u32 s3, s3, {WS_STAMP + 3*0x20000}')
        a('s_sub_u32 s84, s84, s82')
        a('s_lshl_b32 s86, s86, 24')
        a('s_or_b32 s76, s76, s86')
        a('s_lshl_b32 s77, s77, 16')
        a('s_or_b32 s76, s76, s77')
        a('v_mov_b32 v0, s3')
        a('v_mov_b32 v4, s84' if ENV('CLK', 0) else 'v_mov_b32 v4, s76'); a('v_mov_b32 v5, s88'); a('v_mov_b32 v6, s78'); a('v_mov_b32 v7, s80')
        a('global_store_dwordx4 v0, v[4:7], s[4:5]')
        a('s_nop 1')
    stamp_end(a, 2, n=9)
    a.label(f'{name}_end')
    a('s_endpgm')
    return dict(name=name, vgpr=256, agpr=256, sgpr=96, grid=256, block=256, lds=LDS_BYTES)
```

```python
from asmlib import *
from layout import *
from k1 import wave_sum2, stamp
import os
IMGST = os.environ.get('IMGST', 'sc1')

def set_flag(a, off_sgpr_or_imm, vt=1, ws='s[4:5]'):
    a('s_waitcnt vmcnt(0)')
    a(f'v_mov_b32 v{vt}, {off_sgpr_or_imm}')
    a(f'v_mov_b32 v{vt+1}, s20')
    a('s_mov_b64 exec, 1')
    a(f'global_store_dword v{vt}, v{vt+1}, {ws} sc1')
    a('s_mov_b64 exec, -1')

def wait_flags(a, name, base, nwords, lane='v0', va=1, sleep=8, budget='s40', ws='s[4:5]'):
    k = (nwords + 63) // 64
    L = a.newlabel(name + '_wf'); D = a.newlabel(name + '_wd')
    a(f'v_lshlrev_b32 v{va}, 2, {lane}')
    if nwords < 64: a(f'v_min_u32 v{va}, {4*(nwords-1)}, v{va}')
    else: assert nwords % 64 == 0
    a(f'v_add_u32 v{va}, {base}, v{va}')
    a.label(L)
    for i in range(k): a(f'global_load_dword v{va+1+i}, v{va}, {ws} offset:{256*i} sc1')
    a('s_waitcnt vmcnt(0)')
    for i in range(k):
        a(f'v_xor_b32 v{va+1+i}, s20, v{va+1+i}')
        if i: a(f'v_or_b32 v{va+1}, v{va+1}, v{va+1+i}')
    a(f'v_cmp_ne_u32 vcc, 0, v{va+1}')
    a(f's_cbranch_vccz {D}')
    a(f's_sleep {sleep}')
    a(f's_sub_u32 {budget}, {budget}, 1')
    a(f's_cbranch_scc0 {L}')
    a(f's_mov_b32 {budget}, 0')
    a.label(D)

class WgWait:
    def __init__(self, a, inv=False): self.a = a; self.l = a.newlabel('wgw'); self.inv = inv
    def __enter__(self):
        self.a('s_cmp_lg_u32 s22, 0'); self.a(f's_cbranch_scc1 {self.l}')
    def __exit__(self, *x):
        if self.inv:
            self.a('buffer_inv sc1'); self.a('s_waitcnt vmcnt(0)')
        self.a.label(self.l); self.a('s_barrier')

def wait_prog(a, name, need, va=1, sleep=60, budget='s40'):
    L = a.newlabel(name + '_pg'); D = a.newlabel(name + '_pd')
    a('s_and_b32 s3, s2, 15')
    a('s_lshl_b32 s3, s3, 8')
    a(f's_add_u32 s3, s3, {WS_FLG + F_PROG}')
    a(f'v_mov_b32 v{va}, s3')
    a.label(L)
    a(f'global_load_dword v{va+1}, v{va}, s[4:5] sc1')
    a('s_waitcnt vmcnt(0)')
    a(f'v_readfirstlane_b32 s3, v{va+1}')
    a('s_sub_u32 s3, s3, s20')
    a(f's_sub_u32 s3, s3, {need}')
    a('s_cmp_lt_u32 s3, 128')
    a(f's_cbranch_scc1 {D}')
    a(f's_sleep {sleep}')
    a(f's_sub_u32 {budget}, {budget}, 1')
    a(f's_cbranch_scc0 {L}')
    a(f's_mov_b32 {budget}, 0')
    a.label(D)

def get_tag(a, name, v=1):
    L = a.newlabel(name + '_gt'); D = a.newlabel(name + '_gd')
    a(f'v_mov_b32 v{v}, 0')
    a.label(L)
    a(f'global_load_dword v{v+1}, v{v}, s[6:7] offset:{DBG_TAG} sc1')
    a('s_waitcnt vmcnt(0)')
    a(f'v_readfirstlane_b32 s20, v{v+1}')
    a('s_cmp_lg_u32 s20, 0')
    a(f's_cbranch_scc1 {D}')
    a('s_sleep 2')
    a('s_sub_u32 s40, s40, 1')
    a(f's_cbranch_scc0 {L}')
    a('s_mov_b32 s40, 0')
    a.label(D)

def wait_arrivals(a, name):
    L = a.newlabel(name + '_aw'); D = a.newlabel(name + '_ad')
    a('v_mov_b32 v7, 0')
    a.label(L)
    for i in range(4): a(f'global_load_dwordx2 v[{8+2*i}:{9+2*i}], v7, s[6:7] offset:{64*i} sc1')
    a('s_waitcnt vmcnt(0)')
    a('v_add3_u32 v16, v8, v9, v10')
    a('v_add3_u32 v16, v16, v11, v12')
    a('v_add3_u32 v16, v16, v13, v14')
    a('v_add_u32 v16, v16, v15')
    a('v_readfirstlane_b32 s25, v16')
    a('s_cmp_ge_u32 s25, 256')
    a(f's_cbranch_scc1 {D}')
    a('s_sleep 4')
    a('s_sub_u32 s40, s40, 1')
    a(f's_cbranch_scc0 {L}')
    a('s_mov_b32 s40, 0')
    a.label(D)

def gen_img_job(a, name, job='s24', unit='s24'):
    AOP, ACC, BOP = 16, 144, 208
    a(f's_load_dwordx4 s[8:11], s[0:1], {KA_WQ}')
    a(f's_load_dwordx4 s[12:15], s[0:1], {KA_WV}')
    a(f's_mul_i32 s25, {job}, 9363')
    a('s_lshr_b32 s25, s25, 16')
    a('s_mul_i32 s26, s25, 7')
    a(f's_sub_u32 s26, {job}, s26')
    a('s_lshr_b32 s23, s25, 4')
    a('s_and_b32 s25, s25, 15')
    a('v_and_b32 v3, 63, v0')
    a('v_and_b32 v8, 15, v3')
    a('v_lshrrev_b32 v9, 4, v3')
    a('s_waitcnt lgkmcnt(0)')
    a('s_cmp_eq_u32 s23, 1')
    a('s_cselect_b32 s28, s12, s8')
    a('s_cselect_b32 s29, s13, s9')
    a(f's_cselect_b32 s30, {WS_VIMG}, {WS_AIMG}')
    a('s_cselect_b32 s31, 1.0, 0x3db8aa3b')
    a(f's_cbranch_scc1 {name}_stV')
    a('v_lshrrev_b32 v14, 5, v0')
    a('v_and_b32 v15, 31, v0')
    a('s_lshl_b32 s34, s26, 6')
    a('v_add_u32 v1, s34, v14')
    a('v_lshlrev_b32 v1, 13, v1')
    a('s_lshl_b32 s33, s25, 9')
    a('v_lshl_add_u32 v1, v15, 4, v1')
    a('v_add_u32 v1, s33, v1')
    for i in range(8):
        a(f'global_load_dwordx4 {vr(BOP + 4*i, 4)}, v1, s[10:11]')
        if i < 7: a('v_add_u32 v1, 0x10000, v1')
    a('v_mul_u32_u24 v2, 528, v14')
    a('v_lshl_add_u32 v2, v15, 4, v2')
    a('s_mov_b32 s35, 4224')
    a(f's_branch {name}_stD')
    a.label(f'{name}_stV')
    a('v_lshrrev_b32 v14, 3, v0')
    a('v_and_b32 v15, 7, v0')
    a('v_mul_u32_u24 v1, 896, v14')
    a('v_lshl_add_u32 v1, v15, 4, v1')
    a('s_mul_i32 s33, s25, 229376')
    a('s_lshl_b32 s34, s26, 7')
    a('s_add_u32 s33, s33, s34')
    a('v_add_u32 v1, s33, v1')
    for i in range(8):
        a(f'global_load_dwordx4 {vr(BOP + 4*i, 4)}, v1, s[14:15]')
        if i < 7: a('v_add_u32 v1, 28672, v1')
    a('v_mul_u32_u24 v2, 144, v14')
    a('v_lshl_add_u32 v2, v15, 4, v2')
    a('s_mov_b32 s35, 4608')
    a.label(f'{name}_stD')
    LA = 0xA000
    a('s_add_u32 s36, s22, s26')
    a('s_cmp_ge_u32 s36, 7')
    a('s_cselect_b32 s32, 7, 0')
    a('s_sub_u32 s36, s36, s32')
    a('s_add_u32 s37, s36, 4')
    a('s_cmp_ge_u32 s37, 7')
    a('s_cselect_b32 s32, 7, 0')
    a('s_sub_u32 s37, s37, s32')
    a('v_lshlrev_b32 v10, 13, v9')
    a('v_lshl_add_u32 v10, v8, 4, v10')
    a('s_lshl_b32 s33, s25, 9')
    a('v_add_u32 v10, s33, v10')
    a('s_lshl_b32 s32, s36, 19')
    a('s_add_u32 s16, s28, s32')
    a('s_addc_u32 s17, s29, 0')
    a('s_lshl_b32 s32, s37, 19')
    a('s_add_u32 s18, s28, s32')
    a('s_addc_u32 s19, s29, 0')
    def areg(sl, hh, i): return (vr if sl == 0 else ar)((AOP if sl == 0 else 0) + 64*hh + 4*i, 4)
    def aload_ops(sl):
        ops = []
        for qd in range(4):
            ops.append([f's_add_u32 s32, s22, {qd}', 's_and_b32 s32, s32, 3', 's_lshl_b32 s32, s32, 17', 'v_add_u32 v11, s32, v10'])
            for i4 in range(4):
                for hh in range(2):
                    ops.append([f'global_load_dwordx4 {areg(sl, hh, 4*qd + i4)}, v11, s[{16+2*sl}:{17+2*sl}] offset:{256*hh}'])
                if i4 < 3: ops.append(['v_add_u32 v11, 0x8000, v11'])
        return ops
    a('s_cmp_eq_u32 s22, 3')
    a(f's_cbranch_scc1 {name}_skA')
    for l in aload_ops(0):
        for o in l: a(o)
    a(f's_branch {name}_skAd')
    a.label(f'{name}_skA')
    a('s_waitcnt vmcnt(0)')
    a.label(f'{name}_skAd')
    for i in range(8):
        a(f's_waitcnt vmcnt({32 + 7 - i})')
        a(f'ds_write_b128 v2, {vr(BOP + 4*i, 4)}')
        if i < 7: a('v_add_u32 v2, s35, v2')
    a('s_mul_i32 s32, s22, 17408')
    a(f's_add_u32 s32, s32, {LA}')
    a('v_mul_u32_u24 v12, 272, v9')
    a('v_lshl_add_u32 v12, v8, 4, v12')
    a('v_add_u32 v12, s32, v12')
    a('v_lshrrev_b32 v13, 3, v8')
    a('v_lshlrev_b32 v13, 4, v13')
    a('v_bfe_u32 v11, v8, 2, 1')
    a('v_lshl_add_u32 v13, v11, 2, v13')
    a('v_and_b32 v11, 3, v8')
    a('v_add_u32 v13, v13, v11')
    a('v_mul_u32_u24 v13, 272, v13')
    a('v_lshl_add_u32 v13, v9, 4, v13')
    a('v_add_u32 v13, s32, v13')
    a('s_waitcnt lgkmcnt(0)')
    a('s_barrier')
    stamp(a, 3)
    a('s_mov_b32 s40, 1000000')
    get_tag(a, name, v=5)
    a(f's_lshl_b32 s38, {job}, 2')
    a('s_add_u32 s38, s38, s22')
    a('s_lshl_b32 s38, s38, 2')
    a(f's_add_u32 s38, s38, {WS_FLG + F_IMG0}')
    a('s_cmp_lg_u32 s22, 3')
    a(f's_cbranch_scc1 {name}_nx')
    set_flag(a, 's38', vt=5)
    a(f's_cmp_ge_u32 {unit}, 128')
    a(f's_cbranch_scc1 {name}_nx2')
    a('v_mov_b32 v251, v10'); a('v_mov_b32 v252, v12'); a('v_mov_b32 v253, v13')
    a('s_mov_b64 s[44:45], s[16:17]'); a('s_mov_b64 s[46:47], s[18:19]'); a('s_mov_b32 s48, s25'); a('s_mov_b32 s49, s26')
    a(f's_mov_b32 s34, {0xA000 + 3*17408}')
    gen_xprep(a, name, unit, 's34')
    a('v_mov_b32 v10, v251'); a('v_mov_b32 v12, v252'); a('v_mov_b32 v13, v253')
    a('s_mov_b64 s[16:17], s[44:45]'); a('s_mov_b64 s[18:19], s[46:47]'); a('s_mov_b32 s25, s48'); a('s_mov_b32 s26, s49')
    a.label(f'{name}_nx2')
    for l in aload_ops(0):
        for o in l: a(o)
    a.label(f'{name}_nx')
    a('s_mul_i32 s33, s25, 28')
    a('s_lshl_b32 s34, s26, 2')
    a('s_add_u32 s33, s33, s34')
    a('s_mul_i32 s33, s33, 14')
    a('s_lshl_b32 s33, s33, 10')
    a('s_add_u32 s33, s33, s30')
    a('v_lshlrev_b32 v1, 4, v3')
    a('v_add_u32 v1, s33, v1')
    a('s_lshl_b32 s34, s37, 11')
    a('v_add_u32 v15, s34, v1')
    a('s_lshl_b32 s34, s36, 11')
    a('v_add_u32 v1, s34, v1')
    def mainloop(bread, nrd, sl):
        side = aload_ops(1) if sl == 0 else []
        if sl == 0:
            pass
        for hh in range(2):
            if hh == 0: a('s_waitcnt vmcnt(8)' if sl == 1 else 's_waitcnt vmcnt(0)')
            for qd in range(4):
                a(f's_add_u32 s32, s22, {qd}'); a('s_and_b32 s32, s32, 3'); a('s_mul_i32 s32, s32, 4352'); a('v_add_u32 v14, s32, v12')
                for i4 in range(4):
                    a(f'ds_write_b128 v14, {areg(sl, hh, 4*qd + i4)} offset:{1088*i4}')
            OP = AOP + (0 if hh == 0 else 64) if sl == 0 else AOP
            a('s_waitcnt lgkmcnt(0)')
            def rd(kk, buf):
                for q in range(4):
                    a(f'ds_read_b128 {vr(OP + 16*buf + 4*q, 4)}, v13 offset:{(32*(q//2) + 8*(q%2))*272 + 64*kk}')
                bread(4*hh + kk, BOP + 16*buf)
            rd(0, 0)
            for kk in range(4):
                if kk < 3:
                    rd(kk+1, (kk+1) % 2)
                    a(f's_waitcnt lgkmcnt({min(4 + nrd, 15)})')
                else:
                    a('s_waitcnt lgkmcnt(0)')
                for q in range(4):
                    for jn in range(4):
                        acc = vr(ACC + 16*q + 4*jn, 4)
                        a(f'v_mfma_f32_16x16x32_bf16 {acc}, {vr(OP + 16*(kk%2) + 4*q, 4)}, {vr(BOP + 16*(kk%2) + 4*jn, 4)}, {acc if (kk or hh) else 0}')
                        if side and jn % 2 == 1:
                            for o in side.pop(0): a(o)
                if sl == 1 and hh == 0 and kk == 1: set_flag(a, 's38', vt=5)
        assert not side
    def epi():
        a('v_mov_b32 v4, v1')
        for jn in range(4):
            for u in range(2):
                X = ACC + 16*(2*u) + 4*jn; Y = ACC + 16*(2*u+1) + 4*jn
                for r in range(4):
                    a(f'v_mul_f32 v{X+r}, s31, v{X+r}')
                    a(f'v_mul_f32 v{Y+r}, s31, v{Y+r}')
                o = 240 + 4*((2*jn+u) % 2)
                a(f'v_cvt_pk_bf16_f32 v{o}, v{X}, v{X+1}')
                a(f'v_cvt_pk_bf16_f32 v{o+1}, v{Y}, v{Y+1}')
                a(f'v_cvt_pk_bf16_f32 v{o+2}, v{X+2}, v{X+3}')
                a(f'v_cvt_pk_bf16_f32 v{o+3}, v{Y+2}, v{Y+3}')
                a(f'global_store_dwordx4 v4, {vr(o,4)}, s[4:5] offset:{1024*u} {IMGST}')
            if jn < 3: a(f'v_add_u32 v4, {TILE_B}, v4')
    for typ in 'AV':
        if typ == 'A':
            a('s_cmp_eq_u32 s23, 1')
            a(f's_cbranch_scc1 {name}_mV')
            a('v_mul_u32_u24 v2, 528, v8')
            a('v_lshl_add_u32 v2, v9, 4, v2')
            def bread(k, dst):
                for jn in range(4): a(f'ds_read_b128 {vr(dst + 4*jn, 4)}, v2 offset:{8448*jn + 64*k}')
            nrd = 4
        else:
            a.label(f'{name}_mV')
            a('v_lshrrev_b32 v2, 2, v8')
            a('v_lshl_add_u32 v2, v9, 3, v2')
            a('v_mul_u32_u24 v2, 144, v2')
            a('v_and_b32 v14, 3, v8')
            a('v_lshl_add_u32 v2, v14, 3, v2')
            def bread(k, dst):
                for jn in range(4):
                    a(f'ds_read_b64_tr_b16 {vr(dst + 4*jn, 2)}, v2 offset:{4608*k + 32*jn}')
                    a(f'ds_read_b64_tr_b16 {vr(dst + 4*jn + 2, 2)}, v2 offset:{4608*k + 576 + 32*jn}')
            nrd = 8
        mainloop(bread, nrd, 0)
        epi()
        a('s_cmp_eq_u32 s22, 3')
        a(f's_cbranch_scc1 {name}_jd')
        a('v_mov_b32 v1, v15')
        mainloop(bread, nrd, 1)
        epi()
        if typ == 'A': a(f's_branch {name}_jd')
    a.label(f'{name}_jd')
    stamp(a, 1)
    if IMGST == '':
        a('buffer_wbl2 sc1'); a('s_waitcnt vmcnt(0)')
    a(f's_lshl_b32 s33, {job}, 2')
    a('s_add_u32 s33, s33, s22')
    a('s_lshl_b32 s33, s33, 2')
    a(f's_add_u32 s33, s33, {WS_FLG + F_IMG}')
    set_flag(a, 's33')
    stamp(a, 2)

def gen_xprep(a, name, unit, lds_base):
    a(f's_load_dwordx2 s[16:17], s[0:1], {KA_X}')
    a(f's_load_dwordx2 s[18:19], s[0:1], {KA_WR}')
    a(f's_load_dwordx2 s[12:13], s[0:1], {KA_GW}')
    a('v_lshlrev_b32 v1, 4, v3')
    a(f's_mul_i32 s25, {unit}, 14336')
    a('v_add_u32 v2, s25, v1')
    a('v_add_u32 v4, 8192, v2')
    a('v_min_u32 v5, 880, v1')
    a('s_waitcnt lgkmcnt(0)')
    for i in range(14):
        a(f'global_load_dwordx4 {vr(16+4*i,4)}, v{2 if i < 4 or (i < 8) else 4}, s[16:17] offset:{1024*i if i < 4 else (1024*(i-8) if i >= 8 else 0)}' if (i < 4 or 8 <= i < 12) else
          f'global_load_dwordx4 {vr(16+4*i,4)}, v{4 if i < 8 else 6}, s[16:17] offset:{1024*(i-8) if i < 8 else 1024*(i-12)}')
        if i == 3: a('v_add_u32 v6, 4096, v4')
    a('global_load_dwordx4 v[72:75], v5, s[18:19]')
    a('global_load_dwordx4 v[76:79], v5, s[12:13]')
    for i in range(14):
        a(f'v_add_u32 v10, {64*i}, v3')
        a('v_mul_u32_u24 v11, 1171, v10')
        a('v_lshrrev_b32 v11, 16, v11')
        a('v_add_lshl_u32 v10, v10, v11, 4')
        a(f'v_add_u32 v10, {lds_base}, v10')
        a(f's_waitcnt vmcnt({15 - i})')
        a(f'ds_write_b128 v10, {vr(16+4*i,4)}')
    a(f'v_add_u32 v10, {lds_base}, v5')
    a('s_waitcnt vmcnt(0)')
    a(f'ds_write_b128 v10, v[72:75] offset:{16*912}')
    a(f'ds_write_b128 v10, v[76:79] offset:{17*912}')
    a('v_lshrrev_b32 v11, 1, v9')
    a('v_lshlrev_b32 v11, 5, v11')
    a('v_and_b32 v12, 1, v9')
    a('v_lshl_add_u32 v11, v12, 3, v11')
    a(f'v_add_u32 v11, {lds_base}, v11')
    a('v_mul_u32_u24 v12, 912, v8')
    a('v_add_u32 v13, v12, v11')
    a('v_lshl_add_u32 v12, v9, 3, v12')
    a(f'v_add_u32 v12, {lds_base}, v12')
    a(f's_add_u32 s25, s25, {WS_XP}')
    a('v_add_u32 v2, s25, v1')
    a(f's_lshr_b32 s26, {unit}, 1')
    a('s_lshl_b32 s26, s26, 15')
    a(f's_and_b32 s27, {unit}, 1')
    a('s_lshl_b32 s27, s27, 12')
    a('s_add_u32 s26, s26, s27')
    a(f's_add_u32 s26, s26, {WS_XK}')
    a('v_add_u32 v4, s26, v1')
    a('s_waitcnt lgkmcnt(0)')
    for blk in range(14):
        a(f'ds_read2_b64 {vr(16+4*blk,4)}, v13 offset0:{8*blk} offset1:{8*blk+2}')
    for w in range(4):
        for k in range(4):
            o = (224*w + 64*k) // 8
            r = 80 + 16*w + 4*k
            if k < 3: a(f'ds_read2_b64 {vr(r,4)}, v12 offset0:{o} offset1:{o+4}')
            else:
                a(f'ds_read_b64 {vr(r,2)}, v12 offset:{8*o}')
                a(f'v_mov_b32 v{r+2}, 0'); a(f'v_mov_b32 v{r+3}, 0')
    a('s_waitcnt lgkmcnt(0)')
    for w in range(4):
        for k in range(4):
            a(f'global_store_dwordx4 v4, {vr(80+16*w+4*k,4)}, s[4:5] offset:{1024*k} sc1')
        if w < 3: a('v_add_u32 v4, 8192, v4')
    a('v_mov_b32 v14, 0')
    a('v_mov_b32 v15, 0')
    a(f'v_add_u32 v10, {16*912}, v11')
    for blk in range(14):
        x = 16 + 4*blk
        a(f'ds_read2_b64 v[144:147], v10 offset0:{8*blk} offset1:{8*blk+2}')
        a(f'ds_read2_b64 v[148:151], v10 offset0:{114+8*blk} offset1:{114+8*blk+2}')
        for i in range(4):
            a(f'v_lshlrev_b32 v{152+2*i}, 16, v{x+i}')
            a(f'v_and_b32 v{153+2*i}, 0xffff0000, v{x+i}')
        a(f'v_swap_b32 v{x+1}, v{x+2}')
        a(f'global_store_dwordx4 v2, {vr(x,4)}, s[4:5] offset:{1024*(blk%4)} sc1')
        if blk % 4 == 3: a('v_add_u32 v2, 4096, v2')
        a('s_waitcnt lgkmcnt(0)')
        for i in range(4):
            a(f'v_lshlrev_b32 v160, 16, v{144+i}')
            a(f'v_and_b32 v161, 0xffff0000, v{144+i}')
            a(f'v_fmac_f32 v14, v{152+2*i}, v160')
            a(f'v_fmac_f32 v14, v{153+2*i}, v161')
            a(f'v_lshlrev_b32 v160, 16, v{148+i}')
            a(f'v_and_b32 v161, 0xffff0000, v{148+i}')
            a(f'v_mul_f32 v160, v{152+2*i}, v160')
            a(f'v_mul_f32 v161, v{153+2*i}, v161')
            a('v_cvt_pk_bf16_f32 v160, v160, v161')
            a('v_and_b32 v161, 0xffff0000, v160')
            a('v_lshlrev_b32 v160, 16, v160')
            a('v_add_f32 v15, v15, v160')
            a('v_add_f32 v15, v15, v161')
    for sw in ('v_permlane16_swap_b32', 'v_permlane32_swap_b32'):
        a('v_mov_b32 v160, v14'); a('v_mov_b32 v161, v15')
        a(f'{sw} v14, v160'); a(f'{sw} v15, v161')
        a('v_add_f32 v14, v14, v160'); a('v_add_f32 v15, v15, v161')
    a('v_cvt_pk_bf16_f32 v98, v14, v15')
    a('v_lshlrev_b32 v99, 16, v98')
    a('v_ashrrev_i32 v100, 31, v99')
    a('v_or_b32 v100, 0x80000000, v100')
    a('v_xor_b32 v99, v99, v100')
    a('v_and_b32 v99, 0xffff0000, v99')
    a(f's_lshl_b32 s26, {unit}, 4')
    a('v_add_u32 v102, s26, v8')
    a('v_sub_u32 v103, 2047, v102')
    a('v_or_b32 v99, v103, v99')
    a('v_and_b32 v100, 0xffff0000, v98')
    a('v_mul_f32 v100, 0xbfb8aa3b, v100')
    a('v_exp_f32 v100, v100')
    a('v_add_f32 v100, 1.0, v100')
    a('v_rcp_f32 v100, v100')
    a('v_cvt_pk_bf16_f32 v100, v100, v100')
    a('v_and_b32 v100, 0xffff0000, v100')
    a('v_sub_f32 v101, 1.0, v100')
    a('v_cvt_pk_bf16_f32 v101, v101, v101')
    a('v_and_b32 v101, 0xffff0000, v101')
    a('v_lshlrev_b32 v103, 3, v102')
    a(f'v_add_u32 v103, {WS_G}, v103')
    a('v_lshlrev_b32 v102, 2, v102')
    a(f'v_add_u32 v102, {WS_KEY}, v102')
    a('s_mov_b64 exec, 0xffff')
    a('global_store_dword v102, v99, s[4:5] sc1')
    a('global_store_dwordx2 v103, v[100:101], s[4:5] sc1')
    a('s_mov_b64 exec, -1')
    a(f's_lshl_b32 s26, {unit}, 2')
    a(f's_add_u32 s26, s26, {WS_FLG + F_XP}')
    set_flag(a, 's26')

def gen_chain_prep(a, name, role='s24'):
    a(f's_load_dwordx2 s[14:15], s[0:1], {KA_MEM0}')
    a('v_and_b32 v3, 63, v0')
    for r in range(4): a(f'v_mov_b32 v{4+r}, -1')
    a(f's_lshl_b32 s25, {role}, 12')
    a(f's_add_u32 s25, s25, {WS_RING}')
    a('v_lshlrev_b32 v1, 4, v0')
    a('v_add_u32 v1, s25, v1')
    for i in range(6):
        if i == 5:
            a(f's_cmp_ge_u32 {role}, 20')
            a(f's_cbranch_scc1 {name}_rf')
        a('global_store_dwordx4 v1, v[4:7], s[4:5] sc1')
        if i < 5: a('v_add_u32 v1, 0x20000, v1')
    a.label(f'{name}_rf')
    a(f's_lshl_b32 s25, {role}, 12')
    a(f's_add_u32 s25, s25, {WS_MEM2 + 7168}')
    a('v_lshlrev_b32 v1, 4, v0')
    a('v_add_u32 v1, s25, v1')
    for i in range(4):
        if i == 3:
            a(f's_cmp_ge_u32 {role}, 15')
            a(f's_cbranch_scc1 {name}_mf')
        a('global_store_dwordx4 v1, v[4:7], s[4:5] sc1')
        if i < 3: a('v_add_u32 v1, 0x20000, v1')
    a.label(f'{name}_mf')
    a('s_waitcnt lgkmcnt(0)')
    a(f's_cmp_lg_u32 {role}, 0')
    a(f's_cbranch_scc1 {name}_nm0')
    a('v_and_b32 v8, 7, v0')
    a('v_mul_u32_u24 v8, 896, v8')
    a('v_lshrrev_b32 v9, 3, v0')
    a('v_lshl_add_u32 v8, v9, 4, v8')
    a('v_lshlrev_b32 v9, 4, v0')
    a(f'v_add_u32 v9, {WS_MEM2}, v9')
    a('v_add_u32 v10, 4096, v9')
    a('global_load_dwordx4 v[12:15], v8, s[14:15]')
    a('s_waitcnt vmcnt(0)')
    a('global_store_dwordx4 v9, v[12:15], s[4:5] sc1')
    a('s_cmp_eq_u32 s22, 3')
    a(f's_cbranch_scc1 {name}_nm0')
    a('global_load_dwordx4 v[16:19], v8, s[14:15] offset:512')
    a('s_waitcnt vmcnt(0)')
    a('global_store_dwordx4 v10, v[16:19], s[4:5] sc1')
    a('s_nop 1')
    a.label(f'{name}_nm0')
    get_tag(a, name)
    a(f's_lshl_b32 s36, {role}, 2')
    a('s_add_u32 s36, s36, s22')
    a('s_lshl_b32 s36, s36, 2')
    a(f's_add_u32 s36, s36, {WS_FLG + F_XP + 512}')
    set_flag(a, 's36')
    wait_arrivals(a, name)
    a('v_readfirstlane_b32 s21, v8')
```

```python
from asmlib import *
from layout import *
from k1 import stamp, stamp_end, stamp_init
import os
from prep import wait_flags, gen_chain_prep, set_flag, WgWait
ENV = lambda k, d: int(os.environ.get(k, d))

L_MEM, L_T, L_S, L_MISC, L_STASH, L_K1, L_U = 0, 0xC000, 0x6000, 0x9400, 0x9800, 0xA000, 0x10000
L_MS = 0x2000
LDS_BYTES = 0x28000
L_MX, L_W8 = 0x2000, 0x4000
L_UV = 0x18000
MA, ACC, SACC, TB, TBZ, K0, KM0, K2, CV, IDX, KM1 = 8, 36, 64, 76, 84, 88, 96, 100, 108, 112, 116
PA, MB, UB, PACC = 8, 48, 64, 96
LOG2E = 0x3fb8aa3b
A_FST, A_FL, A_TW, A_TR, A_MK, A_SR, A_PST, A_SW = 0, 2, 5, 6, 7, 113, 114, 115
A_XK = 87
A_MST = 114
A_CP = 113
A_UR, A_ML, A_MEMST, A_PERM = 100, 101, 102, 103
FR = (104, 105, 106)
TMP = 119
TMP2 = 99
NREP = ENV('NREP', 4)
RMASK = (1 << NREP) - 1
A_DM = 0

def cstamp(a, i, step=30):
    if not STAMPS or ENV('NOCST', 0): return
    l = a.newlabel('cst')
    a(f's_cmp_lg_u32 s36, {step}')
    a(f's_cbranch_scc1 {l}')
    a(f's_mem{"real" if ENV("RT",0) else ""}time s[{60+2*i}:{61+2*i}]')
    a('s_waitcnt lgkmcnt(0)')
    a.label(l)

def W(j, t):
    g = 7*j + t
    return ar(8*g, 8) if g < 32 else vr(120 + 8*(g-32), 8)

def max_ops(regs, tmp, first=True):
    r = list(regs); out = []
    while r:
        if first:
            if len(r) >= 3: out.append(f'v_max3_u32 v{tmp}, v{r[0]}, v{r[1]}, v{r[2]}'); r = r[3:]
            else: out.append(f'v_max_u32 v{tmp}, v{r[0]}, v{r[1]}'); r = r[2:]
            first = False
        elif len(r) >= 2: out.append(f'v_max3_u32 v{tmp}, v{tmp}, v{r[0]}, v{r[1]}'); r = r[2:]
        else: out.append(f'v_max_u32 v{tmp}, v{tmp}, v{r[0]}'); r = r[1:]
    return out

class Cnt:
    def __init__(self): self.n = 0; self.last = {}
    def reset(self): self.n = 0; self.last = {}
    def issue(self, tag): self.n += 1; self.last[tag] = self.n
    def need(self, tag): return self.n - self.last[tag]

def sadd64(a, lo, imm):
    a(f's_add_u32 s{lo}, s{lo}, {imm}')
    a(f's_addc_u32 s{lo+1}, s{lo+1}, 0')

def flag_ld(r): return f'global_load_dword v{r}, v{A_FL}, s[46:47] sc1'

def flag_poll(a, name, FR=FR, gap=7):
    L = a.newlabel(name + '_fp'); D = a.newlabel(name + '_fd')
    n = len(FR)
    for r in FR[:n-1]:
        a(flag_ld(r))
        a(f's_nop {gap}')
    a.label(L)
    for j in range(n):
        a(flag_ld(FR[(j+n-1) % n]))
        a(f's_waitcnt vmcnt({n-1})')
        a(f'v_cmp_eq_u32 vcc, -1, v{FR[j]}')
        a(f's_cbranch_vccz {D}')
    a('s_sub_u32 s40, s40, 1')
    a(f's_cbranch_scc0 {L}')
    a('s_mov_b32 s40, 0')
    a.label(D)

def gen_chain(a, name, role='s24', merged=False):
    ws = 's[4:5]'
    NEG = 104
    a('s_mov_b32 s40, 2000000')
    if merged:
        gen_chain_prep(a, name, role)
        if ENV('BISECT', 0) == 1: a(f's_branch {name}_done')
        a('v_and_b32 v0, 63, v0')
        stamp(a, 1)
    a('v_and_b32 v0, 63, v0')
    a('v_lshlrev_b32 v1, 4, v0')
    a(f's_and_b32 s25, {role}, 15')
    a(f's_lshr_b32 s26, {role}, 4')
    a('s_lshl_b32 s29, s22, 1')
    a(f's_cmp_ge_u32 {role}, 30')
    a(f's_cbranch_scc1 {name}_spare')
    a('v_min_u32 v5, 27, v0')
    a('v_lshlrev_b32 v5, 2, v5')
    a(f's_mul_i32 s30, {role}, 112')
    a('v_add_u32 v5, s30, v5')
    a('v_lshrrev_b32 v6, 2, v0')
    a('v_mul_u32_u24 v6, 112, v6')
    a('v_and_b32 v7, 3, v0')
    a('v_lshl_add_u32 v6, v7, 2, v6')
    a('s_lshr_b32 s37, s25, 1')
    a('s_lshl_b32 s30, s37, 4')
    a('s_add_u32 s30, s30, 1792')
    a('v_add_u32 v6, s30, v6')
    a('s_cmp_eq_u32 s26, 1')
    a('s_cselect_b64 vcc, -1, 0')
    a('v_cndmask_b32 v5, v5, v6, vcc')
    a('v_lshrrev_b32 v5, 2, v5')
    if merged:
        with WgWait(a, True): wait_flags(a, name, WS_FLG + F_IMG0, 64, lane='v5', va=6, sleep=3)
        stamp(a, 2)
    a('s_cmp_eq_u32 s26, 1')
    a(f's_cbranch_scc1 {name}_vw')
    a('s_mul_i32 s27, s25, 28')
    a('s_mul_i32 s28, s22, 7')
    a('s_add_u32 s27, s27, s28')
    a(f's_mul_i32 s27, s27, {TILE_B}')
    def wloads(w, batch):
        for j in range(7):
            grp = (7*w + j) // 4
            ts = [(grp + i) % 7 for i in (range(3) if batch == 0 else range(3, 7))]
            for t in sorted(ts):
                g = 7*j + t
                off = j*TILE_B + t*2048
                a(f's_add_u32 s30, s27, {off}')
                a('v_add_u32 v2, s30, v1')
                for u in range(2):
                    dst = ar(8*g+4*u, 4) if g < 32 else vr(120 + 8*(g-32) + 4*u, 4)
                    a(f'global_load_dwordx4 {dst}, v2, {ws} offset:{1024*u}')
    for batch in range(2):
        for w in range(4):
            if w < 3:
                a(f's_cmp_lg_u32 s22, {w}')
                a(f's_cbranch_scc1 {name}_wl{batch}{w+1}')
            wloads(w, batch)
            if w < 3:
                a(f's_branch {name}_wld{batch}')
                a.label(f'{name}_wl{batch}{w+1}')
        a.label(f'{name}_wld{batch}')
        if batch == 0 and merged:
            with WgWait(a): wait_flags(a, name, WS_FLG + F_IMG, 64, lane='v5', va=6, sleep=3)
    a(f's_branch {name}_wdone')
    a.label(f'{name}_vw')
    a('s_mul_i32 s27, s22, 112')
    a('s_lshl_b32 s28, s25, 1')
    a('s_add_u32 s27, s27, s28')
    a(f's_mul_i32 s27, s27, {TILE_B}')
    a(f's_add_u32 s27, s27, {WS_VIMG}')
    a(f's_mul_i32 s33, s22, {TILE_B}')
    a(f's_add_u32 s33, s33, {L_W8}')
    for pi in range(7):
        if pi == 3 and merged:
            with WgWait(a): wait_flags(a, name, WS_FLG + F_IMG, 64, lane='v5', va=6, sleep=3)
        a(f's_add_u32 s31, s37, {pi}')
        a('s_cmp_ge_u32 s31, 7')
        a('s_cselect_b32 s32, 7, 0')
        a('s_sub_u32 s31, s31, s32')
        a('s_lshl_b32 s31, s31, 11')
        a('s_add_u32 s31, s31, s27')
        for j in range(8):
            a(f's_add_u32 s30, s31, {((j//2)*28 + j%2)*TILE_B}')
            a('v_add_u32 v2, s30, v1')
            if j < 7:
                g = 7*j + pi
                for u in range(2):
                    dst = ar(8*g+4*u, 4) if g < 32 else vr(120 + 8*(g-32) + 4*u, 4)
                    a(f'global_load_dwordx4 {dst}, v2, {ws} offset:{1024*u}')
            else:
                a(f's_add_u32 m0, s33, {2048*pi}')
                for u in range(2): a(f'global_load_lds_dwordx4 v2, {ws} offset:{1024*u}')
    a.label(f'{name}_wdone')
    if merged:
        with WgWait(a): wait_flags(a, name, WS_FLG + F_XP, 256, va=16, sleep=8)
        a('s_waitcnt vmcnt(0)')
    stamp(a, 3)
    if ENV('BISECT', 0) == 3:
        a('s_mov_b32 s88, 1'); a(f's_branch {name}_done')
    def sbase(lo, off):
        a(f's_add_u32 s{lo}, s4, {off}')
        a(f's_addc_u32 s{lo+1}, s5, 0')
    C, G, T1, T2, T3 = 8, 9, 10, 11, 12
    a(f'v_and_b32 v{C}, 15, v0')
    a(f'v_lshrrev_b32 v{G}, 4, v0')
    a(f'v_and_b32 v{T1}, 1, v0')
    a(f'v_cmp_eq_u32 vcc, 1, v{T1}')
    a(f'v_mov_b32 v{IDX}, 0x4444')
    a(f'v_mov_b32 v{T1}, 0xeeee')
    a(f'v_cndmask_b32 v{IDX}, v{IDX}, v{T1}, vcc')
    a('v_add_u32 v3, 4096, v1')
    a('v_add_u32 v4, 8192, v1')
    for r in (5, 6, 7, 100, 101, 102, 103, 105, 113, 114, 115, 116): a(f'v_mov_b32 v{r}, v1')
    a(f's_lshl_b32 s30, {role}, 2')
    a('s_add_u32 s30, s30, s22')
    a('s_mul_i32 s30, s30, 4608')
    a(f's_add_u32 s30, s30, {WS_RING + 4096}')
    a(f'v_add_u32 v{T1}, s30, v1')
    for i in range(5): a(f'global_load_dwordx4 {vr(16+4*i,4)}, v{T1}, {ws} offset:{1024*i-4096 if i < 4 else -512} sc1')
    for lo in (8, 10, 12, 14, 52, 54, 56, 58): sbase(lo, WS_RING + 4*RS)
    sbase(44, WS_MEM2)
    sbase(46, WS_RING)
    sbase(48, WS_RING + 3*RS)
    sbase(50, WS_RING + RS)
    a(f's_mov_b32 s38, {2*RS}')
    a('s_mov_b32 s36, 0')
    a(f's_and_b32 s31, {role}, {NREP-1}')
    a('s_lshl_b32 s31, s31, 8')
    a(f's_add_u32 s31, s31, {R_FM}')
    a(f'v_min_u32 v{A_FL}, 27, v0')
    a(f'v_lshlrev_b32 v{A_FL}, 2, v{A_FL}')
    a(f'v_add_u32 v{A_FL}, s31, v{A_FL}')
    a('s_cmp_eq_u32 s26, 1')
    a(f's_cbranch_scc1 {name}_vsetup')
    a('s_lshl_b32 s30, s22, 12')
    a(f's_add_u32 s30, s30, {L_T}')
    a(f'v_lshlrev_b32 v{A_TW}, 5, v{C}')
    a(f'v_lshrrev_b32 v{T1}, 2, v{C}')
    a(f'v_lshrrev_b32 v{T2}, 1, v{G}')
    a(f'v_xor_b32 v{T1}, v{T1}, v{T2}')
    a(f'v_lshl_add_u32 v{A_TW}, v{T1}, 3, v{A_TW}')
    a(f'v_and_b32 v{T2}, 1, v{G}')
    a(f'v_lshl_add_u32 v{A_TW}, v{T2}, 2, v{A_TW}')
    a(f'v_add_u32 v{A_TW}, s30, v{A_TW}')
    a(f'v_add_u32 v{T1}, s30, v1')
    for r in range(4): a(f'v_mov_b32 v{16+r}, 0')
    a('s_waitcnt vmcnt(0)')
    for r in range(4): a(f'v_mov_b32 v{16+r}, 0')
    for i in range(4): a(f'ds_write_b128 v{T1}, v[16:19] offset:{1024*i}')
    a(f'v_and_b32 v{T1}, 3, v0')
    a(f'v_xor_b32 v{T1}, v{T1}, v{G}')
    a(f'v_lshrrev_b32 v{A_TR}, 2, v0')
    a(f'v_lshlrev_b32 v{A_TR}, 5, v{A_TR}')
    a(f'v_lshl_add_u32 v{A_TR}, v{T1}, 3, v{A_TR}')
    a(f'v_add_u32 v{A_TR}, s30, v{A_TR}')
    a(f'v_lshrrev_b32 v{T1}, 1, v{G}')
    a(f'v_and_b32 v{T2}, 1, v{G}')
    a(f'v_lshlrev_b32 v{A_MK}, 4, v{T1}')
    a(f'v_lshl_add_u32 v{A_MK}, v{T2}, 3, v{A_MK}')
    a(f'v_and_b32 v{T3}, 7, v0')
    a(f'v_lshl_add_u32 v{A_MK}, v{T3}, 5, v{A_MK}')
    a('s_mul_i32 s30, s22, 14')
    a('s_and_b32 s30, s30, 7')
    a('s_lshl_b32 s30, s30, 7')
    a('s_mul_i32 s31, s22, 3072')
    a('s_add_u32 s30, s30, s31')
    a(f'v_add_u32 v{A_MK}, s30, v{A_MK}')
    a(f'v_mul_u32_u24 v{A_SW}, 208, v{C}')
    a(f'v_lshl_add_u32 v{A_SW}, v{G}, 4, v{A_SW}')
    a('s_mul_i32 s30, s22, 3328')
    a(f's_add_u32 s30, s30, {L_S}')
    a(f'v_add_u32 v{A_SW}, s30, v{A_SW}')
    a(f'v_lshrrev_b32 v{T1}, 5, v0')
    a(f'v_add_u32 v{T1}, s29, v{T1}')
    a(f'v_and_b32 v{T2}, 31, v0')
    a(f'v_mul_u32_u24 v{A_SR}, 208, v{T1}')
    a(f'v_lshl_add_u32 v{A_SR}, v{T2}, 3, v{A_SR}')
    a(f'v_add_u32 v{A_SR}, {L_S}, v{A_SR}')
    a(f'v_lshrrev_b32 v{A_PST}, 2, v{T2}')
    a(f'v_lshlrev_b32 v{A_PST}, 8, v{A_PST}')
    a(f'v_and_b32 v{T3}, 3, v{T2}')
    a(f'v_lshl_add_u32 v{A_PST}, v{T3}, 2, v{A_PST}')
    a('s_lshr_b32 s30, s25, 1')
    a('s_lshl_b32 s30, s30, 10')
    a('s_and_b32 s31, s25, 1')
    a('s_lshl_b32 s32, s31, 4')
    a('s_add_u32 s30, s30, s32')
    a(f'v_add_u32 v{A_PST}, s30, v{A_PST}')
    a(f'v_and_b32 v{C}, 1, v{T2}')
    a(f'v_lshlrev_b32 v{C}, 4, v{C}')
    a(f'v_bfe_u32 v{G}, v{T2}, 1, 1')
    a(f'v_lshl_add_u32 v{C}, v{G}, 3, v{C}')
    a('s_lshr_b32 s30, s25, 3')
    a('s_lshl_b32 s30, s30, 10')
    a('s_bfe_u32 s32, s25, 0x20001')
    a('s_lshl_b32 s32, s32, 8')
    a('s_add_u32 s30, s30, s32')
    a('s_lshl_b32 s32, s31, 2')
    a('s_add_u32 s30, s30, s32')
    a('s_add_u32 s30, s30, 8192')
    a(f'v_add_u32 v{C}, s30, v{C}')
    a(f'v_cmp_lt_u32 vcc, 15, v{T2}')
    a(f'v_cndmask_b32 v{A_PST}, v{A_PST}, v{C}, vcc')
    a(f'v_lshl_add_u32 v{A_PST}, v{T1}, 5, v{A_PST}')
    a(f'v_cmp_gt_u32 vcc, 20, v{T2}')
    a('s_mov_b64 s[42:43], vcc')
    a('s_lshl_b32 s31, s25, 2')
    a(f's_add_u32 s31, s31, {R_FP}')
    a(f'v_lshlrev_b32 v{A_FST}, 8, v0')
    a(f'v_add_u32 v{A_FST}, s31, v{A_FST}')
    a('s_lshl_b32 s30, s22, 13')
    a(f's_add_u32 s30, s30, {WS_XK}')
    sbase(54, 's30')
    a('s_lshl_b32 s30, s25, 2')
    a('s_add_u32 s30, s30, s22')
    a(f's_mul_i32 s30, s30, {7168}')
    a(f's_add_u32 s30, s30, {WS_U + 2*28*16384}')
    sbase(8, 's30')
    a(f's_branch {name}_go')
    a.label(f'{name}_vsetup')
    a('s_and_b32 s33, s22, 1')
    a('s_lshl_b32 s30, s25, 1')
    a('s_add_u32 s33, s33, s30')
    a('s_and_b32 s30, s22, 1')
    a('s_lshl_b32 s31, s30, 14')
    a(f's_add_u32 s31, s31, {L_UV}')
    a(f'v_add_u32 v{A_UR}, s31, v1')
    a('s_lshl_b32 s31, s30, 12')
    a(f's_add_u32 s31, s31, {L_MX}')
    a(f'v_add_u32 v{A_ML}, s31, v1')
    a(f'v_lshrrev_b32 v{A_MEMST}, 3, v{C}')
    a(f'v_lshlrev_b32 v{A_MEMST}, 4, v{A_MEMST}')
    a(f'v_lshl_add_u32 v{A_MEMST}, v{G}, 6, v{A_MEMST}')
    a(f'v_and_b32 v{T3}, 1, v{C}')
    a(f'v_lshl_add_u32 v{A_MEMST}, v{T3}, 5, v{A_MEMST}')
    a(f'v_bfe_u32 v{A_PERM}, v{C}, 1, 2')
    a(f'v_lshl_add_u32 v{A_MEMST}, v{A_PERM}, 2, v{A_MEMST}')
    a('s_lshl_b32 s30, s33, 8')
    a(f's_add_u32 s30, s30, {R_MEM}')
    a(f'v_add_u32 v{A_MEMST}, s30, v{A_MEMST}')
    a(f'v_cmp_eq_u32 vcc, 1, v{T3}')
    a(f'v_mov_b32 v{A_PERM}, 0x01000504')
    a(f'v_mov_b32 v{T3}, 0x07060302')
    a(f'v_cndmask_b32 v{A_PERM}, v{A_PERM}, v{T3}, vcc')
    a(f'v_lshrrev_b32 v{T1}, 1, v{G}')
    a(f'v_lshlrev_b32 v{A_MST}, 8, v{T1}')
    a(f'v_lshl_add_u32 v{A_MST}, v{C}, 4, v{A_MST}')
    a(f'v_and_b32 v{T1}, 1, v{G}')
    a(f'v_lshl_add_u32 v{A_MST}, v{T1}, 2, v{A_MST}')
    a('s_lshl_b32 s30, s22, 10')
    a(f's_add_u32 s30, s30, {L_MX}')
    a(f'v_add_u32 v{A_MST}, s30, v{A_MST}')
    a(f's_mul_i32 s30, s22, {TILE_B}')
    a(f's_add_u32 s30, s30, {L_W8}')
    a(f'v_add_u32 v{A_CP}, s30, v1')
    for k in range(3):
        a(f's_add_u32 s30, s29, {k}')
        a('s_add_u32 s30, s30, s37')
        for _ in range(2):
            a('s_cmp_ge_u32 s30, 7')
            a('s_cselect_b32 s31, 7, 0')
            a('s_sub_u32 s30, s30, s31')
        a('s_lshl_b32 s30, s30, 10')
        a(f'v_add_u32 v{5+k}, s30, v1')
    a(f'v_mov_b32 v{NEG}, -1')
    a('v_mov_b32 v115, s20')
    a('v_min_u32 v105, 7, v0')
    a('v_lshlrev_b32 v105, 2, v105')
    a('s_cmp_ge_u32 s22, 2')
    a(f's_cbranch_scc1 {name}_npv')
    a(f's_and_b32 s30, s33, {NREP-1}')
    a('s_lshl_b32 s30, s30, 8')
    a(f's_add_u32 s30, s30, {R_FP}')
    a(f'v_min_u32 v{A_FL}, 16, v0')
    a(f'v_lshlrev_b32 v{A_FL}, 2, v{A_FL}')
    a(f'v_add_u32 v{A_FL}, s30, v{A_FL}')
    a.label(f'{name}_npv')
    a('v_mov_b32 v20, v0')
    a('s_lshl_b32 s30, s33, 2')
    a(f's_add_u32 s30, s30, {R_FM}')
    a(f'v_lshlrev_b32 v{A_FST}, 8, v0')
    a(f'v_add_u32 v{A_FST}, s30, v{A_FST}')
    sbase(10, WS_RING + 4*RS)
    a('s_lshl_b32 s31, s25, 5')
    a(f's_add_u32 s31, s31, {WS_FLG + F_U}')
    sbase(12, 's31')
    a('s_mov_b32 s39, s31')
    a('s_lshl_b32 s30, s25, 15')
    a('s_lshl_b32 s31, s22, 13')
    a('s_add_u32 s30, s30, s31')
    a(f's_add_u32 s30, s30, {WS_U}')
    sbase(56, 's30')
    a(f's_add_u32 s35, s31, {L_UV}')
    def dma_u(i):
        return [f's_add_u32 m0, s35, {4096*(i//4)}', f'global_load_lds_dwordx4 {"v1" if i < 4 else "v3"}, s[56:57] offset:{1024*(i%4)} sc1']
    if merged:
        a('s_waitcnt vmcnt(0)')
        a('v_lshrrev_b32 v20, 4, v1')
        with WgWait(a):
            wait_flags(a, name, 's39', 8, lane='v20', va=16, sleep=4)
            a('s_add_u32 s39, s39, 448')
            wait_flags(a, name, 's39', 8, lane='v20', va=16, sleep=4)
    for i in range(8):
        for o in dma_u(i): a(o)
    sadd64(a, 56, 28*16384); sadd64(a, 12, 896)
    a('s_xor_b32 s35, s35, 0x38000')
    a.label(f'{name}_go')
    for r in range(32): a(f'v_mov_b32 v{ACC+r}, 0')
    a('s_waitcnt vmcnt(0) lgkmcnt(0)')
    if STAMPS:
        a('s_mov_b32 s74, s24'); a('s_memrealtime s[88:89]'); a('s_waitcnt lgkmcnt(0)')
    a('s_lshl_b32 s30, s26, 2')
    a('s_add_u32 s30, s30, s22')
    if merged:
        a('s_cmp_lt_u32 s21, 32')
        a('s_cselect_b32 s31, 8, 0')
        a('s_add_u32 s30, s30, s31')
    for k in range(16 if merged else 8):
        a(f's_cmp_eq_u32 s30, {k}')
        a(f's_cbranch_scc1 {name}_{"fs"[k//8]}{"sv"[(k//4)%2]}{k%4}_entry')

    def gaddr(off):
        if off < 4096: return 'v1', off
        if off < 8192: return 'v3', off - 4096
        return 'v4', off - 8192

    def gen_wave(kind, w, st):
        tag = f'{name}_{"s" if st else "f"}{kind}{w}'
        own = [2*w, 2*w+1, 2*w+2] if w < 3 else [6, 0, 1]
        wr = own[:2] if w < 3 else own[:1]
        others = [t for t in range(7) if t not in own]
        pvw = kind == 'v' and w < 2
        poller = (w == 1) if kind == 's' else (w == 2)
        SLOW = []
        L = Cnt(); V = Cnt()
        def emit(op):
            if isinstance(op, str): a(op); return
            text, k, tg = op
            if k == 'wl': a(f's_waitcnt lgkmcnt({L.need(text)})'); return
            if k == 'wv': a(f's_waitcnt vmcnt({V.need(text)})'); return
            a(text)
            (L if k == 'l' else V).issue(tg)
        def smf(j, t):
            a(f'v_smfmac_f32_16x16x64_bf16 {vr(ACC+4*j,4)}, {vr(MA+4*t,4)}, {W(j,t)}, v{IDX}')
        def rest_adv():
            a(f's_add_u32 s30, s38, {WS_RING}')
            a('s_add_u32 s50, s4, s30')
            a('s_addc_u32 s51, s5, 0')
            a(f's_add_u32 s38, s38, {RS}')
            a(f's_cmp_eq_u32 s38, {4*RS}')
            a('s_cselect_b32 s38, 0, s38')
            if kind == 'v':
                if w == 3 and merged: sadd64(a, 12, 448)
                if w < 2: a(f'v_xor_b32 v{A_UR}, 0x38000, v{A_UR}')
            else:
                sadd64(a, 8, 28*16384)
            for r in range(28 if kind == 's' else 32): a(f'v_mov_b32 v{ACC+r}, 0')
        def mem_loads(em=True):
            for n, t in enumerate(own):
                tx = f'global_load_dwordx4 {vr(MA+4*t,4)}, v{5+n}, s[44:45] sc1'
                if em: emit((tx, 'v', f'm{t}'))
                else: a(tx)
                if n < 2 and em and ENV('MSP', 1): a(f's_nop {ENV("MSPN", 3)}')
        def kreg(k, kt):
            if k == 1: return MA + 4*own[kt]
            if k == 3: return [TBZ+2, CV+2][kt]
            return {0: K0, 2: K2}[k] + 4*kt
        def xk_all():
            if ENV('NOXK', 0): return
            for k in (0, 1, 2, 3):
                for kt in range(2):
                    va = "v1" if kt == 0 else "v3"
                    if k == 1:
                        a(f's_mov_b32 m0, {L_K1 + 2048*w + 1024*kt - 1024}')
                        a(f'global_load_lds_dwordx4 {va}, s[54:55] offset:1024')
                    else:
                        n = 2 if k == 3 else 4
                        a(f'global_load_dwordx{n} {vr(kreg(k,kt),n)}, {va}, s[54:55] offset:{1024*k}')
            sadd64(a, 54, 32768)
        cps = {2: [0, 1, 2, 3], 3: [4, 5, 6]}.get(w, []) if kind == 'v' else []
        CPB, CP2 = 64, 80
        def stage_reads():
            for n, i in enumerate(cps):
                a(f'ds_read_b128 {vr(CPB+4*n,4)}, v1 offset:{L_MS + 1024*i}')
                a(f'ds_read_b128 {vr(CP2+4*n,4)}, v1 offset:{L_MEM + 1024*i}')
            a('s_waitcnt lgkmcnt(0)')
        def mem2_copy():
            l2 = a.newlabel('nm2')
            a('s_cmp_lg_u32 s25, 15')
            a(f's_cbranch_scc1 {l2}')
            for n, t in enumerate(cps):
                va, im = gaddr(1024*t)
                a(f'global_store_dwordx4 {va}, {vr(MA+4*t,4)}, s[58:59] offset:{im} sc1')
            a.label(l2)
        a.label(f'{tag}_loop')
        if poller: flag_poll(a, tag, FR=(96, 97, 98, 99, 117, 118)[:ENV('NMP', 5)], gap=ENV('MGAP', 11))
        a('s_barrier')
        if not pvw: cstamp(a, 5, 31)
        a.label(f'{tag}_mem')
        DIRECT = kind == 's' and ENV('DIRECT', 1)
        if DIRECT:
            others.sort(key=lambda t: (t - own[0]) % 7)
            def mld(t):
                va, im = gaddr(1024*t)
                return (f'global_load_dwordx4 {vr(MA+4*t,4)}, {va}, s[44:45] offset:{im} sc1', 'v', f'm{t}')
            seq = own + others
            NPRE = ENV('NPRE', 4)
            for n in range(NPRE):
                emit(mld(seq[n]))
                if n < NPRE - 1: a(f's_nop {ENV("DSP", 11)}')
            need = sorted(set(range((14*w)//8, (14*w+13)//8 + 1)))
            def pw(t): return (f'ds_write_b128 v1, {vr(MA+4*t,4)} offset:{L_MEM + 3072*w + 1024*(t - need[0])}', 'l', f'pw{t}')
            fl = {}
            for n in range(NPRE, 7): fl.setdefault((0, 2*(n-NPRE)+1), []).append(mld(seq[n]))
            for p in range(3):
                if own[p] in need: fl.setdefault((p, 0), []).append(pw(own[p]))
            for p in range(3):
                emit((f'm{own[p]}', 'wv', None))
                if p == 0:
                    cstamp(a, 0); cstamp(a, 6, 31)
                if p == 2: break
                for j in range(7):
                    smf(j, own[p])
                    for o in fl.get((p, j), []): emit(o)
            cstamp(a, 1)
            late_w = [t for t in need if t not in own[:2]]
        else:
            mem_loads()
            if kind == 'v':
                a('s_barrier')
                if pvw:
                    lk = a.newlabel('w0s')
                    a('s_cmp_eq_u32 s36, 0')
                    a(f's_cbranch_scc1 {lk}')
                    rest_adv()
                    a.label(lk)
                NU0 = ENV('NU0', 4)
                uq = [] if ENV('NOU', 0) else [dma_u(i) for i in range(8)]
                for _ in range(NU0):
                    if uq:
                        m_, d_ = uq.pop(0); a(m_); emit((d_, 'v', 'u'))
            a.label(f'{tag}_got')
            chk = max_ops([MA+4*t+r for t in own[:2] for r in range(4)], TMP)
            fill0 = {0: [(f'm{own[1]}', 'wv', None)] + ([(f'ds_write_b128 v1, {vr(MA+4*wr[1],4)} offset:{L_MEM + 1024*wr[1]}', 'l', 'w1')] if len(wr) > 1 else []),
                     1: [chk[0]], 2: [chk[1]], 3: [chk[2]], 4: [chk[3]], 5: [f'v_cmp_eq_u32 vcc, -1, v{TMP}'], 6: [f's_cbranch_vccnz {tag}_redo']}
            emit((f'm{own[0]}', 'wv', None))
            cstamp(a, 0)
            if not pvw: cstamp(a, 6, 31)
            emit((f'ds_write_b128 v1, {vr(MA+4*wr[0],4)} offset:{L_MEM + 1024*wr[0]}', 'l', 'w0'))
            for j in range(7):
                smf(j, own[0])
                for o in fill0[j]: emit(o)
            a.label(f'{tag}_cont')
            smf(0, own[1])
            pre = []
            if kind == 'v':
                pre += uq
                if pvw:
                    pre.append([f'global_store_dword v{A_MEMST}, v{NEG}, s[10:11] {st}', f's_mov_b64 exec, {RMASK}', f'global_store_dword v{A_FST}, v{NEG}, s[10:11] {st}', 's_mov_b64 exec, -1'])
            c2 = MA + 4*own[2]
            for j in range(1, 7):
                smf(j, own[1])
                if pre:
                    ops = pre.pop(0)
                    for o in ops:
                        a(o)
                        if o.startswith('global_'): V.issue('x')
                if j == 4:
                    emit((f'm{own[2]}', 'wv', None))
                    a(f'v_max3_u32 v{TMP}, v{c2}, v{c2+1}, v{c2+2}')
                if j == 5: a(f'v_max_u32 v{TMP}, v{TMP}, v{c2+3}')
                if j == 6: a(f'v_cmp_eq_u32 vcc, -1, v{TMP}')
            a('s_waitcnt lgkmcnt(0)'); L.reset()
            a('s_barrier')
            a(f's_cbranch_vccnz {tag}_fix2')
            a.label(f'{tag}_fix2r')
            if not pvw: cstamp(a, 1)
            for t in others: emit((f'ds_read_b128 {vr(MA+4*t,4)}, v1 offset:{L_MEM + 1024*t}', 'l', f'r{t}'))
        F = {}
        def add(sl, ops): F[sl] = F.get(sl, []) + list(ops)
        if kind == 's':
            def cvt_write(j):
                return [f'v_add_f32 v{CV}, v{ACC+4*j}, v{ACC+4*j+1}',
                        f'v_add_f32 v{CV+1}, v{ACC+4*j+2}, v{ACC+4*j+3}',
                        f'v_cvt_pk_bf16_f32 v{CV}, v{CV}, v{CV+1}',
                        (f'ds_write_b32 v{A_TW}, v{CV} offset:{512*j}', 'l', f'cw{j}')]
            def tbr(k): return TB + 4*(k % 2) if k < 3 else TBZ
            def s_reads(k):
                o = [(f'ds_read_b64_tr_b16 {vr(tbr(k),2)}, v{A_TR} offset:{1024*k}', 'l', f'sr{k}')]
                if k < 3: o.append((f'ds_read_b64_tr_b16 {vr(tbr(k)+2,2)}, v{A_TR} offset:{1024*k+512}', 'l', f'sr{k}'))
                return o
            def kmr(k): return KM0 if k % 2 == 0 else KM1
            def km_read(k):
                if k == 3: return (f'ds_read_b64 {vr(kmr(k),2)}, v{A_MK} offset:{512*k}', 'l', f'km{k}')
                return (f'ds_read2_b64 {vr(kmr(k),4)}, v{A_MK} offset0:{64*k} offset1:{64*k+32}', 'l', f'km{k}')
            def s_mfma(k, fill=()):
                fill = list(fill)
                deps = [f'sr{k}', f'km{k}'] + (['k1'] if k == 1 else [])
                a(f's_waitcnt lgkmcnt({min(L.need(d) for d in deps)})')
                for kt in range(3):
                    acc = vr(SACC+4*kt, 4)
                    src = kreg(k, kt) if kt < 2 else kmr(k)
                    if k == 3: a(f'v_mfma_f32_16x16x16_bf16 {acc}, {vr(src,2)}, {vr(tbr(k),2)}, {acc}')
                    else: a(f'v_mfma_f32_16x16x32_bf16 {acc}, {vr(src,4)}, {vr(tbr(k),4)}, {acc if k else 0}')
                    if fill:
                        for o in fill.pop(0): emit(o)
            assert DIRECT
            f2 = [[(f'ds_read_b128 {vr(kreg(1,0),4)}, v1 offset:{L_K1 + 2048*w}', 'l', 'k1')],
                  [(f'ds_read_b128 {vr(kreg(1,1),4)}, v1 offset:{L_K1 + 2048*w + 1024}', 'l', 'k1')]]
            if own[2] in late_w: f2.insert(0, [pw(own[2])])
            if not ENV('NOTOUCH', 1):
                nl = ENV('NTL', 56)
                add((0, 3), [f'v_lshlrev_b32 v{CV}, 3, v1', (f's_mov_b64 exec, {(1 << nl) - 1}' if nl < 32 else f's_mov_b32 exec_hi, {(1 << (nl - 32)) - 1}'),
                          f'global_load_dword v{2 if w != 1 else 0}, v{CV}, s[8:9] sc1', 's_mov_b64 exec, -1'])
            for j in range(7):
                smf(j, own[2])
                if f2:
                    for o in f2.pop(0): emit(o)
            for n, t in enumerate(others):
                if t in late_w: add((0, n), [pw(t)])
            add((1, 0), [km_read(0), km_read(1)])
            for j in range(1, 7):
                cw = cvt_write(j-1)
                add((j, 1), [cw[0]]); add((j, 2), [cw[1]]); add((j, 3), [cw[2]]); add((j+1, 0), [cw[3]])
            add((3,0), s_reads(0)[:1]); add((3,1), s_reads(0)[1:]); add((5,0), s_reads(1)[:1]); add((5,1), s_reads(1)[1:])
            for j in range(7):
                for n, t in enumerate(others):
                    if j == 0: emit((f'm{t}', 'wv', None))
                    smf(j, t)
                    for o in F.get((j, n), []): emit(o)
                if j == 4: s_mfma(0, [[], [], [km_read(2)]])
            cstamp(a, 2)
            cw6 = cvt_write(6)
            for o in F[(7, 0)]: emit(o)
            s_mfma(1, [s_reads(2), [cw6[0], cw6[1]], [cw6[2], cw6[3]] + s_reads(3) + [km_read(3)]])
            s_mfma(2)
            s_mfma(3)
            for kt in range(3):
                a(f'ds_write_b128 v{A_SW}, {vr(SACC+4*kt,4)} offset:{64*kt}')
                if kt == 0: a(f'v_cmp_u_f32 vcc, v{SACC}, v{SACC}')
            a(f's_cbranch_vccnz {tag}_redo')
            a.label(f'{tag}_cont')
            a('s_waitcnt lgkmcnt(0)'); L.reset()
            a('s_barrier')
            cstamp(a, 3)
            SR = 8
            for i in range(4):
                emit((f'ds_read_b64 {vr(SR+2*i,2)}, v{A_SR} offset:{3328*i}', 'l', f's{i}'))
            a('s_mov_b32 s30, 0x42800000')
            def pflag():
                if w == 0:
                    a(f's_mov_b64 exec, {RMASK}')
                    a(f'global_store_dword v{A_FST}, v{IDX}, s[46:47] {st}')
                    a('s_mov_b64 exec, -1')
            PF = ENV('PFLAG', 3)
            if PF == -1: pflag()
            def pk(d, x, y): a(f'v_pk_add_f32 {vr(SR+d,2)}, {vr(SR+x,2)}, {vr(SR+y,2)}')
            emit(('s1', 'wl', None)); pk(0, 0, 2)
            emit(('s3', 'wl', None)); pk(4, 4, 6); pk(0, 0, 4)
            if PF == -2: pflag()
            m, t = SR+4, SR+5
            a(f'v_max_f32 v{m}, |v{SR}|, |v{SR+1}|')
            a(f'v_exp_f32 v{SR+2}, v{SR}')
            a(f'v_cmp_nge_f32 vcc, s30, v{m}')
            a(f'v_exp_f32 v{SR+3}, v{SR+1}')
            a('s_and_b64 vcc, vcc, s[42:43]')
            a(f's_cbranch_vccnz {tag}_smax')
            a.label(f'{tag}_smax_ret')
            a(f'v_add_f32 v{m}, v{SR+2}, v{SR+3}')
            a(f'v_cndmask_b32 v{m}, 0, v{m}, s[42:43]')
            if PF == 0: pflag()
            def slow_max():
                a.label(f'{tag}_smax')
                a(f'v_mov_b32 v{SR+16}, 0xff800000')
                a(f'v_max_f32 v{m}, v{SR}, v{SR+1}')
                a(f'v_cndmask_b32 v{m}, v{SR+16}, v{m}, s[42:43]')
                for ror in (8, 4, 2, 1):
                    a(f'v_max_f32_dpp v{m}, v{m}, v{m} row_ror:{ror} row_mask:0xf bank_mask:0xf')
                a(f'v_mov_b32 v{t}, v{m}')
                a(f'v_permlane16_swap_b32 v{m}, v{t}')
                a(f'v_max_f32 v{m}, v{m}, v{t}')
                a(f'v_sub_f32 v{SR+2}, v{SR}, v{m}')
                a(f'v_sub_f32 v{SR+3}, v{SR+1}, v{m}')
                a(f'v_exp_f32 v{SR+2}, v{SR+2}')
                a(f'v_exp_f32 v{SR+3}, v{SR+3}')
                a(f's_branch {tag}_smax_ret')
            SLOW.append(slow_max)
            for ror in (8, 4, 2, 1):
                a(f'v_add_f32_dpp v{m}, v{m}, v{m} row_ror:{ror} row_mask:0xf bank_mask:0xf')
                if PF == 1 and ror == 4: pflag()
            a(f'v_mov_b32 v{t}, v{m}')
            if PF == 2: pflag()
            a(f'v_permlane16_swap_b32 v{m}, v{t}')
            a(f'v_add_f32 v{m}, v{m}, v{t}')
            a(f'v_rcp_f32 v{m}, v{m}')
            a(f'v_mul_f32 v{SR}, v{SR+2}, v{m}')
            a(f'v_mul_f32 v{SR+1}, v{SR+3}, v{m}')
            a(f'v_cvt_pk_bf16_f32 v{SR}, v{SR}, v{SR+1}')
            a('s_mov_b64 exec, s[42:43]')
            a(f'global_store_dword v{A_PST}, v{SR}, s[46:47] {st}')
            a('s_mov_b64 exec, -1')
            if PF == 3: pflag()
            cstamp(a, 4)
            xk_all()
            a(f'v_mov_b32 v{CV}, -1')
            a(f'global_store_dword v{A_PST}, v{CV}, s[48:49] {st}')
            if w == 0:
                a(f's_mov_b64 exec, {RMASK}')
                a(f'global_store_dword v{A_FST}, v{CV}, s[48:49] {st}')
                a('s_mov_b64 exec, -1')
        else:
            early = list(pre)
            if merged and w == 3: early.append(['global_load_dword v116, v105, s[12:13] sc1'])
            def w8rd(pi): return [(f'ds_read_b128 {vr(68+8*(pi%2)+4*u,4)}, v{A_CP} offset:{2048*pi+1024*u}', 'l', f'w8{pi}') for u in range(2)]
            def smf8(pi):
                emit((f'w8{pi}', 'wl', None))
                a(f'v_smfmac_f32_16x16x64_bf16 {vr(ACC+28,4)}, {vr(MA+4*pi,4)}, {vr(68+8*(pi%2),8)}, v{IDX}')
            seq8 = own + others
            for o in w8rd(seq8[0] if False else 0): pass
            q8 = [t for t in seq8]
            def rd8(k):
                t = q8[k]
                return [(f'ds_read_b128 {vr(68+8*(k%2)+4*u,4)}, v{A_CP} offset:{2048*t+1024*u}', 'l', f'w8{k}') for u in range(2)]
            def sm8(k):
                emit((f'w8{k}', 'wl', None))
                a(f'v_smfmac_f32_16x16x64_bf16 {vr(ACC+28,4)}, {vr(MA+4*q8[k],4)}, {vr(68+8*(k%2),8)}, v{IDX}')
                if k + 2 < 7:
                    for o in rd8(k+2): emit(o)
            for o in rd8(0) + rd8(1): emit(o)
            for j in range(7):
                smf(j, own[2])
                if early:
                    for o in early.pop(0): a(o)
            assert not early
            sadd64(a, 56, 28*16384)
            a('s_xor_b32 s35, s35, 0x38000')
            pend = []
            MC = 96
            def m_out(j):
                X = ACC + 4*j; c = MC + (j % 4)
                hh, p = j // 2, j % 2
                return [f'v_add_f32 v{X}, v{X}, v{X+1}', f'v_add_f32 v{X+2}, v{X+2}, v{X+3}', f'v_cvt_pk_bf16_f32 v{c}, v{X}, v{X+2}',
                        (f'ds_write_b32 v{A_MST}, v{c} offset:{4096*p + 512*(hh//2) + 8*(hh%2)}', 'l', 'mx')]
            for j in range(7):
                for n, t in enumerate(others):
                    if j == 0: emit((f'r{t}', 'wl', None))
                    smf(j, t)
                    if n == 1 and j >= 1: pend += m_out(j-1)
                    if pend: emit(pend.pop(0))
                sm8(j)
                if pend: emit(pend.pop(0))
            for o in pend + m_out(6) + m_out(7): emit(o)
            cstamp(a, 2)
            a('s_waitcnt lgkmcnt(0)')
            a('s_barrier')
            if merged and w == 3:
                a('s_waitcnt vmcnt(0)')
                a('v_cmp_ne_u32 vcc, v115, v116')
                a(f's_cbranch_vccnz {tag}_uwait')
                a.label(f'{tag}_uok')
        if pvw:
            skip = f'{tag}_nopv'
            def ubreads():
                for t in range(4):
                    for u in range(2):
                        a(f'ds_read_b128 {vr(UB+8*t+4*u,4)}, v{A_UR} offset:{2048*t+1024*u}')
            ubreads()
            PFR = (108, 109, 110, 111, 116, 117, 118)[:ENV('NPP', 4)]
            for i in range(4): a(f'ds_read_b128 {vr(MB+4*i,4)}, v{A_ML} offset:{1024*i}')
            flag_poll(a, tag, FR=PFR, gap=ENV('PGAP', 15))
            cstamp(a, 1)
            a.label(f'{tag}_pld')
            for t in range(10):
                va, im = gaddr(1024*t)
                a(f'global_load_dwordx4 {vr(PA+4*t,4)}, {va}, s[46:47] offset:{im} sc1')
            for r in range(4): a(f'v_mov_b32 v{PACC+r}, 0')
            acc = vr(PACC, 4)
            a('s_mov_b64 s[10:11], s[46:47]')
            a('s_waitcnt lgkmcnt(0)')
            MF = ENV('MFLAG', 5)
            for t in range(10):
                a(f's_waitcnt vmcnt({(9 - t) + (1 if t > MF else 0)})' + (f' lgkmcnt({2*(7-t)})' if 4 <= t < 8 else ''))
                if t == 0: cstamp(a, 5)
                b = vr(MB+8*(t-8), 8) if t >= 8 else vr(UB+8*(t % 4), 8)
                a(f'v_smfmac_f32_16x16x64_bf16 {acc}, {vr(PA+4*t,4)}, {b}, v{IDX}')
                if t == MF:
                    a(f's_mov_b64 exec, {RMASK}')
                    a(f'global_store_dword v{A_FST}, v{IDX}, s[50:51] {st}')
                    a('s_mov_b64 exec, -1')
                if t < 4:
                    for u in range(2):
                        a(f'ds_read_b128 {vr(UB+8*t+4*u,4)}, v{A_UR} offset:{2048*(t+4)+1024*u}')
            a(f'v_add_f32 v{PACC}, v{PACC}, v{PACC+1}')
            a(f'v_add_f32 v{PACC+2}, v{PACC+2}, v{PACC+3}')
            a(f'v_cmp_u_f32 vcc, v{PACC}, v{PACC+2}')
            a(f'v_cvt_pk_bf16_f32 v{PACC}, v{PACC}, v{PACC+2}')
            a(f's_cbranch_vccnz {tag}_pnan')
            a.label(f'{tag}_pfin')
            a(f'v_mov_b32_dpp v{PACC+1}, v{PACC} quad_perm:[1,0,3,2] row_mask:0xf bank_mask:0xf')
            a(f'v_perm_b32 v{PACC}, v{PACC}, v{PACC+1}, v{A_PERM}')
            a(f'global_store_dword v{A_MEMST}, v{PACC}, s[50:51] {st}')
            cstamp(a, 6)
            if merged:
                a('s_cmp_lg_u32 s36, 62')
                a(f's_cbranch_scc1 {skip}')
                a(f's_add_u32 s30, s4, {WS_MEM2 + 63*7168 - R_MEM}')
                a('s_addc_u32 s31, s5, 0')
                a(f'global_store_dword v{A_MEMST}, v{PACC}, s[30:31] sc1')
            a.label(skip)
        a('s_mov_b64 s[48:49], s[46:47]')
        a('s_mov_b64 s[46:47], s[50:51]')
        a(f's_add_u32 s44, s46, {R_MEM}')
        a('s_addc_u32 s45, s47, 0')
        a('s_add_u32 s36, s36, 1')
        if not pvw: rest_adv()
        a('s_cmp_lt_u32 s36, 63')
        a(f's_cbranch_scc1 {tag}_loop')
        a(f's_branch {name}_done')
        a.label(f'{tag}_entry')
        if kind == 's': xk_all()
        a(f's_branch {tag}_mem')
        for f in SLOW: f()
        if merged and kind == 'v' and w == 3:
            a.label(f'{tag}_uwait')
            a('s_cmp_ge_u32 s36, 61')
            a(f's_cbranch_scc1 {tag}_uok')
            a('global_load_dword v116, v105, s[12:13] sc1')
            a('s_waitcnt vmcnt(0)')
            a('v_cmp_ne_u32 vcc, v115, v116')
            a(f's_cbranch_vccz {tag}_uok')
            a('s_sleep 4')
            a('s_sub_u32 s40, s40, 1')
            a(f's_cbranch_scc0 {tag}_uwait')
            a('s_mov_b32 s40, 0')
            a(f's_branch {tag}_uok')
        if kind == 's':
            a.label(f'{tag}_redo')
            a('s_nop 7')
            if STAMPS: a('s_add_u32 s76, s76, 1')
            a('s_sub_u32 s40, s40, 2000')
            a(f's_cbranch_scc1 {tag}_giveup')
            for r in range(28): a(f'v_mov_b32 v{ACC+r}, 0')
            a('s_waitcnt lgkmcnt(0)')
            a(f's_branch {tag}_mem')
        else:
            a.label(f'{tag}_fix2')
            a(f'ds_read_b128 {vr(MA+4*own[2],4)}, v1 offset:{L_MEM + 1024*own[2]}')
            a('s_waitcnt lgkmcnt(0)')
            a(f's_branch {tag}_fix2r')
            a.label(f'{tag}_redo')
            a('s_nop 7')
            if STAMPS: a('s_add_u32 s76, s76, 1')
            a('s_sub_u32 s40, s40, 1')
            a(f's_cbranch_scc1 {tag}_giveup')
            a('s_waitcnt lgkmcnt(0)')
            mem_loads(False)
            a('s_nop 7')
            for r in range(32): a(f'v_mov_b32 v{ACC+r}, 0')
            a('s_waitcnt vmcnt(0)')
            a(f's_branch {tag}_got')
        a.label(f'{tag}_giveup')
        a('s_mov_b32 s40, 0')
        a(f's_branch {tag}_cont')
        if pvw:
            a.label(f'{tag}_pnan')
            for o in max_ops(range(PA, PA+40), TMP): a(o)
            a(f'v_cmp_eq_u32 vcc, -1, v{TMP}')
            a(f's_cbranch_vccz {tag}_pfin')
            if STAMPS: a('s_add_u32 s77, s77, 1')
            a('s_sub_u32 s40, s40, 1')
            a(f's_cbranch_scc1 {tag}_pgive')
            ubreads()
            a(f's_branch {tag}_pld')
            a.label(f'{tag}_pgive')
            a('s_mov_b32 s40, 0')
            a(f's_branch {tag}_pfin')
    for st in (('', 'sc1') if merged else ('',)):
        for kind in 'sv':
            for w in range(4): gen_wave(kind, w, st)
    a(f's_branch {name}_done')
    a.label(f'{name}_spare')
    a(f's_cmp_lg_u32 {role}, 30')
    a(f's_cbranch_scc1 {name}_done')
    a('s_cmp_ge_u32 s22, 2')
    a(f's_cbranch_scc1 {name}_done')
    wait_flags(a, name, WS_FLG + F_XP, 256, va=16, sleep=8)
    a('v_add_u32 v3, 4096, v1')
    a('v_lshlrev_b32 v5, 4, v1')
    a(f'v_add_u32 v9, {R_FP + 64 - R_MEM}, v5')
    a(f'v_add_u32 v5, {WS_FLG + F_PROG}, v5')
    a('s_add_u32 s30, s20, s22')
    a('v_mov_b32 v6, s30')
    a('v_add_u32 v6, -1, v6')
    a('v_lshlrev_b32 v7, 3, v1')
    a('v_mov_b32 v10, -1')
    a('s_mov_b32 s36, s22')
    a(f's_mul_i32 s38, s22, {RS}')
    a('s_mul_i32 s30, s22, 7168')
    a(f's_add_u32 s30, s30, {WS_MEM2 + 7168}')
    sbase(58, 's30')
    a('s_mul_i32 s30, s22, 49152')
    a(f's_add_u32 s30, s30, {WS_XK}')
    sbase(54, 's30')
    for i in range(6):
        a('global_load_dword v8, v7, s[54:55]'); sadd64(a, 54, 8192)
    a('s_lshl_b32 s30, s22, 15')
    a(f's_add_u32 s30, s30, {WS_XK + 3*32768}')
    sbase(54, 's30')
    def fstore(data, base):
        l1 = a.newlabel('fs'); l2 = a.newlabel('fs')
        a(f's_mov_b64 exec, {RMASK}')
        a('s_cmp_lt_u32 s21, 32')
        a(f's_cbranch_scc1 {l1}')
        a(f'global_store_dword v9, v{data}, s[{base}:{base+1}]')
        a(f's_branch {l2}')
        a.label(l1)
        a(f'global_store_dword v9, v{data}, s[{base}:{base+1}] sc1')
        a.label(l2)
        a('s_mov_b64 exec, -1')
    sbase(44, WS_RING + R_MEM)
    sbase(46, WS_RING + R_FP)
    a('s_cmp_lg_u32 s22, 0')
    a(f's_cbranch_scc1 {name}_spl')
    fstore(1, 44)
    a('v_mov_b32 v2, 0')
    a.label(f'{name}_sp0')
    a('global_load_dword v8, v2, s[46:47] sc1')
    a('s_waitcnt vmcnt(0)')
    a('v_cmp_eq_u32 vcc, -1, v8')
    a(f's_cbranch_vccz {name}_sp1')
    a('s_sleep 8')
    a('s_sub_u32 s40, s40, 1')
    a(f's_cbranch_scc0 {name}_sp0')
    a('s_mov_b32 s40, 0')
    a.label(f'{name}_sp1')
    a('v_add_u32 v8, 2, v6')
    a('s_mov_b64 exec, 0xffff')
    a('global_store_dword v5, v8, s[4:5] sc1')
    a('s_mov_b64 exec, -1')
    a.label(f'{name}_spl')
    a(f's_add_u32 s30, s38, {WS_RING + R_MEM}')
    a('s_add_u32 s48, s4, s30')
    a('s_addc_u32 s49, s5, 0')
    a(f's_add_u32 s38, s38, {RS}')
    a(f's_cmp_eq_u32 s38, {4*RS}')
    a('s_cselect_b32 s38, 0, s38')
    a(f's_add_u32 s30, s38, {WS_RING + R_MEM}')
    a('s_add_u32 s44, s4, s30')
    a('s_addc_u32 s45, s5, 0')
    a(f's_add_u32 s38, s38, {RS}')
    a(f's_cmp_eq_u32 s38, {4*RS}')
    a('s_cselect_b32 s38, 0, s38')
    a.label(f'{name}_spp')
    for t in range(7):
        a(f'global_load_dwordx4 {vr(16+4*t,4)}, {"v1" if t < 4 else "v3"}, s[44:45] offset:{1024*(t%4)} sc1')
    a('s_waitcnt vmcnt(0)')
    for o in max_ops(range(16, 44), 8): a(o)
    a('v_cmp_eq_u32 vcc, -1, v8')
    a(f's_cbranch_vccz {name}_spk')
    a('s_sleep 4')
    a('s_sub_u32 s40, s40, 1')
    a(f's_cbranch_scc0 {name}_spp')
    a('s_mov_b32 s40, 0')
    a.label(f'{name}_spk')
    fstore(1, 44)
    fstore(10, 48)
    for t in range(7):
        a(f'global_store_dwordx4 {"v1" if t < 4 else "v3"}, {vr(16+4*t,4)}, s[58:59] offset:{1024*(t%4)} sc1')
    a('v_add_u32 v6, 2, v6')
    a('v_add_u32 v8, 1, v6')
    a('s_mov_b64 exec, 0xffff')
    a('global_store_dword v5, v8, s[4:5] sc1')
    a('s_mov_b64 exec, -1')
    for i in range(4):
        a('global_load_dword v8, v7, s[54:55]'); sadd64(a, 54, 8192)
    sadd64(a, 54, 32768)
    sadd64(a, 58, 14336)
    a('s_add_u32 s36, s36, 2')
    a('s_cmp_lt_u32 s36, 63')
    a(f's_cbranch_scc1 {name}_spl')
    a.label(f'{name}_done')

def gen_k3(a, name='chain_kernel'):
    a(f'.globl {name}\n.p2align 8\n.type {name},@function\n{name}:')
    a('s_cmp_ge_u32 s2, 256')
    a(f's_cbranch_scc1 {name}_end')
    a(f's_load_dwordx2 s[4:5], s[0:1], {KA_WS}')
    a(f's_load_dwordx2 s[6:7], s[0:1], {KA_DBG}')
    stamp_init(a)
    if STAMPS:
        a('s_mov_b32 s76, 0'); a('s_mov_b32 s77, 0'); a('s_mov_b32 s86, 0'); a('s_memrealtime s[78:79]'); a('s_memtime s[82:83]')
    a('s_getreg_b32 s23, hwreg(HW_REG_XCC_ID)')
    a('s_and_b32 s23, s23, 15')
    a('v_lshrrev_b32 v2, 6, v0')
    a('v_readfirstlane_b32 s22, v2')
    a('s_waitcnt lgkmcnt(0)')
    a('s_cmp_lg_u32 s23, 0')
    a(f's_cbranch_scc1 {name}_end')
    a('s_cmp_lg_u32 s22, 0')
    a(f's_cbranch_scc1 {name}_wait')
    a('v_mov_b32 v1, 0')
    a('v_mov_b32 v2, 1')
    a('s_mov_b64 exec, 1')
    a('global_atomic_add v3, v1, v2, s[6:7] sc0')
    a('s_waitcnt vmcnt(0)')
    a(f'v_mov_b32 v1, {L_MISC}')
    a('ds_write_b32 v1, v3')
    a('s_waitcnt lgkmcnt(0)')
    a('s_mov_b64 exec, -1')
    a.label(f'{name}_wait')
    a('s_barrier')
    a(f'v_mov_b32 v1, {L_MISC}')
    a('ds_read_b32 v3, v1')
    a('s_waitcnt lgkmcnt(0)')
    a('v_readfirstlane_b32 s24, v3')
    a('s_cmp_ge_u32 s24, 32')
    a(f's_cbranch_scc1 {name}_end')
    gen_chain(a, name)
    if STAMPS:
        a('s_memrealtime s[80:81]')
        a('s_memtime s[84:85]')
        a('s_waitcnt lgkmcnt(0) vmcnt(0)')
        a('s_mov_b64 exec, 1')
        a('s_lshl_b32 s3, s2, 2')
        a('s_add_u32 s3, s3, s22')
        a('s_lshl_b32 s3, s3, 4')
        a(f's_add_u32 s3, s3, {WS_STAMP + 3*0x20000}')
        a('s_sub_u32 s84, s84, s82')
        a('s_lshl_b32 s86, s86, 4')
        a('s_lshl_b32 s77, s77, 0')
        a('s_lshl_b32 s77, s77, 16')
        a('s_or_b32 s76, s76, s77')
        a('v_mov_b32 v0, s3')
        a('v_mov_b32 v4, s76'); a('v_mov_b32 v5, s86' if ENV('RT', 0) else 'v_mov_b32 v5, s84'); a('v_mov_b32 v6, s78'); a('v_mov_b32 v7, s80')
        a('global_store_dwordx4 v0, v[4:7], s[4:5]')
        a('s_nop 1')
    stamp_end(a, 2, n=9)
    a.label(f'{name}_end')
    a('s_endpgm')
    return dict(name=name, vgpr=256, agpr=256, sgpr=96, grid=256, block=256, lds=LDS_BYTES)
```

```python
from asmlib import *
from layout import *
from k2 import gen_argmax
from prep import wait_flags

def gen_out_item(a, name, seg, cg, st_ld='', merged=False):
    ws = 's[4:5]'
    UA, PB, ACC = 16, 96, 8
    a('s_mov_b32 s43, 0')
    a(f's_lshl_b32 s30, {cg}, 2')
    a('s_add_u32 s30, s30, s22')
    a(f's_mul_i32 s31, {seg}, 28')
    a('s_add_u32 s31, s31, s30')
    a('s_lshl_b32 s32, s31, 14')
    a(f's_add_u32 s32, s32, {WS_U + 4096}')
    a('v_add_u32 v2, s32, v1')
    for i in range(16):
        if i == 8: a('v_add_u32 v2, 8192, v2')
        a(f'global_load_dwordx4 {vr(UA+4*i,4)}, v2, {ws} offset:{1024*(i%8) - 4096} {st_ld}')
    a('s_lshl_b32 s32, s31, 12')
    a(f's_add_u32 s32, s32, {WS_M2}')
    a('v_add_u32 v2, s32, v4')
    for t in range(2):
        for u in range(2):
            for sel in range(2):
                a(f'global_load_dwordx2 {vr(UA+64+8*t+4*u+2*sel,2)}, v2, {ws} offset:{2048*t+1024*u+256*sel} {st_ld}')
    a(f's_mul_i32 s32, {seg}, {16*2560}')
    a(f's_add_u32 s32, s32, {WS_PX}')
    a('s_add_u32 s44, s4, s32')
    a('s_addc_u32 s45, s5, 0')
    a(f's_lshl_b32 s33, {seg}, 5')
    a('s_mul_i32 s32, s33, 896')
    a('s_lshl_b32 s34, s30, 5')
    a('s_add_u32 s32, s32, s34')
    a('v_add_u32 v3, s32, v5')
    a(f'v_add_u32 v7, {16*896}, v3')
    a('global_load_dwordx2 v[132:133], v3, s[8:9]')
    a('global_load_dwordx2 v[134:135], v7, s[8:9]')
    a('s_lshl_b32 s32, s33, 3')
    a(f's_add_u32 s32, s32, {WS_G}')
    a('v_add_u32 v2, s32, v6')
    a(f'global_load_dwordx2 v[136:137], v2, {ws} sc1')
    a(f'global_load_dwordx2 v[138:139], v2, {ws} offset:128 sc1')
    LP = 0x1000
    def poffs():
        for k in range(20):
            for sel in range(2):
                for tt in range(2):
                    if k < 16:
                        t, u = k // 2, k % 2
                        off = (2*t + sel)*2560 + u*1024 + tt*512; va = 128
                    else:
                        t, u = (k-16) // 2, k % 2
                        off = (8*t + 4*u + sel)*2560 + 2048 + tt*256; va = 129
                    yield k, ar(8*k + 4*tt + 2*sel, 2), va, off
    a('s_mul_i32 s32, s22, 10240')
    a('s_add_u32 s46, s44, s32')
    a('s_addc_u32 s47, s45, 0')
    a(f's_add_u32 s32, s32, {LP}')
    for i in range(10):
        if i % 4 == 0:
            a(f's_add_u32 m0, s32, {1024*i}')
            if i: a('s_add_u32 s46, s46, 4096'); a('s_addc_u32 s47, s47, 0')
        a(f'global_load_lds_dwordx4 v1, s[46:47] offset:{1024*(i%4)} {st_ld}')
    a('s_waitcnt vmcnt(0)')
    a('s_barrier')
    for k in range(16): a(f'v_swap_b32 v{UA+4*k+1}, v{UA+4*k+2}')
    def mf(k):
        for tt in range(2):
            acc = vr(ACC + 4*tt, 4)
            a(f'v_mfma_f32_16x16x32_bf16 {acc}, {vr(UA+4*k,4)}, {ar(8*k + 4*tt, 4)}, {acc if k else 0}')
    po = list(poffs())
    for k in range(20 + 3):
        if k < 20:
            for kk, dst, va, off in po[4*k:4*k+4]: a(f'ds_read_b64 {dst}, v{va} offset:{LP + off}')
        if k >= 3:
            a(f's_waitcnt lgkmcnt({min(12, 4*(22-k) if k >= 20 else 12)})')
            mf(k-3)
    a.label(f'{name}_pchk')
    a('v_add_f32 v140, v8, v12')
    a('v_cmp_u_f32 vcc, v140, v140')
    a(f's_cbranch_vccz {name}_pok')
    a('s_sub_u32 s42, s42, 20000')
    a(f's_cbranch_scc1 {name}_pgv')
    a('s_sleep 6')
    cur_hi = None
    for kk, dst, va, off in po:
        hi = off // 4096
        if hi != cur_hi:
            a(f's_add_u32 s46, s44, {hi*4096}')
            a('s_addc_u32 s47, s45, 0')
            cur_hi = hi
        a(f'global_load_dwordx2 {dst}, v{va}, s[46:47] offset:{off % 4096} {st_ld}')
    a('s_waitcnt vmcnt(0)')
    for k in range(20): mf(k)
    a(f's_branch {name}_pchk')
    a.label(f'{name}_pgv')
    a('s_mov_b32 s42, 0')
    a.label(f'{name}_pok')
    a('s_sub_u32 s34, s40, s33')
    a('s_cmp_lt_u32 s34, 32')
    a(f's_cbranch_scc1 {name}_ffnrow')
    a.label(f'{name}_ffnret')
    for tt in range(2):
        A_ = ACC + 4*tt; X = 132 + 2*tt; G = 136 + 2*tt
        if tt == 0 or True:
            a(f'v_lshlrev_b32 v16, 16, v{X}')
            a(f'v_and_b32 v17, 0xffff0000, v{X}')
            a(f'v_lshlrev_b32 v18, 16, v{X+1}')
            a(f'v_and_b32 v19, 0xffff0000, v{X+1}')
        a(f'v_cvt_pk_bf16_f32 v20, v{A_}, v{A_+1}')
        a(f'v_cvt_pk_bf16_f32 v21, v{A_+2}, v{A_+3}')
        a('v_lshlrev_b32 v22, 16, v20')
        a('v_and_b32 v23, 0xffff0000, v20')
        a('v_lshlrev_b32 v24, 16, v21')
        a('v_and_b32 v25, 0xffff0000, v21')
        for i in range(4):
            a(f'v_mul_f32 v{22+i}, v{G}, v{22+i}')
            a(f'v_mul_f32 v{16+i}, v{G+1}, v{16+i}')
        a('v_cvt_pk_bf16_f32 v20, v22, v23')
        a('v_cvt_pk_bf16_f32 v21, v24, v25')
        a('v_cvt_pk_bf16_f32 v26, v16, v17')
        a('v_cvt_pk_bf16_f32 v27, v18, v19')
        for i in range(2):
            a(f'v_lshlrev_b32 v22, 16, v{20+i}')
            a(f'v_and_b32 v23, 0xffff0000, v{20+i}')
            a(f'v_lshlrev_b32 v24, 16, v{26+i}')
            a(f'v_and_b32 v25, 0xffff0000, v{26+i}')
            a('v_add_f32 v22, v22, v24')
            a('v_add_f32 v23, v23, v25')
            a(f'v_cvt_pk_bf16_f32 v{28+2*tt+i}, v22, v23')
        a(f'global_store_dwordx2 v{[3,7][tt]}, {vr(28+2*tt,2)}, s[10:11]')
    return

def gen_ffnrow(a, name, st_ld='', merged=False):
    ws = 's[4:5]'
    a.label(f'{name}_ffnrow')
    if merged: wait_flags(a, name, WS_FLG + F_FFN, 28, va=16, budget='s42')
    a('v_lshrrev_b32 v2, 4, v0')
    a('v_lshlrev_b32 v2, 4, v2')
    a('s_lshl_b32 s35, s30, 6')
    a(f's_add_u32 s35, s35, {WS_YP}')
    a('v_add_u32 v2, s35, v2')
    for i in range(4): a(f'v_mov_b32 v{16+i}, 0')
    for blk in range(2):
        for p in range(14):
            if p % 2 == 0 and (p or blk): a('v_add_u32 v2, 3584, v2')
            a(f'global_load_dwordx4 {vr(32+4*p,4)}, v2, {ws} offset:{1792*(p%2)} {st_ld}')
        a('s_waitcnt vmcnt(0)')
        for p in range(14):
            for i in range(4): a(f'v_add_f32 v{16+i}, v{16+i}, v{32+4*p+i}')
    a('v_cvt_pk_bf16_f32 v20, v16, v17')
    a('v_cvt_pk_bf16_f32 v21, v18, v19')
    a('v_lshlrev_b32 v16, 16, v20')
    a('v_and_b32 v17, 0xffff0000, v20')
    a('v_lshlrev_b32 v18, 16, v21')
    a('v_and_b32 v19, 0xffff0000, v21')
    for i in range(4): a(f'v_mul_f32 v{16+i}, s41, v{16+i}')
    a('v_cvt_pk_bf16_f32 v20, v16, v17')
    a('v_cvt_pk_bf16_f32 v21, v18, v19')
    a('v_lshlrev_b32 v16, 16, v20')
    a('v_and_b32 v17, 0xffff0000, v20')
    a('v_lshlrev_b32 v18, 16, v21')
    a('v_and_b32 v19, 0xffff0000, v21')
    a('v_and_b32 v2, 15, v0')
    for tt in range(2):
        X = 132 + 2*tt
        a(f'v_lshlrev_b32 v22, 16, v{X}')
        a(f'v_and_b32 v23, 0xffff0000, v{X}')
        a(f'v_lshlrev_b32 v24, 16, v{X+1}')
        a(f'v_and_b32 v25, 0xffff0000, v{X+1}')
        for i in range(4): a(f'v_add_f32 v{22+i}, v{22+i}, v{16+i}')
        a('v_cvt_pk_bf16_f32 v20, v22, v23')
        a('v_cvt_pk_bf16_f32 v21, v24, v25')
        a(f's_sub_u32 s35, s34, {16*tt}')
        a('v_cmp_eq_u32 vcc, s35, v2')
        a(f'v_cndmask_b32 v{X}, v{X}, v20, vcc')
        a(f'v_cndmask_b32 v{X+1}, v{X+1}, v21, vcc')
    a(f's_branch {name}_ffnret')

def out_setup(a):
    a(f's_load_dwordx2 s[8:9], s[0:1], {KA_X}')
    a(f's_load_dwordx2 s[10:11], s[0:1], {KA_OUT}')
    a('v_and_b32 v0, 63, v0')
    a('v_lshlrev_b32 v1, 4, v0')
    a('v_and_b32 v2, 15, v0')
    a('v_lshrrev_b32 v3, 4, v0')
    a('v_lshrrev_b32 v4, 1, v3')
    a('v_lshlrev_b32 v4, 9, v4')
    a('v_and_b32 v5, 1, v3')
    a('v_lshl_add_u32 v4, v5, 7, v4')
    a('v_lshl_add_u32 v4, v2, 3, v4')
    a('v_lshrrev_b32 v129, 1, v3')
    a('v_mul_u32_u24 v129, 5120, v129')
    a('v_lshl_add_u32 v129, v5, 7, v129')
    a('v_lshl_add_u32 v129, v2, 3, v129')
    a('v_lshlrev_b32 v128, 3, v0')
    a('v_mul_u32_u24 v5, 896, v2')
    a('v_lshl_add_u32 v5, v3, 3, v5')
    a('v_lshlrev_b32 v6, 3, v2')
    a('v_and_b32 v130, 31, v0')
    a('v_lshrrev_b32 v131, 1, v130')
    a('v_mul_u32_u24 v131, 2560, v131')
    a('v_and_b32 v130, 1, v130')
    a('v_lshl_add_u32 v130, v130, 8, v131')
    a('v_add_u32 v130, 2048, v130')

def gen_k5(a, name='out_kernel'):
    a(f'.globl {name}\n.p2align 8\n.type {name},@function\n{name}:')
    a('s_cmp_ge_u32 s2, 448')
    a(f's_cbranch_scc1 {name}_end')
    a(f's_load_dwordx2 s[4:5], s[0:1], {KA_WS}')
    a('v_lshrrev_b32 v2, 6, v0')
    a('v_readfirstlane_b32 s22, v2')
    a('s_waitcnt lgkmcnt(0)')
    gen_argmax(a)
    a('s_mov_b32 s40, s27')
    out_setup(a)
    a('s_mul_i32 s24, s2, 9363')
    a('s_lshr_b32 s24, s24, 16')
    a('s_mul_i32 s25, s24, 7')
    a('s_sub_u32 s25, s2, s25')
    a('s_waitcnt lgkmcnt(0)')
    gen_out_item(a, name, 's24', 's25')
    a('s_endpgm')
    gen_ffnrow(a, name)
    a.label(f'{name}_end')
    a('s_endpgm')
    return dict(name=name, vgpr=144, agpr=160, sgpr=64, grid=448, block=256, lds=64)
```

```python
from asmlib import *
from layout import *
from prep import wait_flags, WgWait

def gen_mjob(a, name, wg='s24'):
    ws = 's[4:5]'
    X, ACC = 16, 80
    a('v_and_b32 v3, 63, v0')
    a(f's_lshl_b32 s29, {wg}, 2')
    a('s_add_u32 s29, s29, s22')
    a('s_mul_i32 s30, s29, 4682')
    a('s_lshr_b32 s30, s30, 16')
    a('s_mul_i32 s31, s30, 14')
    a('s_sub_u32 s31, s29, s31')
    a('s_mov_b32 s40, 2000000')
    with WgWait(a, True): wait_flags(a, name, WS_FLG + F_IMG, 896, lane='v3', va=4, sleep=20)
    a('s_mul_i32 s32, s30, 56')
    a('s_lshl_b32 s33, s31, 1')
    a('s_add_u32 s32, s32, s33')
    a(f's_mul_i32 s32, s32, {TILE_B}')
    a(f's_add_u32 s32, s32, {WS_VIMG}')
    a('v_lshlrev_b32 v4, 4, v3')
    a('v_add_u32 v5, s32, v4')
    for sel in range(2):
        for ci in range(2):
            img = 2*ci + sel
            a(f'v_add_u32 v8, {(sel*28+ci)*TILE_B}, v5')
            for blk in range(14):
                if blk % 4 == 0 and blk: a('v_add_u32 v8, 4096, v8')
                a(f'global_load_dwordx4 {ar(56*img+4*blk,4)}, v8, {ws} offset:{1024*(blk%4)}')
    a('v_lshrrev_b32 v6, 5, v3')
    a('v_lshlrev_b32 v6, 8, v6')
    a('v_bfe_u32 v7, v3, 4, 1')
    a('v_lshl_add_u32 v6, v7, 3, v6')
    a('v_and_b32 v7, 7, v3')
    a('v_lshl_add_u32 v6, v7, 5, v6')
    a(f'v_add_u32 v6, {WS_MEM2}, v6')
    a('v_add_u32 v7, 3584, v6')
    a('s_lshl_b32 s32, s33, 12')
    a('s_lshl_b32 s34, s30, 9')
    a('s_add_u32 s32, s32, s34')
    a(f's_add_u32 s32, s32, {WS_M2}')
    a('v_lshlrev_b32 v9, 3, v3')
    a('v_add_u32 v9, s32, v9')
    a('v_add_u32 v10, 4096, v9')
    a('s_lshl_b32 s34, s31, 3')
    a('s_add_u32 s34, s34, s30')
    a('s_lshl_b32 s34, s34, 2')
    a(f's_add_u32 s34, s34, {WS_FLG + F_M}')
    a('v_mov_b32 v11, s34')
    a('v_mov_b32 v12, s20')
    a('s_mov_b32 s36, 0')
    a(f'v_mov_b32 v13, {WS_FLG + F_DUMMY - 4096}')
    a('v_lshl_add_u32 v13, v3, 0, v13')
    a('s_lshl_b32 s34, s29, 5')
    a('v_mov_b32 v13, s34')
    a(f'v_add_u32 v13, {WS_FLG + F_MD}, v13')
    a(f's_branch {name}_mg')
    a.label(f'{name}_ml')
    a(f'global_load_dwordx2 v[14:15], v7, {ws} offset:{512*6+16} sc1')
    a('s_waitcnt vmcnt(0)')
    a('v_cmp_eq_u32 vcc, -1, v15')
    a(f's_cbranch_vccz {name}_mg')
    a('s_sleep 3')
    a('s_cmp_ge_u32 s36, 63')
    a(f's_cbranch_scc1 {name}_mss')
    a('s_sleep 12')
    a.label(f'{name}_mss')
    a('s_sub_u32 s40, s40, 1')
    a(f's_cbranch_scc0 {name}_ml')
    a('s_mov_b32 s40, 0')
    a.label(f'{name}_mg')
    for blk in range(14):
        va, o = ('v6', 512*blk) if blk < 7 else ('v7', 512*(blk-7))
        a(f'global_load_dwordx2 {vr(X+4*blk,2)}, {va}, {ws} offset:{o} sc1')
        a(f'global_load_dwordx2 {vr(X+4*blk+2,2)}, {va}, {ws} offset:{o+16} sc1')
    for blk in range(14):
        a(f's_waitcnt vmcnt({2*(13-blk) + (1 if blk else 0)})')
        if blk == 0:
            a('s_mov_b64 exec, 1')
            a(f'global_store_dword v13, v12, {ws} sc1')
            a('s_mov_b64 exec, -1')
        a(f'v_swap_b32 v{X+4*blk+1}, v{X+4*blk+2}')
        for img in range(4):
            acc = vr(ACC + 4*img, 4)
            a(f'v_mfma_f32_16x16x32_bf16 {acc}, {vr(X+4*blk,4)}, {ar(56*img+4*blk,4)}, {acc if blk else 0}')
    a(f'v_add_f32 v14, v{ACC}, v{ACC+1}')
    a(f'v_add_f32 v15, v{ACC+2}, v{ACC+3}')
    a('v_cmp_u_f32 vcc, v14, v15')
    a(f's_cbranch_vccz {name}_mk')
    a('s_sub_u32 s40, s40, 16')
    a(f's_cbranch_scc0 {name}_ml')
    a('s_mov_b32 s40, 0')
    a.label(f'{name}_mk')
    for img in range(4):
        A_ = ACC + 4*img
        a(f'v_cvt_pk_bf16_f32 v{96+2*img}, v{A_}, v{A_+1}')
        a(f'v_cvt_pk_bf16_f32 v{97+2*img}, v{A_+2}, v{A_+3}')
    a('s_mov_b32 exec_hi, 0')
    for img in range(4):
        ci, sel = img // 2, img % 2
        a(f'global_store_dwordx2 v{9+ci}, {vr(96+2*img,2)}, {ws} offset:{256*sel} sc1')
    a('s_mov_b32 exec_hi, -1')
    a('v_mov_b32 v13, v11')
    for r, inc in ((6, 7168), (7, 7168), (9, 28*4096), (10, 28*4096), (11, 448)): a(f'v_add_u32 v{r}, {inc}, v{r}')
    a('s_add_u32 s36, s36, 1')
    a('s_cmp_lt_u32 s36, 64')
    a(f's_cbranch_scc1 {name}_mg')
    a('s_waitcnt vmcnt(0)')
    a('s_mov_b64 exec, 1')
    a(f'global_store_dword v13, v12, {ws} sc1')
    a('s_mov_b64 exec, -1')
```

```python
from asmlib import *
from layout import *
from k1 import stamp, stamp_end, stamp_init
from k2 import gen_ugemm, gen_ffn, gen_argmax
from k3 import gen_chain, L_MISC, LDS_BYTES, ENV
from k4 import gen_hs
from prep import gen_img_job, wait_flags, wait_arrivals, get_tag, WgWait, wait_prog
from k6 import gen_mjob
from k5 import gen_out_item, gen_ffnrow, out_setup

NS_REP = 4
import os

def gen_main(a, name='main_kernel'):
    a(f'.globl {name}\n.p2align 8\n.type {name},@function\n{name}:')
    a('s_cmp_ge_u32 s2, 256')
    a(f's_cbranch_scc1 {name}_end')
    a(f's_load_dwordx2 s[4:5], s[0:1], {KA_WS}')
    a(f's_load_dwordx2 s[6:7], s[0:1], {KA_DBG}')
    stamp_init(a)
    if STAMPS:
        a('s_mov_b32 s76, 0'); a('s_mov_b32 s77, 0'); a('s_mov_b32 s86, 0'); a('s_mov_b32 s88, 0'); a('s_memrealtime s[78:79]'); a('s_memtime s[82:83]')
    a('s_memrealtime s[16:17]')
    a('s_getreg_b32 s23, hwreg(HW_REG_XCC_ID)')
    a('s_and_b32 s23, s23, 7')
    if ENV('FAKEXCC', 0) == 1:
        a('s_and_b32 s23, s2, 3'); a('s_add_u32 s23, s23, 1')
    if ENV('FAKEXCC', 0) == 2:
        a('s_mul_i32 s23, s2, 5'); a('s_and_b32 s23, s23, 15'); a('s_min_u32 s23, s23, 5')
    a('v_lshrrev_b32 v2, 6, v0')
    a('v_readfirstlane_b32 s22, v2')
    a('s_waitcnt lgkmcnt(0)')
    a('s_cmp_lg_u32 s22, 0')
    a(f's_cbranch_scc1 {name}_wait')
    a('s_mov_b64 exec, 1')
    a('s_and_b32 s24, s23, 3')
    a('s_lshl_b32 s24, s24, 6')
    a('s_lshr_b32 s25, s23, 2')
    a('s_lshl_b32 s25, s25, 2')
    a('s_add_u32 s24, s24, s25')
    a('v_mov_b32 v1, s24')
    a('v_mov_b32 v2, 1')
    a('global_atomic_add v3, v1, v2, s[6:7] sc0')
    a('s_waitcnt vmcnt(0)')
    a('v_readfirstlane_b32 s24, v3')
    a('v_mov_b32 v1, 0')
    a('s_cmp_lg_u32 s24, 0')
    a(f's_cbranch_scc1 {name}_notag')
    a('s_or_b32 s20, s16, 1')
    a('v_mov_b32 v6, s20')
    a('v_mov_b32 v7, 0')
    a(f'global_atomic_cmpswap v1, v[6:7], s[6:7] offset:{DBG_TAG}')
    a.label(f'{name}_notag')
    a('s_lshl_b32 s25, s23, 5')
    a('s_add_u32 s25, s25, s24')
    a('v_mov_b32 v3, s25')
    a('s_cmp_lt_u32 s24, 32')
    a(f's_cbranch_scc1 {name}_pub')
    a(f'global_atomic_add v3, v1, v2, s[6:7] offset:{DBG_OVF} sc0')
    a('s_mov_b32 s40, 1000000')
    wait_arrivals(a, name + '_o')
    a('v_readfirstlane_b32 s24, v3')
    a('s_mov_b32 s26, 255')
    for x in range(8):
        lx = a.newlabel('ovf')
        a(f'v_readfirstlane_b32 s25, v{8 + 2*(x%4) + x//4}')
        a('s_min_u32 s25, s25, 32')
        a('s_sub_u32 s27, 32, s25')
        a('s_cmp_lt_u32 s24, s27')
        a(f's_cbranch_scc0 {lx}')
        a('s_add_u32 s26, s24, s25')
        a(f's_add_u32 s26, s26, {32*x}')
        a(f's_branch {name}_ovd')
        a.label(lx)
        a('s_sub_u32 s24, s24, s27')
    a.label(f'{name}_ovd')
    a('v_mov_b32 v3, s26')
    a.label(f'{name}_pub')
    a(f'v_mov_b32 v1, {L_MISC}')
    a('ds_write_b32 v1, v3')
    a('s_waitcnt lgkmcnt(0)')
    a('s_mov_b64 exec, -1')
    a.label(f'{name}_wait')
    a('s_barrier')
    a(f'v_mov_b32 v1, {L_MISC}')
    a('ds_read_b32 v2, v1')
    a('s_waitcnt lgkmcnt(0)')
    a('v_readfirstlane_b32 s24, v2')
    a('s_cmp_ge_u32 s24, 32')
    a(f's_cbranch_scc1 {name}_helper')
    gen_chain(a, name + '_c', merged=True)
    a(f's_branch {name}_fin')
    a.label(f'{name}_helper')
    a('s_sub_u32 s24, s24, 32')
    a('v_mov_b32 v250, v0')
    a('s_mov_b32 s38, s24')
    a('s_and_b32 s21, s24, 31')
    a('s_mul_i32 s21, s21, 7')
    a('s_lshr_b32 s25, s24, 5')
    a('s_add_u32 s21, s21, s25')
    a('s_mov_b32 s24, s21')
    if STAMPS: a('s_add_u32 s74, s21, 100')
    a('s_sub_u32 s25, s24, 140')
    a(f's_cmp_ge_u32 s25, {16*NS_REP}')
    a(f's_cbranch_scc1 {name}_nopf')
    a('s_cmp_ge_u32 s22, 3')
    a(f's_cbranch_scc1 {name}_nopf')
    a('s_mul_i32 s25, s25, 2560')
    a(f's_add_u32 s25, s25, {WS_PX}')
    a('v_min_u32 v1, 159, v0')
    a('v_lshlrev_b32 v1, 4, v1')
    a('v_add_u32 v1, s25, v1')
    for r in range(4): a(f'v_mov_b32 v{4+r}, -1')
    for i in range(64 // NS_REP):
        a('global_store_dwordx4 v1, v[4:7], s[4:5] sc1')
        a(f'v_add_u32 v1, {NS_REP*16*2560}, v1')
    a.label(f'{name}_nopf')
    a('s_lshr_b32 s25, s38, 3')
    a('s_mul_i32 s26, s25, 9363')
    a('s_lshr_b32 s26, s26, 16')
    a('s_mul_i32 s27, s26, 7')
    a('s_sub_u32 s27, s25, s27')
    a('s_lshl_b32 s26, s26, 3')
    a('s_and_b32 s25, s38, 7')
    a('s_add_u32 s26, s26, s25')
    a('s_mul_i32 s39, s26, 7')
    a('s_add_u32 s39, s39, s27')
    gen_img_job(a, name, 's39', unit='s21')
    a('s_barrier')
    a('v_mov_b32 v0, v250')
    a('s_mov_b32 s24, s21')
    if ENV('BISECT', 0) == 1 or ENV('NOH', 0): a(f's_branch {name}_fin')
    a('s_cmp_lt_u32 s24, 112')
    a(f's_cbranch_scc1 {name}_hu')
    a('s_cmp_lt_u32 s24, 140')
    a(f's_cbranch_scc1 {name}_hf')
    a(f's_cmp_lt_u32 s24, {140 + 16*NS_REP}')
    a(f's_cbranch_scc1 {name}_hs')
    a(f's_branch {name}_ho')
    a.label(f'{name}_hu')
    gen_ugemm(a, name, 's24', 's22', ENV('UN', 16), 4, st=os.environ.get('UST', 'sc1'), sig=True)
    a(f's_cmp_lt_u32 s24, {ENV("NUO", 28)}')
    a(f's_cbranch_scc0 {name}_fin')
    a(f's_branch {name}_ho')
    a.label(f'{name}_hf')
    if ENV('NOF', 0): a(f's_branch {name}_fin')
    a('s_sub_u32 s24, s24, 112')
    a('s_mov_b32 s40, 1000000')
    a('v_and_b32 v3, 63, v0')
    with WgWait(a): wait_prog(a, name, 1, va=4, sleep=80)
    gen_ffn(a, name, st='sc1')
    gen_mjob(a, name, 's24')
    a(f's_branch {name}_fin')
    a.label(f'{name}_hs')
    if ENV('NOS', 0): a(f's_branch {name}_fin')
    a('s_sub_u32 s24, s24, 140')
    a('s_lshr_b32 s25, s24, 4')
    a('s_and_b32 s24, s24, 15')
    a('s_mov_b32 s40, 1000000')
    a('v_and_b32 v3, 63, v0')
    a('s_mul_i32 s26, s24, 112')
    a(f's_add_u32 s26, s26, {WS_FLG + F_IMG}')
    with WgWait(a, True):
        wait_prog(a, name, 1, va=4, sleep=80)
        wait_flags(a, name, 's26', 28, lane='v3', va=4)
    gen_hs(a, name, 's24', 's25', 64 // NS_REP, NS_REP, merged=True)
    a(f's_branch {name}_fin')
    a.label(f'{name}_ho')
    if ENV('NOO', 0): a(f's_branch {name}_fin')
    a('s_waitcnt vmcnt(0) lgkmcnt(0)')
    a('v_mov_b32 v0, v250')
    a('s_mov_b32 s40, 1000000')
    a('v_and_b32 v3, 63, v0')
    with WgWait(a):
        wait_prog(a, name, 1, va=4, sleep=80)
        wait_flags(a, name, WS_FLG + F_IMG, 896, lane='v3', va=4, sleep=40)
    gen_argmax(a)
    a('s_mov_b32 s40, s27')
    out_setup(a)
    a('s_mov_b32 s42, 2000000')
    a('v_cmp_gt_u32 s[48:49], 32, v0')
    a('v_and_b32 v131, 15, v0')
    a('v_lshlrev_b32 v131, 2, v131')
    a(f'v_add_u32 v131, {WS_FLG + F_U}, v131')
    a(f'v_add_u32 v2, {F_M - F_U}, v131')
    a('v_cmp_lt_u32 vcc, 47, v0')
    a('v_cndmask_b32 v131, v131, v2, vcc')
    a('s_waitcnt lgkmcnt(0)')
    a.label(f'{name}_oloop')
    a('s_waitcnt vmcnt(0)')
    a('s_cmp_lg_u32 s22, 0')
    a(f's_cbranch_scc1 {name}_ow')
    a('s_mov_b64 exec, 1')
    a('v_mov_b32 v2, 0')
    a('v_mov_b32 v3, 1')
    a(f'global_atomic_add v7, v2, v3, s[6:7] offset:{DBG_OT} sc0')
    a('s_waitcnt vmcnt(0)')
    a('ds_write_b32 v2, v7 offset:64')
    a('s_mov_b64 exec, -1')
    a('v_readfirstlane_b32 s26, v7')
    a('s_cmp_ge_u32 s26, 448')
    a(f's_cbranch_scc1 {name}_cwd')
    a('s_mul_i32 s24, s26, 9363')
    a('s_lshr_b32 s24, s24, 16')
    a('s_mul_i32 s25, s24, 7')
    a('s_sub_u32 s25, s26, s25')
    a(f's_mul_i32 s32, s24, {16*2560}')
    a(f's_add_u32 s32, s32, {WS_PX}')
    a('v_add_u32 v2, s32, v130')
    a('s_mul_i32 s30, s24, 448')
    a('s_lshl_b32 s31, s25, 6')
    a('s_add_u32 s30, s30, s31')
    a('v_add_u32 v3, s30, v131')
    a('v_cndmask_b32 v2, v3, v2, s[48:49]')
    a.label(f'{name}_pw')
    a('global_load_dword v3, v2, s[4:5] sc1')
    a('s_waitcnt vmcnt(0)')
    a('v_cmp_eq_u32 vcc, -1, v3')
    a('v_cmp_ne_u32 s[50:51], s20, v3')
    a('s_mov_b32 vcc_hi, s51')
    a('s_cmp_eq_u64 vcc, 0')
    a(f's_cbranch_scc1 {name}_cwd')
    a('s_sleep 3')
    a('s_cmp_ge_u32 s24, 61')
    a(f's_cbranch_scc1 {name}_pws')
    a(f's_sleep {ENV("OSLP", 24)}')
    a.label(f'{name}_pws')
    a('s_sub_u32 s42, s42, 1')
    a(f's_cbranch_scc0 {name}_pw')
    a('s_mov_b32 s42, 0')
    a.label(f'{name}_cwd')
    a('s_waitcnt lgkmcnt(0)')
    a.label(f'{name}_ow')
    a('s_barrier')
    a('v_mov_b32 v2, 0')
    a('ds_read_b32 v7, v2 offset:64')
    a('s_waitcnt lgkmcnt(0)')
    a('v_readfirstlane_b32 s26, v7')
    a('s_barrier')
    a('s_cmp_ge_u32 s26, 448')
    a(f's_cbranch_scc1 {name}_fin')
    a('s_mul_i32 s24, s26, 9363')
    a('s_lshr_b32 s24, s24, 16')
    a('s_mul_i32 s25, s24, 7')
    a('s_sub_u32 s25, s26, s25')
    gen_out_item(a, name, 's24', 's25', st_ld='sc1', merged=True)
    a(f's_branch {name}_oloop')
    gen_ffnrow(a, name, st_ld='sc1', merged=True)
    a.label(f'{name}_fin')
    if STAMPS:
        a('s_memrealtime s[80:81]')
        a('s_memtime s[84:85]')
        a('s_waitcnt lgkmcnt(0) vmcnt(0)')
        a('s_mov_b64 exec, 1')
        a('s_lshl_b32 s3, s2, 2')
        a('s_add_u32 s3, s3, s22')
        a('s_lshl_b32 s3, s3, 4')
        a(f's_add_u32 s3, s3, {WS_STAMP + 3*0x20000}')
        a('s_sub_u32 s84, s84, s82')
        a('s_lshl_b32 s86, s86, 24')
        a('s_or_b32 s76, s76, s86')
        a('s_lshl_b32 s77, s77, 16')
        a('s_or_b32 s76, s76, s77')
        a('v_mov_b32 v0, s3')
        a('v_mov_b32 v4, s84' if ENV('CLK', 0) else 'v_mov_b32 v4, s76'); a('v_mov_b32 v5, s88'); a('v_mov_b32 v6, s78'); a('v_mov_b32 v7, s80')
        a('global_store_dwordx4 v0, v[4:7], s[4:5]')
        a('s_nop 1')
    stamp_end(a, 2, n=9)
    a.label(f'{name}_end')
    a('s_endpgm')
    return dict(name=name, vgpr=256, agpr=256, sgpr=96, grid=256, block=256, lds=LDS_BYTES)
```

```python
from asmlib import *
from layout import *
from k1 import wave_sum2, stamp
import os
IMGST = os.environ.get('IMGST', 'sc1')

def set_flag(a, off_sgpr_or_imm, vt=1, ws='s[4:5]'):
    a('s_waitcnt vmcnt(0)')
    a(f'v_mov_b32 v{vt}, {off_sgpr_or_imm}')
    a(f'v_mov_b32 v{vt+1}, s20')
    a('s_mov_b64 exec, 1')
    a(f'global_store_dword v{vt}, v{vt+1}, {ws} sc1')
    a('s_mov_b64 exec, -1')

def wait_flags(a, name, base, nwords, lane='v0', va=1, sleep=8, budget='s40', ws='s[4:5]'):
    k = (nwords + 63) // 64
    L = a.newlabel(name + '_wf'); D = a.newlabel(name + '_wd')
    a(f'v_lshlrev_b32 v{va}, 2, {lane}')
    if nwords < 64: a(f'v_min_u32 v{va}, {4*(nwords-1)}, v{va}')
    else: assert nwords % 64 == 0
    a(f'v_add_u32 v{va}, {base}, v{va}')
    a.label(L)
    for i in range(k): a(f'global_load_dword v{va+1+i}, v{va}, {ws} offset:{256*i} sc1')
    a('s_waitcnt vmcnt(0)')
    for i in range(k):
        a(f'v_xor_b32 v{va+1+i}, s20, v{va+1+i}')
        if i: a(f'v_or_b32 v{va+1}, v{va+1}, v{va+1+i}')
    a(f'v_cmp_ne_u32 vcc, 0, v{va+1}')
    a(f's_cbranch_vccz {D}')
    a(f's_sleep {sleep}')
    a(f's_sub_u32 {budget}, {budget}, 1')
    a(f's_cbranch_scc0 {L}')
    a(f's_mov_b32 {budget}, 0')
    a.label(D)

class WgWait:
    def __init__(self, a, inv=False): self.a = a; self.l = a.newlabel('wgw'); self.inv = inv
    def __enter__(self):
        self.a('s_cmp_lg_u32 s22, 0'); self.a(f's_cbranch_scc1 {self.l}')
    def __exit__(self, *x):
        if self.inv:
            self.a('buffer_inv sc1'); self.a('s_waitcnt vmcnt(0)')
        self.a.label(self.l); self.a('s_barrier')

def wait_prog(a, name, need, va=1, sleep=60, budget='s40'):
    L = a.newlabel(name + '_pg'); D = a.newlabel(name + '_pd')
    a('s_and_b32 s3, s2, 15')
    a('s_lshl_b32 s3, s3, 8')
    a(f's_add_u32 s3, s3, {WS_FLG + F_PROG}')
    a(f'v_mov_b32 v{va}, s3')
    a.label(L)
    a(f'global_load_dword v{va+1}, v{va}, s[4:5] sc1')
    a('s_waitcnt vmcnt(0)')
    a(f'v_readfirstlane_b32 s3, v{va+1}')
    a('s_sub_u32 s3, s3, s20')
    a(f's_sub_u32 s3, s3, {need}')
    a('s_cmp_lt_u32 s3, 128')
    a(f's_cbranch_scc1 {D}')
    a(f's_sleep {sleep}')
    a(f's_sub_u32 {budget}, {budget}, 1')
    a(f's_cbranch_scc0 {L}')
    a(f's_mov_b32 {budget}, 0')
    a.label(D)

def get_tag(a, name, v=1):
    L = a.newlabel(name + '_gt'); D = a.newlabel(name + '_gd')
    a(f'v_mov_b32 v{v}, 0')
    a.label(L)
    a(f'global_load_dword v{v+1}, v{v}, s[6:7] offset:{DBG_TAG} sc1')
    a('s_waitcnt vmcnt(0)')
    a(f'v_readfirstlane_b32 s20, v{v+1}')
    a('s_cmp_lg_u32 s20, 0')
    a(f's_cbranch_scc1 {D}')
    a('s_sleep 2')
    a('s_sub_u32 s40, s40, 1')
    a(f's_cbranch_scc0 {L}')
    a('s_mov_b32 s40, 0')
    a.label(D)

def wait_arrivals(a, name):
    L = a.newlabel(name + '_aw'); D = a.newlabel(name + '_ad')
    a('v_mov_b32 v7, 0')
    a.label(L)
    for i in range(4): a(f'global_load_dwordx2 v[{8+2*i}:{9+2*i}], v7, s[6:7] offset:{64*i} sc1')
    a('s_waitcnt vmcnt(0)')
    a('v_add3_u32 v16, v8, v9, v10')
    a('v_add3_u32 v16, v16, v11, v12')
    a('v_add3_u32 v16, v16, v13, v14')
    a('v_add_u32 v16, v16, v15')
    a('v_readfirstlane_b32 s25, v16')
    a('s_cmp_ge_u32 s25, 256')
    a(f's_cbranch_scc1 {D}')
    a('s_sleep 4')
    a('s_sub_u32 s40, s40, 1')
    a(f's_cbranch_scc0 {L}')
    a('s_mov_b32 s40, 0')
    a.label(D)

def gen_img_job(a, name, job='s24', unit='s24'):
    AOP, ACC, BOP = 16, 144, 208
    a(f's_load_dwordx4 s[8:11], s[0:1], {KA_WQ}')
    a(f's_load_dwordx4 s[12:15], s[0:1], {KA_WV}')
    a(f's_mul_i32 s25, {job}, 9363')
    a('s_lshr_b32 s25, s25, 16')
    a('s_mul_i32 s26, s25, 7')
    a(f's_sub_u32 s26, {job}, s26')
    a('s_lshr_b32 s23, s25, 4')
    a('s_and_b32 s25, s25, 15')
    a('v_and_b32 v3, 63, v0')
    a('v_and_b32 v8, 15, v3')
    a('v_lshrrev_b32 v9, 4, v3')
    a('s_waitcnt lgkmcnt(0)')
    a('s_cmp_eq_u32 s23, 1')
    a('s_cselect_b32 s28, s12, s8')
    a('s_cselect_b32 s29, s13, s9')
    a(f's_cselect_b32 s30, {WS_VIMG}, {WS_AIMG}')
    a('s_cselect_b32 s31, 1.0, 0x3db8aa3b')
    a(f's_cbranch_scc1 {name}_stV')
    a('v_lshrrev_b32 v14, 5, v0')
    a('v_and_b32 v15, 31, v0')
    a('s_lshl_b32 s34, s26, 6')
    a('v_add_u32 v1, s34, v14')
    a('v_lshlrev_b32 v1, 13, v1')
    a('s_lshl_b32 s33, s25, 9')
    a('v_lshl_add_u32 v1, v15, 4, v1')
    a('v_add_u32 v1, s33, v1')
    for i in range(8):
        a(f'global_load_dwordx4 {vr(BOP + 4*i, 4)}, v1, s[10:11]')
        if i < 7: a('v_add_u32 v1, 0x10000, v1')
    a('v_mul_u32_u24 v2, 528, v14')
    a('v_lshl_add_u32 v2, v15, 4, v2')
    a('s_mov_b32 s35, 4224')
    a(f's_branch {name}_stD')
    a.label(f'{name}_stV')
    a('v_lshrrev_b32 v14, 3, v0')
    a('v_and_b32 v15, 7, v0')
    a('v_mul_u32_u24 v1, 896, v14')
    a('v_lshl_add_u32 v1, v15, 4, v1')
    a('s_mul_i32 s33, s25, 229376')
    a('s_lshl_b32 s34, s26, 7')
    a('s_add_u32 s33, s33, s34')
    a('v_add_u32 v1, s33, v1')
    for i in range(8):
        a(f'global_load_dwordx4 {vr(BOP + 4*i, 4)}, v1, s[14:15]')
        if i < 7: a('v_add_u32 v1, 28672, v1')
    a('v_mul_u32_u24 v2, 144, v14')
    a('v_lshl_add_u32 v2, v15, 4, v2')
    a('s_mov_b32 s35, 4608')
    a.label(f'{name}_stD')
    LA = 0xA000
    a('s_add_u32 s36, s22, s26')
    a('s_cmp_ge_u32 s36, 7')
    a('s_cselect_b32 s32, 7, 0')
    a('s_sub_u32 s36, s36, s32')
    a('s_add_u32 s37, s36, 4')
    a('s_cmp_ge_u32 s37, 7')
    a('s_cselect_b32 s32, 7, 0')
    a('s_sub_u32 s37, s37, s32')
    a('v_lshlrev_b32 v10, 13, v9')
    a('v_lshl_add_u32 v10, v8, 4, v10')
    a('s_lshl_b32 s33, s25, 9')
    a('v_add_u32 v10, s33, v10')
    a('s_lshl_b32 s32, s36, 19')
    a('s_add_u32 s16, s28, s32')
    a('s_addc_u32 s17, s29, 0')
    a('s_lshl_b32 s32, s37, 19')
    a('s_add_u32 s18, s28, s32')
    a('s_addc_u32 s19, s29, 0')
    def areg(sl, hh, i): return (vr if sl == 0 else ar)((AOP if sl == 0 else 0) + 64*hh + 4*i, 4)
    def aload_ops(sl):
        ops = []
        for qd in range(4):
            ops.append([f's_add_u32 s32, s22, {qd}', 's_and_b32 s32, s32, 3', 's_lshl_b32 s32, s32, 17', 'v_add_u32 v11, s32, v10'])
            for i4 in range(4):
                for hh in range(2):
                    ops.append([f'global_load_dwordx4 {areg(sl, hh, 4*qd + i4)}, v11, s[{16+2*sl}:{17+2*sl}] offset:{256*hh}'])
                if i4 < 3: ops.append(['v_add_u32 v11, 0x8000, v11'])
        return ops
    a('s_cmp_eq_u32 s22, 3')
    a(f's_cbranch_scc1 {name}_skA')
    for l in aload_ops(0):
        for o in l: a(o)
    a(f's_branch {name}_skAd')
    a.label(f'{name}_skA')
    a('s_waitcnt vmcnt(0)')
    a.label(f'{name}_skAd')
    for i in range(8):
        a(f's_waitcnt vmcnt({32 + 7 - i})')
        a(f'ds_write_b128 v2, {vr(BOP + 4*i, 4)}')
        if i < 7: a('v_add_u32 v2, s35, v2')
    a('s_mul_i32 s32, s22, 17408')
    a(f's_add_u32 s32, s32, {LA}')
    a('v_mul_u32_u24 v12, 272, v9')
    a('v_lshl_add_u32 v12, v8, 4, v12')
    a('v_add_u32 v12, s32, v12')
    a('v_lshrrev_b32 v13, 3, v8')
    a('v_lshlrev_b32 v13, 4, v13')
    a('v_bfe_u32 v11, v8, 2, 1')
    a('v_lshl_add_u32 v13, v11, 2, v13')
    a('v_and_b32 v11, 3, v8')
    a('v_add_u32 v13, v13, v11')
    a('v_mul_u32_u24 v13, 272, v13')
    a('v_lshl_add_u32 v13, v9, 4, v13')
    a('v_add_u32 v13, s32, v13')
    a('s_waitcnt lgkmcnt(0)')
    a('s_barrier')
    stamp(a, 3)
    a('s_mov_b32 s40, 1000000')
    get_tag(a, name, v=5)
    a(f's_lshl_b32 s38, {job}, 2')
    a('s_add_u32 s38, s38, s22')
    a('s_lshl_b32 s38, s38, 2')
    a(f's_add_u32 s38, s38, {WS_FLG + F_IMG0}')
    a('s_cmp_lg_u32 s22, 3')
    a(f's_cbranch_scc1 {name}_nx')
    set_flag(a, 's38', vt=5)
    a(f's_cmp_ge_u32 {unit}, 128')
    a(f's_cbranch_scc1 {name}_nx2')
    a('v_mov_b32 v251, v10'); a('v_mov_b32 v252, v12'); a('v_mov_b32 v253, v13')
    a('s_mov_b64 s[44:45], s[16:17]'); a('s_mov_b64 s[46:47], s[18:19]'); a('s_mov_b32 s48, s25'); a('s_mov_b32 s49, s26')
    a(f's_mov_b32 s34, {0xA000 + 3*17408}')
    gen_xprep(a, name, unit, 's34')
    a('v_mov_b32 v10, v251'); a('v_mov_b32 v12, v252'); a('v_mov_b32 v13, v253')
    a('s_mov_b64 s[16:17], s[44:45]'); a('s_mov_b64 s[18:19], s[46:47]'); a('s_mov_b32 s25, s48'); a('s_mov_b32 s26, s49')
    a.label(f'{name}_nx2')
    for l in aload_ops(0):
        for o in l: a(o)
    a.label(f'{name}_nx')
    a('s_mul_i32 s33, s25, 28')
    a('s_lshl_b32 s34, s26, 2')
    a('s_add_u32 s33, s33, s34')
    a('s_mul_i32 s33, s33, 14')
    a('s_lshl_b32 s33, s33, 10')
    a('s_add_u32 s33, s33, s30')
    a('v_lshlrev_b32 v1, 4, v3')
    a('v_add_u32 v1, s33, v1')
    a('s_lshl_b32 s34, s37, 11')
    a('v_add_u32 v15, s34, v1')
    a('s_lshl_b32 s34, s36, 11')
    a('v_add_u32 v1, s34, v1')
    def mainloop(bread, nrd, sl):
        side = aload_ops(1) if sl == 0 else []
        if sl == 0:
            pass
        for hh in range(2):
            if hh == 0: a('s_waitcnt vmcnt(8)' if sl == 1 else 's_waitcnt vmcnt(0)')
            for qd in range(4):
                a(f's_add_u32 s32, s22, {qd}'); a('s_and_b32 s32, s32, 3'); a('s_mul_i32 s32, s32, 4352'); a('v_add_u32 v14, s32, v12')
                for i4 in range(4):
                    a(f'ds_write_b128 v14, {areg(sl, hh, 4*qd + i4)} offset:{1088*i4}')
            OP = AOP + (0 if hh == 0 else 64) if sl == 0 else AOP
            a('s_waitcnt lgkmcnt(0)')
            def rd(kk, buf):
                for q in range(4):
                    a(f'ds_read_b128 {vr(OP + 16*buf + 4*q, 4)}, v13 offset:{(32*(q//2) + 8*(q%2))*272 + 64*kk}')
                bread(4*hh + kk, BOP + 16*buf)
            rd(0, 0)
            for kk in range(4):
                if kk < 3:
                    rd(kk+1, (kk+1) % 2)
                    a(f's_waitcnt lgkmcnt({min(4 + nrd, 15)})')
                else:
                    a('s_waitcnt lgkmcnt(0)')
                for q in range(4):
                    for jn in range(4):
                        acc = vr(ACC + 16*q + 4*jn, 4)
                        a(f'v_mfma_f32_16x16x32_bf16 {acc}, {vr(OP + 16*(kk%2) + 4*q, 4)}, {vr(BOP + 16*(kk%2) + 4*jn, 4)}, {acc if (kk or hh) else 0}')
                        if side and jn % 2 == 1:
                            for o in side.pop(0): a(o)
                if sl == 1 and hh == 0 and kk == 1: set_flag(a, 's38', vt=5)
        assert not side
    def epi():
        a('v_mov_b32 v4, v1')
        for jn in range(4):
            for u in range(2):
                X = ACC + 16*(2*u) + 4*jn; Y = ACC + 16*(2*u+1) + 4*jn
                for r in range(4):
                    a(f'v_mul_f32 v{X+r}, s31, v{X+r}')
                    a(f'v_mul_f32 v{Y+r}, s31, v{Y+r}')
                o = 240 + 4*((2*jn+u) % 2)
                a(f'v_cvt_pk_bf16_f32 v{o}, v{X}, v{X+1}')
                a(f'v_cvt_pk_bf16_f32 v{o+1}, v{Y}, v{Y+1}')
                a(f'v_cvt_pk_bf16_f32 v{o+2}, v{X+2}, v{X+3}')
                a(f'v_cvt_pk_bf16_f32 v{o+3}, v{Y+2}, v{Y+3}')
                a(f'global_store_dwordx4 v4, {vr(o,4)}, s[4:5] offset:{1024*u} {IMGST}')
            if jn < 3: a(f'v_add_u32 v4, {TILE_B}, v4')
    for typ in 'AV':
        if typ == 'A':
            a('s_cmp_eq_u32 s23, 1')
            a(f's_cbranch_scc1 {name}_mV')
            a('v_mul_u32_u24 v2, 528, v8')
            a('v_lshl_add_u32 v2, v9, 4, v2')
            def bread(k, dst):
                for jn in range(4): a(f'ds_read_b128 {vr(dst + 4*jn, 4)}, v2 offset:{8448*jn + 64*k}')
            nrd = 4
        else:
            a.label(f'{name}_mV')
            a('v_lshrrev_b32 v2, 2, v8')
            a('v_lshl_add_u32 v2, v9, 3, v2')
            a('v_mul_u32_u24 v2, 144, v2')
            a('v_and_b32 v14, 3, v8')
            a('v_lshl_add_u32 v2, v14, 3, v2')
            def bread(k, dst):
                for jn in range(4):
                    a(f'ds_read_b64_tr_b16 {vr(dst + 4*jn, 2)}, v2 offset:{4608*k + 32*jn}')
                    a(f'ds_read_b64_tr_b16 {vr(dst + 4*jn + 2, 2)}, v2 offset:{4608*k + 576 + 32*jn}')
            nrd = 8
        mainloop(bread, nrd, 0)
        epi()
        a('s_cmp_eq_u32 s22, 3')
        a(f's_cbranch_scc1 {name}_jd')
        a('v_mov_b32 v1, v15')
        mainloop(bread, nrd, 1)
        epi()
        if typ == 'A': a(f's_branch {name}_jd')
    a.label(f'{name}_jd')
    stamp(a, 1)
    if IMGST == '':
        a('buffer_wbl2 sc1'); a('s_waitcnt vmcnt(0)')
    a(f's_lshl_b32 s33, {job}, 2')
    a('s_add_u32 s33, s33, s22')
    a('s_lshl_b32 s33, s33, 2')
    a(f's_add_u32 s33, s33, {WS_FLG + F_IMG}')
    set_flag(a, 's33')
    stamp(a, 2)

def gen_xprep(a, name, unit, lds_base):
    a(f's_load_dwordx2 s[16:17], s[0:1], {KA_X}')
    a(f's_load_dwordx2 s[18:19], s[0:1], {KA_WR}')
    a(f's_load_dwordx2 s[12:13], s[0:1], {KA_GW}')
    a('v_lshlrev_b32 v1, 4, v3')
    a(f's_mul_i32 s25, {unit}, 14336')
    a('v_add_u32 v2, s25, v1')
    a('v_add_u32 v4, 8192, v2')
    a('v_min_u32 v5, 880, v1')
    a('s_waitcnt lgkmcnt(0)')
    for i in range(14):
        a(f'global_load_dwordx4 {vr(16+4*i,4)}, v{2 if i < 4 or (i < 8) else 4}, s[16:17] offset:{1024*i if i < 4 else (1024*(i-8) if i >= 8 else 0)}' if (i < 4 or 8 <= i < 12) else
          f'global_load_dwordx4 {vr(16+4*i,4)}, v{4 if i < 8 else 6}, s[16:17] offset:{1024*(i-8) if i < 8 else 1024*(i-12)}')
        if i == 3: a('v_add_u32 v6, 4096, v4')
    a('global_load_dwordx4 v[72:75], v5, s[18:19]')
    a('global_load_dwordx4 v[76:79], v5, s[12:13]')
    for i in range(14):
        a(f'v_add_u32 v10, {64*i}, v3')
        a('v_mul_u32_u24 v11, 1171, v10')
        a('v_lshrrev_b32 v11, 16, v11')
        a('v_add_lshl_u32 v10, v10, v11, 4')
        a(f'v_add_u32 v10, {lds_base}, v10')
        a(f's_waitcnt vmcnt({15 - i})')
        a(f'ds_write_b128 v10, {vr(16+4*i,4)}')
    a(f'v_add_u32 v10, {lds_base}, v5')
    a('s_waitcnt vmcnt(0)')
    a(f'ds_write_b128 v10, v[72:75] offset:{16*912}')
    a(f'ds_write_b128 v10, v[76:79] offset:{17*912}')
    a('v_lshrrev_b32 v11, 1, v9')
    a('v_lshlrev_b32 v11, 5, v11')
    a('v_and_b32 v12, 1, v9')
    a('v_lshl_add_u32 v11, v12, 3, v11')
    a(f'v_add_u32 v11, {lds_base}, v11')
    a('v_mul_u32_u24 v12, 912, v8')
    a('v_add_u32 v13, v12, v11')
    a('v_lshl_add_u32 v12, v9, 3, v12')
    a(f'v_add_u32 v12, {lds_base}, v12')
    a(f's_add_u32 s25, s25, {WS_XP}')
    a('v_add_u32 v2, s25, v1')
    a(f's_lshr_b32 s26, {unit}, 1')
    a('s_lshl_b32 s26, s26, 15')
    a(f's_and_b32 s27, {unit}, 1')
    a('s_lshl_b32 s27, s27, 12')
    a('s_add_u32 s26, s26, s27')
    a(f's_add_u32 s26, s26, {WS_XK}')
    a('v_add_u32 v4, s26, v1')
    a('s_waitcnt lgkmcnt(0)')
    for blk in range(14):
        a(f'ds_read2_b64 {vr(16+4*blk,4)}, v13 offset0:{8*blk} offset1:{8*blk+2}')
    for w in range(4):
        for k in range(4):
            o = (224*w + 64*k) // 8
            r = 80 + 16*w + 4*k
            if k < 3: a(f'ds_read2_b64 {vr(r,4)}, v12 offset0:{o} offset1:{o+4}')
            else:
                a(f'ds_read_b64 {vr(r,2)}, v12 offset:{8*o}')
                a(f'v_mov_b32 v{r+2}, 0'); a(f'v_mov_b32 v{r+3}, 0')
    a('s_waitcnt lgkmcnt(0)')
    for w in range(4):
        for k in range(4):
            a(f'global_store_dwordx4 v4, {vr(80+16*w+4*k,4)}, s[4:5] offset:{1024*k} sc1')
        if w < 3: a('v_add_u32 v4, 8192, v4')
    a('v_mov_b32 v14, 0')
    a('v_mov_b32 v15, 0')
    a(f'v_add_u32 v10, {16*912}, v11')
    for blk in range(14):
        x = 16 + 4*blk
        a(f'ds_read2_b64 v[144:147], v10 offset0:{8*blk} offset1:{8*blk+2}')
        a(f'ds_read2_b64 v[148:151], v10 offset0:{114+8*blk} offset1:{114+8*blk+2}')
        for i in range(4):
            a(f'v_lshlrev_b32 v{152+2*i}, 16, v{x+i}')
            a(f'v_and_b32 v{153+2*i}, 0xffff0000, v{x+i}')
        a(f'v_swap_b32 v{x+1}, v{x+2}')
        a(f'global_store_dwordx4 v2, {vr(x,4)}, s[4:5] offset:{1024*(blk%4)} sc1')
        if blk % 4 == 3: a('v_add_u32 v2, 4096, v2')
        a('s_waitcnt lgkmcnt(0)')
        for i in range(4):
            a(f'v_lshlrev_b32 v160, 16, v{144+i}')
            a(f'v_and_b32 v161, 0xffff0000, v{144+i}')
            a(f'v_fmac_f32 v14, v{152+2*i}, v160')
            a(f'v_fmac_f32 v14, v{153+2*i}, v161')
            a(f'v_lshlrev_b32 v160, 16, v{148+i}')
            a(f'v_and_b32 v161, 0xffff0000, v{148+i}')
            a(f'v_mul_f32 v160, v{152+2*i}, v160')
            a(f'v_mul_f32 v161, v{153+2*i}, v161')
            a('v_cvt_pk_bf16_f32 v160, v160, v161')
            a('v_and_b32 v161, 0xffff0000, v160')
            a('v_lshlrev_b32 v160, 16, v160')
            a('v_add_f32 v15, v15, v160')
            a('v_add_f32 v15, v15, v161')
    for sw in ('v_permlane16_swap_b32', 'v_permlane32_swap_b32'):
        a('v_mov_b32 v160, v14'); a('v_mov_b32 v161, v15')
        a(f'{sw} v14, v160'); a(f'{sw} v15, v161')
        a('v_add_f32 v14, v14, v160'); a('v_add_f32 v15, v15, v161')
    a('v_cvt_pk_bf16_f32 v98, v14, v15')
    a('v_lshlrev_b32 v99, 16, v98')
    a('v_ashrrev_i32 v100, 31, v99')
    a('v_or_b32 v100, 0x80000000, v100')
    a('v_xor_b32 v99, v99, v100')
    a('v_and_b32 v99, 0xffff0000, v99')
    a(f's_lshl_b32 s26, {unit}, 4')
    a('v_add_u32 v102, s26, v8')
    a('v_sub_u32 v103, 2047, v102')
    a('v_or_b32 v99, v103, v99')
    a('v_and_b32 v100, 0xffff0000, v98')
    a('v_mul_f32 v100, 0xbfb8aa3b, v100')
    a('v_exp_f32 v100, v100')
    a('v_add_f32 v100, 1.0, v100')
    a('v_rcp_f32 v100, v100')
    a('v_cvt_pk_bf16_f32 v100, v100, v100')
    a('v_and_b32 v100, 0xffff0000, v100')
    a('v_sub_f32 v101, 1.0, v100')
    a('v_cvt_pk_bf16_f32 v101, v101, v101')
    a('v_and_b32 v101, 0xffff0000, v101')
    a('v_lshlrev_b32 v103, 3, v102')
    a(f'v_add_u32 v103, {WS_G}, v103')
    a('v_lshlrev_b32 v102, 2, v102')
    a(f'v_add_u32 v102, {WS_KEY}, v102')
    a('s_mov_b64 exec, 0xffff')
    a('global_store_dword v102, v99, s[4:5] sc1')
    a('global_store_dwordx2 v103, v[100:101], s[4:5] sc1')
    a('s_mov_b64 exec, -1')
    a(f's_lshl_b32 s26, {unit}, 2')
    a(f's_add_u32 s26, s26, {WS_FLG + F_XP}')
    set_flag(a, 's26')

def gen_chain_prep(a, name, role='s24'):
    a(f's_load_dwordx2 s[14:15], s[0:1], {KA_MEM0}')
    a('v_and_b32 v3, 63, v0')
    for r in range(4): a(f'v_mov_b32 v{4+r}, -1')
    a(f's_lshl_b32 s25, {role}, 12')
    a(f's_add_u32 s25, s25, {WS_RING}')
    a('v_lshlrev_b32 v1, 4, v0')
    a('v_add_u32 v1, s25, v1')
    for i in range(6):
        if i == 5:
            a(f's_cmp_ge_u32 {role}, 20')
            a(f's_cbranch_scc1 {name}_rf')
        a('global_store_dwordx4 v1, v[4:7], s[4:5] sc1')
        if i < 5: a('v_add_u32 v1, 0x20000, v1')
    a.label(f'{name}_rf')
    a(f's_lshl_b32 s25, {role}, 12')
    a(f's_add_u32 s25, s25, {WS_MEM2 + 7168}')
    a('v_lshlrev_b32 v1, 4, v0')
    a('v_add_u32 v1, s25, v1')
    for i in range(4):
        if i == 3:
            a(f's_cmp_ge_u32 {role}, 15')
            a(f's_cbranch_scc1 {name}_mf')
        a('global_store_dwordx4 v1, v[4:7], s[4:5] sc1')
        if i < 3: a('v_add_u32 v1, 0x20000, v1')
    a.label(f'{name}_mf')
    a('s_waitcnt lgkmcnt(0)')
    a(f's_cmp_lg_u32 {role}, 0')
    a(f's_cbranch_scc1 {name}_nm0')
    a('v_bfe_u32 v8, v0, 1, 3')
    a('v_mul_u32_u24 v8, 896, v8')
    a('v_lshrrev_b32 v9, 4, v0')
    a('v_lshl_add_u32 v8, v9, 5, v8')
    a('v_and_b32 v9, 1, v0')
    a('v_lshl_add_u32 v8, v9, 4, v8')
    a('v_lshlrev_b32 v9, 4, v0')
    a(f'v_add_u32 v9, {WS_MEM2}, v9')
    a('v_add_u32 v10, 4096, v9')
    a('global_load_dwordx4 v[12:15], v8, s[14:15]')
    a('s_waitcnt vmcnt(0)')
    a('global_store_dwordx4 v9, v[12:15], s[4:5] sc1')
    a('s_cmp_eq_u32 s22, 3')
    a(f's_cbranch_scc1 {name}_nm0')
    a('global_load_dwordx4 v[16:19], v8, s[14:15] offset:512')
    a('s_waitcnt vmcnt(0)')
    a('global_store_dwordx4 v10, v[16:19], s[4:5] sc1')
    a('s_nop 1')
    a.label(f'{name}_nm0')
    get_tag(a, name)
    a(f's_lshl_b32 s36, {role}, 2')
    a('s_add_u32 s36, s36, s22')
    a('s_lshl_b32 s36, s36, 2')
    a(f's_add_u32 s36, s36, {WS_FLG + F_XP + 512}')
    set_flag(a, 's36')
    wait_arrivals(a, name)
    a('v_readfirstlane_b32 s21, v8')
```

```python
from asmlib import *
from layout import *
from k1 import stamp, stamp_end, stamp_init
import os
from prep import wait_flags, gen_chain_prep, set_flag, WgWait
ENV = lambda k, d: int(os.environ.get(k, d))

L_MEM, L_T, L_S, L_MISC, L_STASH, L_K1, L_U = 0, 0xC000, 0x6000, 0x9400, 0x9800, 0xA000, 0x10000
L_MS = 0x2000
LDS_BYTES = 0x28000
L_MX, L_W8 = 0x2000, 0x4000
L_UV = 0x18000
MA, ACC, SACC, TB, TBZ, K0, KM0, K2, CV, IDX, KM1 = 8, 36, 64, 76, 84, 88, 96, 100, 108, 112, 116
PA, MB, UB, PACC = 8, 48, 64, 96
LOG2E = 0x3fb8aa3b
A_FST, A_FL, A_TW, A_TR, A_MK, A_SR, A_PST, A_SW = 0, 2, 5, 6, 7, 113, 114, 115
A_XK = 87
A_MST = 114
A_CP = 113
A_UR, A_ML, A_MEMST, A_PERM = 100, 101, 102, 103
FR = (104, 105, 106)
TMP = 119
XKF = os.environ.get('XKF', 'sc1')
TMP2 = 99
NREP = ENV('NREP', 4)
RMASK = (1 << NREP) - 1
A_DM = 0

def cstamp(a, i, step=30):
    if not STAMPS or ENV('NOCST', 0): return
    l = a.newlabel('cst')
    a(f's_cmp_lg_u32 s36, {step}')
    a(f's_cbranch_scc1 {l}')
    a(f's_mem{"real" if ENV("RT",0) else ""}time s[{60+2*i}:{61+2*i}]')
    a('s_waitcnt lgkmcnt(0)')
    a.label(l)

def W(j, t):
    g = 7*j + t
    return ar(8*g, 8) if g < 32 else vr(120 + 8*(g-32), 8)

def max_ops(regs, tmp, first=True):
    r = list(regs); out = []
    while r:
        if first:
            if len(r) >= 3: out.append(f'v_max3_u32 v{tmp}, v{r[0]}, v{r[1]}, v{r[2]}'); r = r[3:]
            else: out.append(f'v_max_u32 v{tmp}, v{r[0]}, v{r[1]}'); r = r[2:]
            first = False
        elif len(r) >= 2: out.append(f'v_max3_u32 v{tmp}, v{tmp}, v{r[0]}, v{r[1]}'); r = r[2:]
        else: out.append(f'v_max_u32 v{tmp}, v{tmp}, v{r[0]}'); r = r[1:]
    return out

class Cnt:
    def __init__(self): self.n = 0; self.last = {}
    def reset(self): self.n = 0; self.last = {}
    def issue(self, tag): self.n += 1; self.last[tag] = self.n
    def need(self, tag): return self.n - self.last[tag]

def sadd64(a, lo, imm):
    a(f's_add_u32 s{lo}, s{lo}, {imm}')
    a(f's_addc_u32 s{lo+1}, s{lo+1}, 0')

def flag_ld(r): return f'global_load_dword v{r}, v{A_FL}, s[46:47] sc1'

def flag_poll(a, name, FR=FR, gap=7):
    L = a.newlabel(name + '_fp'); D = a.newlabel(name + '_fd')
    n = len(FR)
    for r in FR[:n-1]:
        a(flag_ld(r))
        a(f's_nop {gap}')
    a.label(L)
    for j in range(n):
        a(flag_ld(FR[(j+n-1) % n]))
        a(f's_waitcnt vmcnt({n-1})')
        a(f'v_cmp_eq_u32 vcc, -1, v{FR[j]}')
        a(f's_cbranch_vccz {D}')
    a('s_sub_u32 s40, s40, 1')
    a(f's_cbranch_scc0 {L}')
    a('s_mov_b32 s40, 0')
    a.label(D)

def gen_chain(a, name, role='s24', merged=False):
    ws = 's[4:5]'
    NEG = 104
    a('s_mov_b32 s40, 2000000')
    if merged:
        gen_chain_prep(a, name, role)
        if ENV('BISECT', 0) == 1: a(f's_branch {name}_done')
        a('v_and_b32 v0, 63, v0')
        stamp(a, 1)
    a('v_and_b32 v0, 63, v0')
    a('v_lshlrev_b32 v1, 4, v0')
    a(f's_and_b32 s25, {role}, 15')
    a(f's_lshr_b32 s26, {role}, 4')
    a('s_lshl_b32 s29, s22, 1')
    a(f's_cmp_ge_u32 {role}, 30')
    a(f's_cbranch_scc1 {name}_spare')
    a('s_mul_i32 s30, s22, 7')
    a('s_lshr_b32 s30, s30, 2')
    a('s_lshl_b32 s30, s30, 2')
    a('v_min_u32 v5, 11, v0')
    a('s_cmp_eq_u32 s22, 0')
    a('s_cselect_b32 s31, 7, 27')
    a('v_add_u32 v5, s30, v5')
    a('v_min_u32 v5, s31, v5')
    a(f's_mul_i32 s30, {role}, 28')
    a('v_add_u32 v5, s30, v5')
    a('v_bfe_u32 v6, v0, 2, 2')
    a('v_mul_u32_u24 v6, 28, v6')
    a('v_and_b32 v7, 3, v0')
    a('v_add_u32 v6, v6, v7')
    a('s_lshr_b32 s37, s25, 1')
    a('s_lshl_b32 s30, s37, 2')
    a('s_mul_i32 s31, s22, 112')
    a('s_add_u32 s30, s30, s31')
    a('s_add_u32 s30, s30, 448')
    a('v_add_u32 v6, s30, v6')
    a('s_cmp_eq_u32 s26, 1')
    a('s_cselect_b64 vcc, -1, 0')
    a('v_cndmask_b32 v5, v5, v6, vcc')
    if merged:
        wait_flags(a, name, WS_FLG + F_IMG0, 64, lane='v5', va=6, sleep=3)
        stamp(a, 2)
    a('s_cmp_eq_u32 s26, 1')
    a(f's_cbranch_scc1 {name}_vw')
    a('s_mul_i32 s27, s25, 28')
    a('s_mul_i32 s28, s22, 7')
    a('s_add_u32 s27, s27, s28')
    a(f's_mul_i32 s27, s27, {TILE_B}')
    def wloads(w, batch):
        for j in range(7):
            grp = (7*w + j) // 4
            ts = [(grp + i) % 7 for i in (range(3) if batch == 0 else range(3, 7))]
            for t in sorted(ts):
                g = 7*j + t
                off = j*TILE_B + t*2048
                a(f's_add_u32 s30, s27, {off}')
                a('v_add_u32 v2, s30, v1')
                for u in range(2):
                    dst = ar(8*g+4*u, 4) if g < 32 else vr(120 + 8*(g-32) + 4*u, 4)
                    a(f'global_load_dwordx4 {dst}, v2, {ws} offset:{1024*u} sc1')
    for batch in range(2):
        for w in range(4):
            if w < 3:
                a(f's_cmp_lg_u32 s22, {w}')
                a(f's_cbranch_scc1 {name}_wl{batch}{w+1}')
            wloads(w, batch)
            if w < 3:
                a(f's_branch {name}_wld{batch}')
                a.label(f'{name}_wl{batch}{w+1}')
        a.label(f'{name}_wld{batch}')
        if batch == 0 and merged:
            wait_flags(a, name, WS_FLG + F_IMG, 64, lane='v5', va=6, sleep=3)
    a(f's_branch {name}_wdone')
    a.label(f'{name}_vw')
    a('s_mul_i32 s27, s22, 112')
    a('s_lshl_b32 s28, s25, 1')
    a('s_add_u32 s27, s27, s28')
    a(f's_mul_i32 s27, s27, {TILE_B}')
    a(f's_add_u32 s27, s27, {WS_VIMG}')
    a(f's_mul_i32 s33, s22, {TILE_B}')
    a(f's_add_u32 s33, s33, {L_W8}')
    for pi in range(7):
        if pi == 3 and merged:
            wait_flags(a, name, WS_FLG + F_IMG, 64, lane='v5', va=6, sleep=3)
        a(f's_add_u32 s31, s37, {pi}')
        a('s_cmp_ge_u32 s31, 7')
        a('s_cselect_b32 s32, 7, 0')
        a('s_sub_u32 s31, s31, s32')
        a('s_lshl_b32 s31, s31, 11')
        a('s_add_u32 s31, s31, s27')
        for j in range(8):
            a(f's_add_u32 s30, s31, {((j//2)*28 + j%2)*TILE_B}')
            a('v_add_u32 v2, s30, v1')
            if j < 7:
                g = 7*j + pi
                for u in range(2):
                    dst = ar(8*g+4*u, 4) if g < 32 else vr(120 + 8*(g-32) + 4*u, 4)
                    a(f'global_load_dwordx4 {dst}, v2, {ws} offset:{1024*u} sc1')
            else:
                a(f's_add_u32 m0, s33, {2048*pi}')
                for u in range(2): a(f'global_load_lds_dwordx4 v2, {ws} offset:{1024*u} sc1')
    a.label(f'{name}_wdone')
    if merged:
        with WgWait(a): wait_flags(a, name, WS_FLG + F_XP, 256, va=16, sleep=8)
        a('s_waitcnt vmcnt(0)')
    stamp(a, 3)
    if ENV('BISECT', 0) == 3:
        a('s_mov_b32 s88, 1'); a(f's_branch {name}_done')
    def sbase(lo, off):
        a(f's_add_u32 s{lo}, s4, {off}')
        a(f's_addc_u32 s{lo+1}, s5, 0')
    C, G, T1, T2, T3 = 8, 9, 10, 11, 12
    a(f'v_and_b32 v{C}, 15, v0')
    a(f'v_lshrrev_b32 v{G}, 4, v0')
    a(f'v_and_b32 v{T1}, 1, v0')
    a(f'v_cmp_eq_u32 vcc, 1, v{T1}')
    a(f'v_mov_b32 v{IDX}, 0x4444')
    a(f'v_mov_b32 v{T1}, 0xeeee')
    a(f'v_cndmask_b32 v{IDX}, v{IDX}, v{T1}, vcc')
    a('v_add_u32 v3, 4096, v1')
    a('v_add_u32 v4, 8192, v1')
    for r in (5, 6, 7, 100, 101, 102, 103, 105, 113, 114, 115, 116): a(f'v_mov_b32 v{r}, v1')
    a(f's_lshl_b32 s30, {role}, 2')
    a('s_add_u32 s30, s30, s22')
    a('s_mul_i32 s30, s30, 4608')
    a(f's_add_u32 s30, s30, {WS_RING + 4096}')
    a(f'v_add_u32 v{T1}, s30, v1')
    for i in range(5): a(f'global_load_dwordx4 {vr(16+4*i,4)}, v{T1}, {ws} offset:{1024*i-4096 if i < 4 else -512} sc1')
    for lo in (8, 10, 12, 14, 52, 54, 56, 58): sbase(lo, WS_RING + 4*RS)
    sbase(44, WS_MEM2)
    sbase(46, WS_RING)
    sbase(48, WS_RING + 3*RS)
    sbase(50, WS_RING + RS)
    a(f's_mov_b32 s38, {2*RS}')
    a('s_mov_b32 s36, 0')
    a(f's_and_b32 s31, {role}, {NREP-1}')
    a('s_lshl_b32 s31, s31, 8')
    a(f's_add_u32 s31, s31, {R_FM}')
    a(f'v_min_u32 v{A_FL}, 27, v0')
    a(f'v_lshlrev_b32 v{A_FL}, 2, v{A_FL}')
    a(f'v_add_u32 v{A_FL}, s31, v{A_FL}')
    a('s_cmp_eq_u32 s26, 1')
    a(f's_cbranch_scc1 {name}_vsetup')
    a('s_lshl_b32 s30, s22, 12')
    a(f's_add_u32 s30, s30, {L_T}')
    a(f'v_lshlrev_b32 v{A_TW}, 5, v{C}')
    a(f'v_lshrrev_b32 v{T1}, 2, v{C}')
    a(f'v_lshrrev_b32 v{T2}, 1, v{G}')
    a(f'v_xor_b32 v{T1}, v{T1}, v{T2}')
    a(f'v_lshl_add_u32 v{A_TW}, v{T1}, 3, v{A_TW}')
    a(f'v_and_b32 v{T2}, 1, v{G}')
    a(f'v_lshl_add_u32 v{A_TW}, v{T2}, 2, v{A_TW}')
    a(f'v_add_u32 v{A_TW}, s30, v{A_TW}')
    a(f'v_add_u32 v{T1}, s30, v1')
    for r in range(4): a(f'v_mov_b32 v{16+r}, 0')
    a('s_waitcnt vmcnt(0)')
    for r in range(4): a(f'v_mov_b32 v{16+r}, 0')
    for i in range(4): a(f'ds_write_b128 v{T1}, v[16:19] offset:{1024*i}')
    a(f'v_and_b32 v{T1}, 3, v0')
    a(f'v_xor_b32 v{T1}, v{T1}, v{G}')
    a(f'v_lshrrev_b32 v{A_TR}, 2, v0')
    a(f'v_lshlrev_b32 v{A_TR}, 5, v{A_TR}')
    a(f'v_lshl_add_u32 v{A_TR}, v{T1}, 3, v{A_TR}')
    a(f'v_add_u32 v{A_TR}, s30, v{A_TR}')
    a(f'v_lshrrev_b32 v{T1}, 1, v{G}')
    a(f'v_and_b32 v{T2}, 1, v{G}')
    a(f'v_lshlrev_b32 v{A_MK}, 4, v{T1}')
    a(f'v_lshl_add_u32 v{A_MK}, v{T2}, 3, v{A_MK}')
    a(f'v_and_b32 v{T3}, 7, v0')
    a(f'v_lshl_add_u32 v{A_MK}, v{T3}, 5, v{A_MK}')
    a('s_mul_i32 s30, s22, 14')
    a('s_and_b32 s30, s30, 7')
    a('s_lshl_b32 s30, s30, 7')
    a('s_mul_i32 s31, s22, 3072')
    a('s_add_u32 s30, s30, s31')
    a(f'v_add_u32 v{A_MK}, s30, v{A_MK}')
    a(f'v_mul_u32_u24 v{A_SW}, 208, v{C}')
    a(f'v_lshl_add_u32 v{A_SW}, v{G}, 4, v{A_SW}')
    a('s_mul_i32 s30, s22, 3328')
    a(f's_add_u32 s30, s30, {L_S}')
    a(f'v_add_u32 v{A_SW}, s30, v{A_SW}')
    a(f'v_lshrrev_b32 v{T1}, 5, v0')
    a(f'v_add_u32 v{T1}, s29, v{T1}')
    a(f'v_and_b32 v{T2}, 31, v0')
    a(f'v_mul_u32_u24 v{A_SR}, 208, v{T1}')
    a(f'v_lshl_add_u32 v{A_SR}, v{T2}, 3, v{A_SR}')
    a(f'v_add_u32 v{A_SR}, {L_S}, v{A_SR}')
    a(f'v_lshrrev_b32 v{A_PST}, 2, v{T2}')
    a(f'v_lshlrev_b32 v{A_PST}, 8, v{A_PST}')
    a(f'v_and_b32 v{T3}, 3, v{T2}')
    a(f'v_lshl_add_u32 v{A_PST}, v{T3}, 2, v{A_PST}')
    a('s_lshr_b32 s30, s25, 1')
    a('s_lshl_b32 s30, s30, 10')
    a('s_and_b32 s31, s25, 1')
    a('s_lshl_b32 s32, s31, 4')
    a('s_add_u32 s30, s30, s32')
    a(f'v_add_u32 v{A_PST}, s30, v{A_PST}')
    a(f'v_and_b32 v{C}, 1, v{T2}')
    a(f'v_lshlrev_b32 v{C}, 4, v{C}')
    a(f'v_bfe_u32 v{G}, v{T2}, 1, 1')
    a(f'v_lshl_add_u32 v{C}, v{G}, 3, v{C}')
    a('s_lshr_b32 s30, s25, 3')
    a('s_lshl_b32 s30, s30, 10')
    a('s_bfe_u32 s32, s25, 0x20001')
    a('s_lshl_b32 s32, s32, 8')
    a('s_add_u32 s30, s30, s32')
    a('s_lshl_b32 s32, s31, 2')
    a('s_add_u32 s30, s30, s32')
    a('s_add_u32 s30, s30, 8192')
    a(f'v_add_u32 v{C}, s30, v{C}')
    a(f'v_cmp_lt_u32 vcc, 15, v{T2}')
    a(f'v_cndmask_b32 v{A_PST}, v{A_PST}, v{C}, vcc')
    a(f'v_lshl_add_u32 v{A_PST}, v{T1}, 5, v{A_PST}')
    a(f'v_cmp_gt_u32 vcc, 20, v{T2}')
    a('s_mov_b64 s[42:43], vcc')
    a('s_lshl_b32 s31, s25, 2')
    a(f's_add_u32 s31, s31, {R_FP}')
    a(f'v_lshlrev_b32 v{A_FST}, 8, v0')
    a(f'v_add_u32 v{A_FST}, s31, v{A_FST}')
    a('s_lshl_b32 s30, s22, 13')
    a(f's_add_u32 s30, s30, {WS_XK}')
    sbase(54, 's30')
    a('s_lshl_b32 s30, s25, 2')
    a('s_add_u32 s30, s30, s22')
    a(f's_mul_i32 s30, s30, {7168}')
    a(f's_add_u32 s30, s30, {WS_U + 2*28*16384}')
    sbase(8, 's30')
    a(f's_branch {name}_go')
    a.label(f'{name}_vsetup')
    a('s_and_b32 s33, s22, 1')
    a('s_lshl_b32 s30, s25, 1')
    a('s_add_u32 s33, s33, s30')
    a('s_and_b32 s30, s22, 1')
    a('s_lshl_b32 s31, s30, 14')
    a(f's_add_u32 s31, s31, {L_UV}')
    a(f'v_add_u32 v{A_UR}, s31, v1')
    a('s_lshl_b32 s31, s30, 12')
    a(f's_add_u32 s31, s31, {L_MX}')
    a(f'v_add_u32 v{A_ML}, s31, v1')
    a(f'v_lshrrev_b32 v{A_MEMST}, 3, v{C}')
    a(f'v_lshlrev_b32 v{A_MEMST}, 4, v{A_MEMST}')
    a(f'v_lshl_add_u32 v{A_MEMST}, v{G}, 6, v{A_MEMST}')
    a(f'v_and_b32 v{T3}, 1, v{C}')
    a(f'v_lshl_add_u32 v{A_MEMST}, v{T3}, 5, v{A_MEMST}')
    a(f'v_bfe_u32 v{A_PERM}, v{C}, 1, 2')
    a(f'v_lshl_add_u32 v{A_MEMST}, v{A_PERM}, 2, v{A_MEMST}')
    a('s_lshl_b32 s30, s33, 8')
    a(f's_add_u32 s30, s30, {R_MEM}')
    a(f'v_add_u32 v{A_MEMST}, s30, v{A_MEMST}')
    a(f'v_cmp_eq_u32 vcc, 1, v{T3}')
    a(f'v_mov_b32 v{A_PERM}, 0x01000504')
    a(f'v_mov_b32 v{T3}, 0x07060302')
    a(f'v_cndmask_b32 v{A_PERM}, v{A_PERM}, v{T3}, vcc')
    a(f'v_lshrrev_b32 v{T1}, 1, v{G}')
    a(f'v_lshlrev_b32 v{A_MST}, 8, v{T1}')
    a(f'v_lshl_add_u32 v{A_MST}, v{C}, 4, v{A_MST}')
    a(f'v_and_b32 v{T1}, 1, v{G}')
    a(f'v_lshl_add_u32 v{A_MST}, v{T1}, 2, v{A_MST}')
    a('s_lshl_b32 s30, s22, 10')
    a(f's_add_u32 s30, s30, {L_MX}')
    a(f'v_add_u32 v{A_MST}, s30, v{A_MST}')
    a(f's_mul_i32 s30, s22, {TILE_B}')
    a(f's_add_u32 s30, s30, {L_W8}')
    a(f'v_add_u32 v{A_CP}, s30, v1')
    for k in range(3):
        a(f's_add_u32 s30, s29, {k}')
        a('s_add_u32 s30, s30, s37')
        for _ in range(2):
            a('s_cmp_ge_u32 s30, 7')
            a('s_cselect_b32 s31, 7, 0')
            a('s_sub_u32 s30, s30, s31')
        a('s_lshl_b32 s30, s30, 10')
        a(f'v_add_u32 v{5+k}, s30, v1')
    a(f'v_mov_b32 v{NEG}, -1')
    a('v_mov_b32 v115, s20')
    a('v_min_u32 v105, 7, v0')
    a('v_lshlrev_b32 v105, 2, v105')
    a('s_cmp_ge_u32 s22, 2')
    a(f's_cbranch_scc1 {name}_npv')
    a(f's_and_b32 s30, s33, {NREP-1}')
    a('s_lshl_b32 s30, s30, 8')
    a(f's_add_u32 s30, s30, {R_FP}')
    a(f'v_min_u32 v{A_FL}, 16, v0')
    a(f'v_lshlrev_b32 v{A_FL}, 2, v{A_FL}')
    a(f'v_add_u32 v{A_FL}, s30, v{A_FL}')
    a.label(f'{name}_npv')
    a('v_mov_b32 v20, v0')
    a('s_lshl_b32 s30, s33, 2')
    a(f's_add_u32 s30, s30, {R_FM}')
    a(f'v_lshlrev_b32 v{A_FST}, 8, v0')
    a(f'v_add_u32 v{A_FST}, s30, v{A_FST}')
    sbase(10, WS_RING + 4*RS)
    a('s_lshl_b32 s31, s25, 5')
    a(f's_add_u32 s31, s31, {WS_FLG + F_U}')
    sbase(12, 's31')
    a('s_mov_b32 s39, s31')
    a('s_lshl_b32 s30, s25, 15')
    a('s_lshl_b32 s31, s22, 13')
    a('s_add_u32 s30, s30, s31')
    a(f's_add_u32 s30, s30, {WS_U}')
    sbase(56, 's30')
    a(f's_add_u32 s35, s31, {L_UV}')
    def dma_u(i):
        return [f's_add_u32 m0, s35, {4096*(i//4)}', f'global_load_lds_dwordx4 {"v1" if i < 4 else "v3"}, s[56:57] offset:{1024*(i%4)} sc1']
    if merged:
        a('s_waitcnt vmcnt(0)')
        a('v_lshrrev_b32 v20, 4, v1')
        with WgWait(a):
            wait_flags(a, name, 's39', 8, lane='v20', va=16, sleep=4)
            a('s_add_u32 s39, s39, 448')
            wait_flags(a, name, 's39', 8, lane='v20', va=16, sleep=4)
    for i in range(8):
        for o in dma_u(i): a(o)
    sadd64(a, 56, 28*16384); sadd64(a, 12, 896)
    a('s_xor_b32 s35, s35, 0x38000')
    a.label(f'{name}_go')
    for r in range(32): a(f'v_mov_b32 v{ACC+r}, 0')
    a('s_waitcnt vmcnt(0) lgkmcnt(0)')
    if STAMPS:
        a('s_mov_b32 s74, s24'); a('s_memrealtime s[88:89]'); a('s_waitcnt lgkmcnt(0)')
    a('s_lshl_b32 s30, s26, 2')
    a('s_add_u32 s30, s30, s22')
    if merged:
        a('s_cmp_lt_u32 s21, 32')
        a('s_cselect_b32 s31, 8, 0')
        a('s_add_u32 s30, s30, s31')
    for k in range(16 if merged else 8):
        a(f's_cmp_eq_u32 s30, {k}')
        a(f's_cbranch_scc1 {name}_{"fs"[k//8]}{"sv"[(k//4)%2]}{k%4}_entry')

    def gaddr(off):
        if off < 4096: return 'v1', off
        if off < 8192: return 'v3', off - 4096
        return 'v4', off - 8192

    def gen_wave(kind, w, st):
        tag = f'{name}_{"s" if st else "f"}{kind}{w}'
        own = [2*w, 2*w+1, 2*w+2] if w < 3 else [6, 0, 1]
        wr = own[:2] if w < 3 else own[:1]
        others = [t for t in range(7) if t not in own]
        pvw = kind == 'v' and w < 2
        poller = (w == 1) if kind == 's' else (w == 2)
        SLOW = []
        L = Cnt(); V = Cnt()
        def emit(op):
            if isinstance(op, str): a(op); return
            text, k, tg = op
            if k == 'wl': a(f's_waitcnt lgkmcnt({L.need(text)})'); return
            if k == 'wv': a(f's_waitcnt vmcnt({V.need(text)})'); return
            a(text)
            (L if k == 'l' else V).issue(tg)
        def smf(j, t):
            a(f'v_smfmac_f32_16x16x64_bf16 {vr(ACC+4*j,4)}, {vr(MA+4*t,4)}, {W(j,t)}, v{IDX}')
        def rest_adv():
            a(f's_add_u32 s30, s38, {WS_RING}')
            a('s_add_u32 s50, s4, s30')
            a('s_addc_u32 s51, s5, 0')
            a(f's_add_u32 s38, s38, {RS}')
            a(f's_cmp_eq_u32 s38, {4*RS}')
            a('s_cselect_b32 s38, 0, s38')
            if kind == 'v':
                if w == 3 and merged: sadd64(a, 12, 448)
                if w < 2: a(f'v_xor_b32 v{A_UR}, 0x38000, v{A_UR}')
            else:
                sadd64(a, 8, 28*16384)
            for r in range(28 if kind == 's' else 32): a(f'v_mov_b32 v{ACC+r}, 0')
        def mem_loads(em=True):
            for n, t in enumerate(own):
                tx = f'global_load_dwordx4 {vr(MA+4*t,4)}, v{5+n}, s[44:45] sc1'
                if em: emit((tx, 'v', f'm{t}'))
                else: a(tx)
                if n < 2 and em and ENV('MSP', 1): a(f's_nop {ENV("MSPN", 3)}')
        def kreg(k, kt):
            if k == 1: return MA + 4*own[kt]
            if k == 3: return [TBZ+2, CV+2][kt]
            return {0: K0, 2: K2}[k] + 4*kt
        def xk1(k, kt):
            va = "v1" if kt == 0 else "v3"
            if k == 1: return [f's_mov_b32 m0, {L_K1 + 2048*w + 1024*kt - 1024}', f'global_load_lds_dwordx4 {va}, s[54:55] offset:1024 {XKF}']
            n = 2 if k == 3 else 4
            return [f'global_load_dwordx{n} {vr(kreg(k,kt),n)}, {va}, s[54:55] offset:{1024*k} {XKF}']
        def xk_all(ks=(0, 1, 2, 3), adv=True):
            for k in ks:
                for kt in range(2):
                    for o in xk1(k, kt): a(o)
            if adv: sadd64(a, 54, 32768)
        XE = ENV('XEARLY', 0)
        cps = {2: [0, 1, 2, 3], 3: [4, 5, 6]}.get(w, []) if kind == 'v' else []
        CPB, CP2 = 64, 80
        def stage_reads():
            for n, i in enumerate(cps):
                a(f'ds_read_b128 {vr(CPB+4*n,4)}, v1 offset:{L_MS + 1024*i}')
                a(f'ds_read_b128 {vr(CP2+4*n,4)}, v1 offset:{L_MEM + 1024*i}')
            a('s_waitcnt lgkmcnt(0)')
        def mem2_copy():
            l2 = a.newlabel('nm2')
            a('s_cmp_lg_u32 s25, 15')
            a(f's_cbranch_scc1 {l2}')
            for n, t in enumerate(cps):
                va, im = gaddr(1024*t)
                a(f'global_store_dwordx4 {va}, {vr(MA+4*t,4)}, s[58:59] offset:{im} sc1')
            a.label(l2)
        a.label(f'{tag}_loop')
        if poller and ENV('XST', 0):
            a('s_waitcnt vmcnt(0)'); cstamp(a, 1, 31)
        if poller: flag_poll(a, tag, FR=(96, 97, 98, 99, 117, 118)[:ENV('NMP', 5)], gap=ENV('MGAP', 11))
        a('s_barrier')
        if not pvw: cstamp(a, 5, 31)
        a.label(f'{tag}_mem')
        DIRECT = kind == 's' and ENV('DIRECT', 1)
        if DIRECT:
            others.sort(key=lambda t: (t - own[0]) % 7)
            def mld(t):
                va, im = gaddr(1024*t)
                return (f'global_load_dwordx4 {vr(MA+4*t,4)}, {va}, s[44:45] offset:{im} sc1', 'v', f'm{t}')
            seq = own + others
            NPRE = ENV('NPRE', 4)
            for n in range(NPRE):
                emit(mld(seq[n]))
                if n < NPRE - 1: a(f's_nop {ENV("DSP", 11)}')
            need = sorted(set(range((14*w)//8, (14*w+13)//8 + 1)))
            def pw(t): return (f'ds_write_b128 v1, {vr(MA+4*t,4)} offset:{L_MEM + 3072*w + 1024*(t - need[0])}', 'l', f'pw{t}')
            fl = {}
            for n in range(NPRE, 7): fl.setdefault((0, 2*(n-NPRE)+1), []).append(mld(seq[n]))
            for p in range(3):
                if own[p] in need: fl.setdefault((p, 0), []).append(pw(own[p]))
            for p in range(3):
                emit((f'm{own[p]}', 'wv', None))
                if p == 0:
                    cstamp(a, 0); cstamp(a, 6, 31)
                if p == 2: break
                for j in range(7):
                    smf(j, own[p])
                    for o in fl.get((p, j), []): emit(o)
            cstamp(a, 1)
            late_w = [t for t in need if t not in own[:2]]
        else:
            mem_loads()
            if kind == 'v':
                a('s_barrier')
                if pvw:
                    lk = a.newlabel('w0s')
                    a('s_cmp_eq_u32 s36, 0')
                    a(f's_cbranch_scc1 {lk}')
                    rest_adv()
                    a.label(lk)
                NU0 = ENV('NU0', 4)
                uq = [] if ENV('NOU', 0) else [dma_u(i) for i in range(8)]
                for _ in range(NU0):
                    if uq:
                        m_, d_ = uq.pop(0); a(m_); emit((d_, 'v', 'u'))
            a.label(f'{tag}_got')
            chk = max_ops([MA+4*t+r for t in own[:2] for r in range(4)], TMP)
            fill0 = {0: [(f'm{own[1]}', 'wv', None)] + ([(f'ds_write_b128 v1, {vr(MA+4*wr[1],4)} offset:{L_MEM + 1024*wr[1]}', 'l', 'w1')] if len(wr) > 1 else []),
                     1: [chk[0]], 2: [chk[1]], 3: [chk[2]], 4: [chk[3]], 5: [f'v_cmp_eq_u32 vcc, -1, v{TMP}'], 6: [f's_cbranch_vccnz {tag}_redo']}
            emit((f'm{own[0]}', 'wv', None))
            cstamp(a, 0)
            if not pvw: cstamp(a, 6, 31)
            emit((f'ds_write_b128 v1, {vr(MA+4*wr[0],4)} offset:{L_MEM + 1024*wr[0]}', 'l', 'w0'))
            for j in range(7):
                smf(j, own[0])
                for o in fill0[j]: emit(o)
            a.label(f'{tag}_cont')
            smf(0, own[1])
            pre = []
            if kind == 'v':
                pre += uq
                if pvw:
                    pre.append([f'global_store_dword v{A_MEMST}, v{NEG}, s[10:11] {st}', f's_mov_b64 exec, {RMASK}', f'global_store_dword v{A_FST}, v{NEG}, s[10:11] {st}', 's_mov_b64 exec, -1'])
            c2 = MA + 4*own[2]
            for j in range(1, 7):
                smf(j, own[1])
                if pre:
                    ops = pre.pop(0)
                    for o in ops:
                        a(o)
                        if o.startswith('global_'): V.issue('x')
                if j == 4:
                    emit((f'm{own[2]}', 'wv', None))
                    a(f'v_max3_u32 v{TMP}, v{c2}, v{c2+1}, v{c2+2}')
                if j == 5: a(f'v_max_u32 v{TMP}, v{TMP}, v{c2+3}')
                if j == 6: a(f'v_cmp_eq_u32 vcc, -1, v{TMP}')
            a('s_waitcnt lgkmcnt(0)'); L.reset()
            a('s_barrier')
            a(f's_cbranch_vccnz {tag}_fix2')
            a.label(f'{tag}_fix2r')
            if not pvw: cstamp(a, 1)
            for t in others: emit((f'ds_read_b128 {vr(MA+4*t,4)}, v1 offset:{L_MEM + 1024*t}', 'l', f'r{t}'))
        F = {}
        def add(sl, ops): F[sl] = F.get(sl, []) + list(ops)
        if kind == 's':
            def cvt_write(j):
                return [f'v_add_f32 v{CV}, v{ACC+4*j}, v{ACC+4*j+1}',
                        f'v_add_f32 v{CV+1}, v{ACC+4*j+2}, v{ACC+4*j+3}',
                        f'v_cvt_pk_bf16_f32 v{CV}, v{CV}, v{CV+1}',
                        (f'ds_write_b32 v{A_TW}, v{CV} offset:{512*j}', 'l', f'cw{j}')]
            def tbr(k): return TB + 4*(k % 2) if k < 3 else TBZ
            def s_reads(k):
                o = [(f'ds_read_b64_tr_b16 {vr(tbr(k),2)}, v{A_TR} offset:{1024*k}', 'l', f'sr{k}')]
                if k < 3: o.append((f'ds_read_b64_tr_b16 {vr(tbr(k)+2,2)}, v{A_TR} offset:{1024*k+512}', 'l', f'sr{k}'))
                return o
            def kmr(k): return KM0 if k % 2 == 0 else KM1
            def km_read(k):
                if k == 3: return (f'ds_read_b64 {vr(kmr(k),2)}, v{A_MK} offset:{512*k}', 'l', f'km{k}')
                return (f'ds_read2_b64 {vr(kmr(k),4)}, v{A_MK} offset0:{64*k} offset1:{64*k+32}', 'l', f'km{k}')
            def s_mfma(k, fill=()):
                fill = list(fill)
                deps = [f'sr{k}', f'km{k}'] + (['k1'] if k == 1 else [])
                a(f's_waitcnt lgkmcnt({min(L.need(d) for d in deps)})')
                for kt in range(3):
                    acc = vr(SACC+4*kt, 4)
                    src = kreg(k, kt) if kt < 2 else kmr(k)
                    if k == 3: a(f'v_mfma_f32_16x16x16_bf16 {acc}, {vr(src,2)}, {vr(tbr(k),2)}, {acc}')
                    else: a(f'v_mfma_f32_16x16x32_bf16 {acc}, {vr(src,4)}, {vr(tbr(k),4)}, {acc if k else 0}')
                    if fill:
                        for o in fill.pop(0): emit(o)
            assert DIRECT
            f2 = [[(f'ds_read_b128 {vr(kreg(1,0),4)}, v1 offset:{L_K1 + 2048*w}', 'l', 'k1')],
                  [(f'ds_read_b128 {vr(kreg(1,1),4)}, v1 offset:{L_K1 + 2048*w + 1024}', 'l', 'k1')]]
            if own[2] in late_w: f2.insert(0, [pw(own[2])])
            if not ENV('NOTOUCH', 1):
                nl = ENV('NTL', 56)
                add((0, 3), [f'v_lshlrev_b32 v{CV}, 3, v1', (f's_mov_b64 exec, {(1 << nl) - 1}' if nl < 32 else f's_mov_b32 exec_hi, {(1 << (nl - 32)) - 1}'),
                          f'global_load_dword v{2 if w != 1 else 0}, v{CV}, s[8:9] sc1', 's_mov_b64 exec, -1'])
            for j in range(7):
                smf(j, own[2])
                if f2:
                    for o in f2.pop(0): emit(o)
            for n, t in enumerate(others):
                if t in late_w: add((0, n), [pw(t)])
            add((1, 0), [km_read(0), km_read(1)])
            if XE == 3:
                add((2, 0), [('k1', 'wl', None)] + xk1(1, 0)); add((4, 0), xk1(1, 1))
            for j in range(1, 7):
                cw = cvt_write(j-1)
                add((j, 1), [cw[0]]); add((j, 2), [cw[1]]); add((j, 3), [cw[2]]); add((j+1, 0), [cw[3]])
            add((3,0), s_reads(0)[:1]); add((3,1), s_reads(0)[1:]); add((5,0), s_reads(1)[:1]); add((5,1), s_reads(1)[1:])
            for j in range(7):
                for n, t in enumerate(others):
                    if j == 0: emit((f'm{t}', 'wv', None))
                    smf(j, t)
                    for o in F.get((j, n), []): emit(o)
                if j == 4: s_mfma(0, [[], xk1(0, 0) if XE == 3 else [], [km_read(2)] + (xk1(0, 1) if XE == 3 else [])])
            cstamp(a, 2)
            cw6 = cvt_write(6)
            for o in F[(7, 0)]: emit(o)
            s_mfma(1, [s_reads(2), [cw6[0], cw6[1]], [cw6[2], cw6[3]] + s_reads(3) + [km_read(3)]])
            s_mfma(2)
            s_mfma(3)
            for kt in range(3):
                a(f'ds_write_b128 v{A_SW}, {vr(SACC+4*kt,4)} offset:{64*kt}')
                if kt == 0: a(f'v_cmp_u_f32 vcc, v{SACC}, v{SACC}')
            a(f's_cbranch_vccnz {tag}_redo')
            a.label(f'{tag}_cont')
            a('s_waitcnt lgkmcnt(0)'); L.reset()
            a('s_barrier')
            cstamp(a, 3)
            SR = 8
            for i in range(4):
                emit((f'ds_read_b64 {vr(SR+2*i,2)}, v{A_SR} offset:{3328*i}', 'l', f's{i}'))
            a('s_mov_b32 s30, 0x42800000')
            if XE in (1, 2): xk_all((0, 1), False)
            def pflag():
                if w == 0:
                    a(f's_mov_b64 exec, {RMASK}')
                    a(f'global_store_dword v{A_FST}, v{IDX}, s[46:47] {st}')
                    a('s_mov_b64 exec, -1')
            PF = ENV('PFLAG', 25)
            if PF == -1: pflag()
            def pk(d, x, y): a(f'v_pk_add_f32 {vr(SR+d,2)}, {vr(SR+x,2)}, {vr(SR+y,2)}')
            emit(('s1', 'wl', None)); pk(0, 0, 2)
            emit(('s3', 'wl', None)); pk(4, 4, 6); pk(0, 0, 4)
            if PF == -2: pflag()
            m, t = SR+4, SR+5
            a(f'v_max_f32 v{m}, |v{SR}|, |v{SR+1}|')
            a(f'v_exp_f32 v{SR+2}, v{SR}')
            a(f'v_cmp_nge_f32 vcc, s30, v{m}')
            a(f'v_exp_f32 v{SR+3}, v{SR+1}')
            a('s_and_b64 vcc, vcc, s[42:43]')
            a(f's_cbranch_vccnz {tag}_smax')
            a.label(f'{tag}_smax_ret')
            a(f'v_add_f32 v{m}, v{SR+2}, v{SR+3}')
            a(f'v_cndmask_b32 v{m}, 0, v{m}, s[42:43]')
            xq = [xk1(k, kt) for k in (2, 3) for kt in range(2)] if XE == 2 else []
            if PF == 0: pflag()
            def slow_max():
                a.label(f'{tag}_smax')
                a(f'v_mov_b32 v{SR+16}, 0xff800000')
                a(f'v_max_f32 v{m}, v{SR}, v{SR+1}')
                a(f'v_cndmask_b32 v{m}, v{SR+16}, v{m}, s[42:43]')
                for ror in (8, 4, 2, 1):
                    a(f'v_max_f32_dpp v{m}, v{m}, v{m} row_ror:{ror} row_mask:0xf bank_mask:0xf')
                a(f'v_mov_b32 v{t}, v{m}')
                a(f'v_permlane16_swap_b32 v{m}, v{t}')
                a(f'v_max_f32 v{m}, v{m}, v{t}')
                a(f'v_sub_f32 v{SR+2}, v{SR}, v{m}')
                a(f'v_sub_f32 v{SR+3}, v{SR+1}, v{m}')
                a(f'v_exp_f32 v{SR+2}, v{SR+2}')
                a(f'v_exp_f32 v{SR+3}, v{SR+3}')
                a(f's_branch {tag}_smax_ret')
            SLOW.append(slow_max)
            for ror in (8, 4, 2, 1):
                if xq:
                    for o in xq.pop(0): a(o)
                a(f'v_add_f32_dpp v{m}, v{m}, v{m} row_ror:{ror} row_mask:0xf bank_mask:0xf')
                if PF == 1 and ror == 4: pflag()
            a(f'v_mov_b32 v{t}, v{m}')
            if PF == 2: pflag()
            a(f'v_permlane16_swap_b32 v{m}, v{t}')
            a(f'v_add_f32 v{m}, v{m}, v{t}')
            a(f'v_rcp_f32 v{m}, v{m}')
            a(f'v_mul_f32 v{SR}, v{SR+2}, v{m}')
            a(f'v_mul_f32 v{SR+1}, v{SR+3}, v{m}')
            if PF == 25: pflag()
            a(f'v_cvt_pk_bf16_f32 v{SR}, v{SR}, v{SR+1}')
            a('s_mov_b64 exec, s[42:43]')
            a(f'global_store_dword v{A_PST}, v{SR}, s[46:47] {st}')
            a('s_mov_b64 exec, -1')
            if PF == 3: pflag()
            cstamp(a, 4)
            xk_all({0: (0, 1, 2, 3), 1: (2, 3), 2: (), 3: (2, 3)}[XE])
            a(f'v_mov_b32 v{CV}, -1')
            a(f'global_store_dword v{A_PST}, v{CV}, s[48:49] {st}')
            if w == 0:
                a(f's_mov_b64 exec, {RMASK}')
                a(f'global_store_dword v{A_FST}, v{CV}, s[48:49] {st}')
                a('s_mov_b64 exec, -1')
        else:
            early = list(pre)
            if merged and w == 3: early.append(['global_load_dword v116, v105, s[12:13] sc1'])
            def w8rd(pi): return [(f'ds_read_b128 {vr(68+8*(pi%2)+4*u,4)}, v{A_CP} offset:{2048*pi+1024*u}', 'l', f'w8{pi}') for u in range(2)]
            def smf8(pi):
                emit((f'w8{pi}', 'wl', None))
                a(f'v_smfmac_f32_16x16x64_bf16 {vr(ACC+28,4)}, {vr(MA+4*pi,4)}, {vr(68+8*(pi%2),8)}, v{IDX}')
            seq8 = own + others
            for o in w8rd(seq8[0] if False else 0): pass
            q8 = [t for t in seq8]
            def rd8(k):
                t = q8[k]
                return [(f'ds_read_b128 {vr(68+8*(k%2)+4*u,4)}, v{A_CP} offset:{2048*t+1024*u}', 'l', f'w8{k}') for u in range(2)]
            def sm8(k):
                emit((f'w8{k}', 'wl', None))
                a(f'v_smfmac_f32_16x16x64_bf16 {vr(ACC+28,4)}, {vr(MA+4*q8[k],4)}, {vr(68+8*(k%2),8)}, v{IDX}')
                if k + 2 < 7:
                    for o in rd8(k+2): emit(o)
            for o in rd8(0) + rd8(1): emit(o)
            for j in range(7):
                smf(j, own[2])
                if early:
                    for o in early.pop(0): a(o)
            assert not early
            sadd64(a, 56, 28*16384)
            a('s_xor_b32 s35, s35, 0x38000')
            pend = []
            MC = 96
            def m_out(j):
                X = ACC + 4*j; c = MC + (j % 4)
                hh, p = j // 2, j % 2
                return [f'v_add_f32 v{X}, v{X}, v{X+1}', f'v_add_f32 v{X+2}, v{X+2}, v{X+3}', f'v_cvt_pk_bf16_f32 v{c}, v{X}, v{X+2}',
                        (f'ds_write_b32 v{A_MST}, v{c} offset:{4096*p + 512*(hh//2) + 8*(hh%2)}', 'l', 'mx')]
            for j in range(7):
                for n, t in enumerate(others):
                    if j == 0: emit((f'r{t}', 'wl', None))
                    smf(j, t)
                    if n == 1 and j >= 1: pend += m_out(j-1)
                    if pend: emit(pend.pop(0))
                sm8(j)
                if pend: emit(pend.pop(0))
            for o in pend + m_out(6) + m_out(7): emit(o)
            cstamp(a, 2)
            a('s_waitcnt lgkmcnt(0)')
            a('s_barrier')
            if merged and w == 3:
                a('s_waitcnt vmcnt(0)')
                a('v_cmp_ne_u32 vcc, v115, v116')
                a(f's_cbranch_vccnz {tag}_uwait')
                a.label(f'{tag}_uok')
        if pvw:
            skip = f'{tag}_nopv'
            def ubreads():
                for t in range(4):
                    for u in range(2):
                        a(f'ds_read_b128 {vr(UB+8*t+4*u,4)}, v{A_UR} offset:{2048*t+1024*u}')
            ubreads()
            PFR = (108, 109, 110, 111, 116, 117, 118)[:ENV('NPP', 6)]
            for i in range(4): a(f'ds_read_b128 {vr(MB+4*i,4)}, v{A_ML} offset:{1024*i}')
            flag_poll(a, tag, FR=PFR, gap=ENV('PGAP', 12))
            cstamp(a, 1)
            if ENV('PDLY', 0): a(f's_nop {ENV("PDLY", 0)}')
            a.label(f'{tag}_pld')
            for t in range(10):
                va, im = gaddr(1024*t)
                a(f'global_load_dwordx4 {vr(PA+4*t,4)}, {va}, s[46:47] offset:{im} sc1')
            for r in range(4): a(f'v_mov_b32 v{PACC+r}, 0')
            acc = vr(PACC, 4)
            a('s_mov_b64 s[10:11], s[46:47]')
            a('s_waitcnt lgkmcnt(0)')
            MF = ENV('MFLAG', 4)
            for t in range(10):
                a(f's_waitcnt vmcnt({(9 - t) + (1 if t > MF else 0)})' + (f' lgkmcnt({2*(7-t)})' if 4 <= t < 8 else ''))
                if t == 0: cstamp(a, 5)
                b = vr(MB+8*(t-8), 8) if t >= 8 else vr(UB+8*(t % 4), 8)
                a(f'v_smfmac_f32_16x16x64_bf16 {acc}, {vr(PA+4*t,4)}, {b}, v{IDX}')
                if t == MF:
                    a(f's_mov_b64 exec, {RMASK}')
                    a(f'global_store_dword v{A_FST}, v{IDX}, s[50:51] {st}')
                    a('s_mov_b64 exec, -1')
                if t < 4:
                    for u in range(2):
                        a(f'ds_read_b128 {vr(UB+8*t+4*u,4)}, v{A_UR} offset:{2048*(t+4)+1024*u}')
            a(f'v_add_f32 v{PACC}, v{PACC}, v{PACC+1}')
            a(f'v_add_f32 v{PACC+2}, v{PACC+2}, v{PACC+3}')
            a(f'v_cmp_u_f32 vcc, v{PACC}, v{PACC+2}')
            a(f'v_cvt_pk_bf16_f32 v{PACC}, v{PACC}, v{PACC+2}')
            a(f's_cbranch_vccnz {tag}_pnan')
            a.label(f'{tag}_pfin')
            a(f'v_mov_b32_dpp v{PACC+1}, v{PACC} quad_perm:[1,0,3,2] row_mask:0xf bank_mask:0xf')
            a(f'v_perm_b32 v{PACC}, v{PACC}, v{PACC+1}, v{A_PERM}')
            a(f'global_store_dword v{A_MEMST}, v{PACC}, s[50:51] {st}')
            cstamp(a, 6)
            if merged:
                a('s_cmp_lg_u32 s36, 62')
                a(f's_cbranch_scc1 {skip}')
                a(f's_add_u32 s30, s4, {WS_MEM2 + 63*7168 - R_MEM}')
                a('s_addc_u32 s31, s5, 0')
                a(f'global_store_dword v{A_MEMST}, v{PACC}, s[30:31] sc1')
            a.label(skip)
        a('s_mov_b64 s[48:49], s[46:47]')
        a('s_mov_b64 s[46:47], s[50:51]')
        a(f's_add_u32 s44, s46, {R_MEM}')
        a('s_addc_u32 s45, s47, 0')
        a('s_add_u32 s36, s36, 1')
        if not pvw: rest_adv()
        a('s_cmp_lt_u32 s36, 63')
        a(f's_cbranch_scc1 {tag}_loop')
        a(f's_branch {name}_done')
        a.label(f'{tag}_entry')
        if kind == 's': xk_all()
        a(f's_branch {tag}_mem')
        for f in SLOW: f()
        if merged and kind == 'v' and w == 3:
            a.label(f'{tag}_uwait')
            a('s_cmp_ge_u32 s36, 61')
            a(f's_cbranch_scc1 {tag}_uok')
            a('global_load_dword v116, v105, s[12:13] sc1')
            a('s_waitcnt vmcnt(0)')
            a('v_cmp_ne_u32 vcc, v115, v116')
            a(f's_cbranch_vccz {tag}_uok')
            a('s_sleep 4')
            a('s_sub_u32 s40, s40, 1')
            a(f's_cbranch_scc0 {tag}_uwait')
            a('s_mov_b32 s40, 0')
            a(f's_branch {tag}_uok')
        if kind == 's':
            a.label(f'{tag}_redo')
            a('s_nop 7')
            if STAMPS: a('s_add_u32 s76, s76, 1')
            a('s_sub_u32 s40, s40, 2000')
            a(f's_cbranch_scc1 {tag}_giveup')
            for r in range(28): a(f'v_mov_b32 v{ACC+r}, 0')
            if XE == 3:
                a('s_sub_u32 s54, s54, 32768'); a('s_subb_u32 s55, s55, 0')
                xk_all((0, 1))
            a('s_waitcnt lgkmcnt(0)')
            a(f's_branch {tag}_mem')
        else:
            a.label(f'{tag}_fix2')
            a(f'ds_read_b128 {vr(MA+4*own[2],4)}, v1 offset:{L_MEM + 1024*own[2]}')
            a('s_waitcnt lgkmcnt(0)')
            a(f's_branch {tag}_fix2r')
            a.label(f'{tag}_redo')
            a('s_nop 7')
            if STAMPS: a('s_add_u32 s76, s76, 1')
            a('s_sub_u32 s40, s40, 1')
            a(f's_cbranch_scc1 {tag}_giveup')
            a('s_waitcnt lgkmcnt(0)')
            mem_loads(False)
            a('s_nop 7')
            for r in range(32): a(f'v_mov_b32 v{ACC+r}, 0')
            a('s_waitcnt vmcnt(0)')
            a(f's_branch {tag}_got')
        a.label(f'{tag}_giveup')
        a('s_mov_b32 s40, 0')
        a(f's_branch {tag}_cont')
        if pvw:
            a.label(f'{tag}_pnan')
            for o in max_ops(range(PA, PA+40), TMP): a(o)
            a(f'v_cmp_eq_u32 vcc, -1, v{TMP}')
            a(f's_cbranch_vccz {tag}_pfin')
            if STAMPS: a('s_add_u32 s77, s77, 1')
            a('s_sub_u32 s40, s40, 1')
            a(f's_cbranch_scc1 {tag}_pgive')
            ubreads()
            a(f's_branch {tag}_pld')
            a.label(f'{tag}_pgive')
            a('s_mov_b32 s40, 0')
            a(f's_branch {tag}_pfin')
    for st in (('', 'sc1') if merged else ('',)):
        for kind in 'sv':
            for w in range(4): gen_wave(kind, w, st)
    a(f's_branch {name}_done')
    a.label(f'{name}_spare')
    a(f's_cmp_lg_u32 {role}, 30')
    a(f's_cbranch_scc1 {name}_done')
    a('s_cmp_ge_u32 s22, 2')
    a(f's_cbranch_scc1 {name}_done')
    wait_flags(a, name, WS_FLG + F_XP, 256, va=16, sleep=8)
    a('v_add_u32 v3, 4096, v1')
    a('v_lshlrev_b32 v5, 4, v1')
    a(f'v_add_u32 v9, {R_FP + 64 - R_MEM}, v5')
    a(f'v_add_u32 v5, {WS_FLG + F_PROG}, v5')
    a('s_add_u32 s30, s20, s22')
    a('v_mov_b32 v6, s30')
    a('v_add_u32 v6, -1, v6')
    a('v_lshlrev_b32 v7, 3, v1')
    a('v_mov_b32 v10, -1')
    a('s_mov_b32 s36, s22')
    a(f's_mul_i32 s38, s22, {RS}')
    a('s_mul_i32 s30, s22, 7168')
    a(f's_add_u32 s30, s30, {WS_MEM2 + 7168}')
    sbase(58, 's30')
    a('s_mul_i32 s30, s22, 49152')
    a(f's_add_u32 s30, s30, {WS_XK}')
    sbase(54, 's30')
    for i in range(6):
        a('global_load_dword v8, v7, s[54:55]'); sadd64(a, 54, 8192)
    a('s_lshl_b32 s30, s22, 15')
    a(f's_add_u32 s30, s30, {WS_XK + 3*32768}')
    sbase(54, 's30')
    def fstore(data, base):
        l1 = a.newlabel('fs'); l2 = a.newlabel('fs')
        a(f's_mov_b64 exec, {RMASK}')
        a('s_cmp_lt_u32 s21, 32')
        a(f's_cbranch_scc1 {l1}')
        a(f'global_store_dword v9, v{data}, s[{base}:{base+1}]')
        a(f's_branch {l2}')
        a.label(l1)
        a(f'global_store_dword v9, v{data}, s[{base}:{base+1}] sc1')
        a.label(l2)
        a('s_mov_b64 exec, -1')
    sbase(44, WS_RING + R_MEM)
    sbase(46, WS_RING + R_FP)
    a('s_cmp_lg_u32 s22, 0')
    a(f's_cbranch_scc1 {name}_spl')
    fstore(1, 44)
    a('v_mov_b32 v2, 0')
    a.label(f'{name}_sp0')
    a('global_load_dword v8, v2, s[46:47] sc1')
    a('s_waitcnt vmcnt(0)')
    a('v_cmp_eq_u32 vcc, -1, v8')
    a(f's_cbranch_vccz {name}_sp1')
    a('s_sleep 8')
    a('s_sub_u32 s40, s40, 1')
    a(f's_cbranch_scc0 {name}_sp0')
    a('s_mov_b32 s40, 0')
    a.label(f'{name}_sp1')
    a('v_add_u32 v8, 2, v6')
    a('s_mov_b64 exec, 0xffff')
    a('global_store_dword v5, v8, s[4:5] sc1')
    a('s_mov_b64 exec, -1')
    a.label(f'{name}_spl')
    a(f's_add_u32 s30, s38, {WS_RING + R_MEM}')
    a('s_add_u32 s48, s4, s30')
    a('s_addc_u32 s49, s5, 0')
    a(f's_add_u32 s38, s38, {RS}')
    a(f's_cmp_eq_u32 s38, {4*RS}')
    a('s_cselect_b32 s38, 0, s38')
    a(f's_add_u32 s30, s38, {WS_RING + R_MEM}')
    a('s_add_u32 s44, s4, s30')
    a('s_addc_u32 s45, s5, 0')
    a(f's_add_u32 s38, s38, {RS}')
    a(f's_cmp_eq_u32 s38, {4*RS}')
    a('s_cselect_b32 s38, 0, s38')
    a.label(f'{name}_spp')
    for t in range(7):
        a(f'global_load_dwordx4 {vr(16+4*t,4)}, {"v1" if t < 4 else "v3"}, s[44:45] offset:{1024*(t%4)} sc1')
    a('s_waitcnt vmcnt(0)')
    for o in max_ops(range(16, 44), 8): a(o)
    a('v_cmp_eq_u32 vcc, -1, v8')
    a(f's_cbranch_vccz {name}_spk')
    a('s_sleep 4')
    a('s_sub_u32 s40, s40, 1')
    a(f's_cbranch_scc0 {name}_spp')
    a('s_mov_b32 s40, 0')
    a.label(f'{name}_spk')
    fstore(1, 44)
    fstore(10, 48)
    for t in range(7):
        a(f'global_store_dwordx4 {"v1" if t < 4 else "v3"}, {vr(16+4*t,4)}, s[58:59] offset:{1024*(t%4)} sc1')
    a('v_add_u32 v6, 2, v6')
    a('v_add_u32 v8, 1, v6')
    a('s_mov_b64 exec, 0xffff')
    a('global_store_dword v5, v8, s[4:5] sc1')
    a('s_mov_b64 exec, -1')
    for i in range(4):
        a('global_load_dword v8, v7, s[54:55]'); sadd64(a, 54, 8192)
    sadd64(a, 54, 32768)
    sadd64(a, 58, 14336)
    a('s_add_u32 s36, s36, 2')
    a('s_cmp_lt_u32 s36, 63')
    a(f's_cbranch_scc1 {name}_spl')
    a.label(f'{name}_done')

def gen_k3(a, name='chain_kernel'):
    a(f'.globl {name}\n.p2align 8\n.type {name},@function\n{name}:')
    a('s_cmp_ge_u32 s2, 256')
    a(f's_cbranch_scc1 {name}_end')
    a(f's_load_dwordx2 s[4:5], s[0:1], {KA_WS}')
    a(f's_load_dwordx2 s[6:7], s[0:1], {KA_DBG}')
    stamp_init(a)
    if STAMPS:
        a('s_mov_b32 s76, 0'); a('s_mov_b32 s77, 0'); a('s_mov_b32 s86, 0'); a('s_memrealtime s[78:79]'); a('s_memtime s[82:83]')
    a('s_getreg_b32 s23, hwreg(HW_REG_XCC_ID)')
    a('s_and_b32 s23, s23, 15')
    a('v_lshrrev_b32 v2, 6, v0')
    a('v_readfirstlane_b32 s22, v2')
    a('s_waitcnt lgkmcnt(0)')
    a('s_cmp_lg_u32 s23, 0')
    a(f's_cbranch_scc1 {name}_end')
    a('s_cmp_lg_u32 s22, 0')
    a(f's_cbranch_scc1 {name}_wait')
    a('v_mov_b32 v1, 0')
    a('v_mov_b32 v2, 1')
    a('s_mov_b64 exec, 1')
    a('global_atomic_add v3, v1, v2, s[6:7] sc0')
    a('s_waitcnt vmcnt(0)')
    a(f'v_mov_b32 v1, {L_MISC}')
    a('ds_write_b32 v1, v3')
    a('s_waitcnt lgkmcnt(0)')
    a('s_mov_b64 exec, -1')
    a.label(f'{name}_wait')
    a('s_barrier')
    a(f'v_mov_b32 v1, {L_MISC}')
    a('ds_read_b32 v3, v1')
    a('s_waitcnt lgkmcnt(0)')
    a('v_readfirstlane_b32 s24, v3')
    a('s_cmp_ge_u32 s24, 32')
    a(f's_cbranch_scc1 {name}_end')
    gen_chain(a, name)
    if STAMPS:
        a('s_memrealtime s[80:81]')
        a('s_memtime s[84:85]')
        a('s_waitcnt lgkmcnt(0) vmcnt(0)')
        a('s_mov_b64 exec, 1')
        a('s_lshl_b32 s3, s2, 2')
        a('s_add_u32 s3, s3, s22')
        a('s_lshl_b32 s3, s3, 4')
        a(f's_add_u32 s3, s3, {WS_STAMP + 3*0x20000}')
        a('s_sub_u32 s84, s84, s82')
        a('s_lshl_b32 s86, s86, 4')
        a('s_lshl_b32 s77, s77, 0')
        a('s_lshl_b32 s77, s77, 16')
        a('s_or_b32 s76, s76, s77')
        a('v_mov_b32 v0, s3')
        a('v_mov_b32 v4, s76'); a('v_mov_b32 v5, s86' if ENV('RT', 0) else 'v_mov_b32 v5, s84'); a('v_mov_b32 v6, s78'); a('v_mov_b32 v7, s80')
        a('global_store_dwordx4 v0, v[4:7], s[4:5]')
        a('s_nop 1')
    stamp_end(a, 2, n=9)
    a.label(f'{name}_end')
    a('s_endpgm')
    return dict(name=name, vgpr=256, agpr=256, sgpr=96, grid=256, block=256, lds=LDS_BYTES)
```

```python
from asmlib import *
from layout import *
from k2 import gen_argmax
from prep import wait_flags

def gen_out_item(a, name, seg, cg, st_ld='', merged=False, mid=None):
    ws = 's[4:5]'
    UA, PB, ACC = 16, 96, 8
    a('s_mov_b32 s43, 0')
    a(f's_lshl_b32 s30, {cg}, 2')
    a('s_add_u32 s30, s30, s22')
    a(f's_mul_i32 s31, {seg}, 28')
    a('s_add_u32 s31, s31, s30')
    a('s_lshl_b32 s32, s31, 14')
    a(f's_add_u32 s32, s32, {WS_U + 4096}')
    a('v_add_u32 v2, s32, v1')
    for i in range(16):
        if i == 8: a('v_add_u32 v2, 8192, v2')
        a(f'global_load_dwordx4 {vr(UA+4*i,4)}, v2, {ws} offset:{1024*(i%8) - 4096} {st_ld}')
    def mld():
        a('s_lshl_b32 s32, s31, 12')
        a(f's_add_u32 s32, s32, {WS_M2}')
        a('v_add_u32 v2, s32, v4')
        for t in range(2):
            for u in range(2):
                for sel in range(2):
                    a(f'global_load_dwordx2 {vr(UA+64+8*t+4*u+2*sel,2)}, v2, {ws} offset:{2048*t+1024*u+256*sel} {st_ld}')
    a(f's_mul_i32 s32, {seg}, {16*2560}')
    a(f's_add_u32 s32, s32, {WS_PX}')
    a('s_add_u32 s44, s4, s32')
    a('s_addc_u32 s45, s5, 0')
    a(f's_lshl_b32 s33, {seg}, 5')
    a('s_mul_i32 s32, s33, 896')
    a('s_lshl_b32 s34, s30, 5')
    a('s_add_u32 s32, s32, s34')
    a('v_add_u32 v3, s32, v5')
    a(f'v_add_u32 v7, {16*896}, v3')
    a('global_load_dwordx2 v[132:133], v3, s[8:9]')
    a('global_load_dwordx2 v[134:135], v7, s[8:9]')
    a('s_lshl_b32 s32, s33, 3')
    a(f's_add_u32 s32, s32, {WS_G}')
    a('v_add_u32 v2, s32, v6')
    a(f'global_load_dwordx2 v[136:137], v2, {ws} sc1')
    a(f'global_load_dwordx2 v[138:139], v2, {ws} offset:128 sc1')
    if mid: mid()
    mld()
    LP = 0x1000
    def poffs():
        for k in range(20):
            for sel in range(2):
                for tt in range(2):
                    if k < 16:
                        t, u = k // 2, k % 2
                        off = (2*t + sel)*2560 + u*1024 + tt*512; va = 128
                    else:
                        t, u = (k-16) // 2, k % 2
                        off = (8*t + 4*u + sel)*2560 + 2048 + tt*256; va = 129
                    yield k, ar(8*k + 4*tt + 2*sel, 2), va, off
    a('s_mul_i32 s32, s22, 10240')
    a('s_add_u32 s46, s44, s32')
    a('s_addc_u32 s47, s45, 0')
    a(f's_add_u32 s32, s32, {LP}')
    for i in range(10):
        if i % 4 == 0:
            a(f's_add_u32 m0, s32, {1024*i}')
            if i: a('s_add_u32 s46, s46, 4096'); a('s_addc_u32 s47, s47, 0')
        a(f'global_load_lds_dwordx4 v1, s[46:47] offset:{1024*(i%4)} {st_ld}')
    a('s_waitcnt vmcnt(0)')
    a('s_barrier')
    for k in range(16): a(f'v_swap_b32 v{UA+4*k+1}, v{UA+4*k+2}')
    def mf(k):
        for tt in range(2):
            acc = vr(ACC + 4*tt, 4)
            a(f'v_mfma_f32_16x16x32_bf16 {acc}, {vr(UA+4*k,4)}, {ar(8*k + 4*tt, 4)}, {acc if k else 0}')
    po = list(poffs())
    for k in range(20 + 3):
        if k < 20:
            for kk, dst, va, off in po[4*k:4*k+4]: a(f'ds_read_b64 {dst}, v{va} offset:{LP + off}')
        if k >= 3:
            a(f's_waitcnt lgkmcnt({min(12, 4*(22-k) if k >= 20 else 12)})')
            mf(k-3)
    a.label(f'{name}_pchk')
    a('v_add_f32 v140, v8, v12')
    a('v_add3_u32 v141, v9, v10, v11') if False else None
    a('v_add_f32 v141, v9, v10')
    a('v_add_f32 v140, v140, v11')
    a('v_add_f32 v140, v140, v141')
    a('v_cmp_u_f32 vcc, v140, v140')
    a(f's_cbranch_vccz {name}_pok')
    a('s_sub_u32 s42, s42, 2000')
    a(f's_cbranch_scc1 {name}_pgv')
    a('s_sleep 2')
    mld()
    cur_hi = None
    for kk, dst, va, off in po:
        hi = off // 4096
        if hi != cur_hi:
            a(f's_add_u32 s46, s44, {hi*4096}')
            a('s_addc_u32 s47, s45, 0')
            cur_hi = hi
        a(f'global_load_dwordx2 {dst}, v{va}, s[46:47] offset:{off % 4096} {st_ld}')
    a('s_waitcnt vmcnt(0)')
    for k in range(20): mf(k)
    a(f's_branch {name}_pchk')
    a.label(f'{name}_pgv')
    a('s_mov_b32 s42, 0')
    a.label(f'{name}_pok')
    a('s_sub_u32 s34, s40, s33')
    a('s_cmp_lt_u32 s34, 32')
    a(f's_cbranch_scc1 {name}_ffnrow')
    a.label(f'{name}_ffnret')
    for tt in range(2):
        A_ = ACC + 4*tt; X = 132 + 2*tt; G = 136 + 2*tt
        if tt == 0 or True:
            a(f'v_lshlrev_b32 v16, 16, v{X}')
            a(f'v_and_b32 v17, 0xffff0000, v{X}')
            a(f'v_lshlrev_b32 v18, 16, v{X+1}')
            a(f'v_and_b32 v19, 0xffff0000, v{X+1}')
        a(f'v_cvt_pk_bf16_f32 v20, v{A_}, v{A_+1}')
        a(f'v_cvt_pk_bf16_f32 v21, v{A_+2}, v{A_+3}')
        a('v_lshlrev_b32 v22, 16, v20')
        a('v_and_b32 v23, 0xffff0000, v20')
        a('v_lshlrev_b32 v24, 16, v21')
        a('v_and_b32 v25, 0xffff0000, v21')
        for i in range(4):
            a(f'v_mul_f32 v{22+i}, v{G}, v{22+i}')
            a(f'v_mul_f32 v{16+i}, v{G+1}, v{16+i}')
        a('v_cvt_pk_bf16_f32 v20, v22, v23')
        a('v_cvt_pk_bf16_f32 v21, v24, v25')
        a('v_cvt_pk_bf16_f32 v26, v16, v17')
        a('v_cvt_pk_bf16_f32 v27, v18, v19')
        for i in range(2):
            a(f'v_lshlrev_b32 v22, 16, v{20+i}')
            a(f'v_and_b32 v23, 0xffff0000, v{20+i}')
            a(f'v_lshlrev_b32 v24, 16, v{26+i}')
            a(f'v_and_b32 v25, 0xffff0000, v{26+i}')
            a('v_add_f32 v22, v22, v24')
            a('v_add_f32 v23, v23, v25')
            a(f'v_cvt_pk_bf16_f32 v{28+2*tt+i}, v22, v23')
        a(f'global_store_dwordx2 v{[3,7][tt]}, {vr(28+2*tt,2)}, s[10:11]')
    return

def gen_ffnrow(a, name, st_ld='', merged=False):
    ws = 's[4:5]'
    a.label(f'{name}_ffnrow')
    if merged: wait_flags(a, name, WS_FLG + F_FFN, 28, va=16, budget='s42')
    a('v_lshrrev_b32 v2, 4, v0')
    a('v_lshlrev_b32 v2, 4, v2')
    a('s_lshl_b32 s35, s30, 6')
    a(f's_add_u32 s35, s35, {WS_YP}')
    a('v_add_u32 v2, s35, v2')
    for i in range(4): a(f'v_mov_b32 v{16+i}, 0')
    for blk in range(2):
        for p in range(14):
            if p % 2 == 0 and (p or blk): a('v_add_u32 v2, 3584, v2')
            a(f'global_load_dwordx4 {vr(32+4*p,4)}, v2, {ws} offset:{1792*(p%2)} {st_ld}')
        a('s_waitcnt vmcnt(0)')
        for p in range(14):
            for i in range(4): a(f'v_add_f32 v{16+i}, v{16+i}, v{32+4*p+i}')
    a('v_cvt_pk_bf16_f32 v20, v16, v17')
    a('v_cvt_pk_bf16_f32 v21, v18, v19')
    a('v_lshlrev_b32 v16, 16, v20')
    a('v_and_b32 v17, 0xffff0000, v20')
    a('v_lshlrev_b32 v18, 16, v21')
    a('v_and_b32 v19, 0xffff0000, v21')
    for i in range(4): a(f'v_mul_f32 v{16+i}, s41, v{16+i}')
    a('v_cvt_pk_bf16_f32 v20, v16, v17')
    a('v_cvt_pk_bf16_f32 v21, v18, v19')
    a('v_lshlrev_b32 v16, 16, v20')
    a('v_and_b32 v17, 0xffff0000, v20')
    a('v_lshlrev_b32 v18, 16, v21')
    a('v_and_b32 v19, 0xffff0000, v21')
    a('v_and_b32 v2, 15, v0')
    for tt in range(2):
        X = 132 + 2*tt
        a(f'v_lshlrev_b32 v22, 16, v{X}')
        a(f'v_and_b32 v23, 0xffff0000, v{X}')
        a(f'v_lshlrev_b32 v24, 16, v{X+1}')
        a(f'v_and_b32 v25, 0xffff0000, v{X+1}')
        for i in range(4): a(f'v_add_f32 v{22+i}, v{22+i}, v{16+i}')
        a('v_cvt_pk_bf16_f32 v20, v22, v23')
        a('v_cvt_pk_bf16_f32 v21, v24, v25')
        a(f's_sub_u32 s35, s34, {16*tt}')
        a('v_cmp_eq_u32 vcc, s35, v2')
        a(f'v_cndmask_b32 v{X}, v{X}, v20, vcc')
        a(f'v_cndmask_b32 v{X+1}, v{X+1}, v21, vcc')
    a(f's_branch {name}_ffnret')

def out_setup(a):
    a(f's_load_dwordx2 s[8:9], s[0:1], {KA_X}')
    a(f's_load_dwordx2 s[10:11], s[0:1], {KA_OUT}')
    a('v_and_b32 v0, 63, v0')
    a('v_lshlrev_b32 v1, 4, v0')
    a('v_and_b32 v2, 15, v0')
    a('v_lshrrev_b32 v3, 4, v0')
    a('v_lshrrev_b32 v4, 1, v3')
    a('v_lshlrev_b32 v4, 9, v4')
    a('v_and_b32 v5, 1, v3')
    a('v_lshl_add_u32 v4, v5, 7, v4')
    a('v_lshl_add_u32 v4, v2, 3, v4')
    a('v_lshrrev_b32 v129, 1, v3')
    a('v_mul_u32_u24 v129, 5120, v129')
    a('v_lshl_add_u32 v129, v5, 7, v129')
    a('v_lshl_add_u32 v129, v2, 3, v129')
    a('v_lshlrev_b32 v128, 3, v0')
    a('v_mul_u32_u24 v5, 896, v2')
    a('v_lshl_add_u32 v5, v3, 3, v5')
    a('v_lshlrev_b32 v6, 3, v2')
    a('v_and_b32 v130, 31, v0')
    a('v_lshrrev_b32 v131, 1, v130')
    a('v_mul_u32_u24 v131, 2560, v131')
    a('v_and_b32 v130, 1, v130')
    a('v_lshl_add_u32 v130, v130, 8, v131')
    a('v_add_u32 v130, 2048, v130')

def gen_k5(a, name='out_kernel'):
    a(f'.globl {name}\n.p2align 8\n.type {name},@function\n{name}:')
    a('s_cmp_ge_u32 s2, 448')
    a(f's_cbranch_scc1 {name}_end')
    a(f's_load_dwordx2 s[4:5], s[0:1], {KA_WS}')
    a('v_lshrrev_b32 v2, 6, v0')
    a('v_readfirstlane_b32 s22, v2')
    a('s_waitcnt lgkmcnt(0)')
    gen_argmax(a)
    a('s_mov_b32 s40, s27')
    out_setup(a)
    a('s_mul_i32 s24, s2, 9363')
    a('s_lshr_b32 s24, s24, 16')
    a('s_mul_i32 s25, s24, 7')
    a('s_sub_u32 s25, s2, s25')
    a('s_waitcnt lgkmcnt(0)')
    gen_out_item(a, name, 's24', 's25')
    a('s_endpgm')
    gen_ffnrow(a, name)
    a.label(f'{name}_end')
    a('s_endpgm')
    return dict(name=name, vgpr=144, agpr=160, sgpr=64, grid=448, block=256, lds=64)
```

```python
from asmlib import *
from layout import *
from k1 import stamp, stamp_end, stamp_init
from k2 import gen_ugemm, gen_ffn, gen_argmax
from k3 import gen_chain, L_MISC, LDS_BYTES, ENV
from k4 import gen_hs
from prep import gen_img_job, wait_flags, wait_arrivals, get_tag, WgWait, wait_prog
from k6 import gen_mjob
from k5 import gen_out_item, gen_ffnrow, out_setup

NS_REP = 4
import os

def gen_main(a, name='main_kernel'):
    a(f'.globl {name}\n.p2align 8\n.type {name},@function\n{name}:')
    a('s_cmp_ge_u32 s2, 256')
    a(f's_cbranch_scc1 {name}_end')
    a(f's_load_dwordx2 s[4:5], s[0:1], {KA_WS}')
    a(f's_load_dwordx2 s[6:7], s[0:1], {KA_DBG}')
    stamp_init(a)
    if STAMPS:
        a('s_mov_b32 s76, 0'); a('s_mov_b32 s77, 0'); a('s_mov_b32 s86, 0'); a('s_mov_b32 s87, 0'); a('s_mov_b32 s88, 0'); a('s_memrealtime s[78:79]'); a('s_memtime s[82:83]')
    a('s_memrealtime s[16:17]')
    a('s_getreg_b32 s23, hwreg(HW_REG_XCC_ID)')
    a('s_and_b32 s23, s23, 7')
    if ENV('FAKEXCC', 0) == 1:
        a('s_and_b32 s23, s2, 3'); a('s_add_u32 s23, s23, 1')
    if ENV('FAKEXCC', 0) == 2:
        a('s_mul_i32 s23, s2, 5'); a('s_and_b32 s23, s23, 15'); a('s_min_u32 s23, s23, 5')
    a('v_lshrrev_b32 v2, 6, v0')
    a('v_readfirstlane_b32 s22, v2')
    a('s_waitcnt lgkmcnt(0)')
    if ENV('CPF', 0):
        a('s_getpc_b64 s[10:11]')
        a('s_lshr_b32 s24, s2, 3')
        a('s_lshl_b32 s24, s24, 2')
        a('s_add_u32 s24, s24, s22')
        a('s_mul_i32 s25, s24, 5462')
        a('s_lshr_b32 s25, s25, 16')
        a('s_mul_i32 s25, s25, 12')
        a('s_sub_u32 s24, s24, s25')
        a('s_lshl_b32 s24, s24, 13')
        a('v_and_b32 v9, 63, v0')
        a('v_lshlrev_b32 v9, 7, v9')
        a('v_add_u32 v9, s24, v9')
        a(f'v_min_u32 v9, CODE_BYTES, v9')
        a('global_load_dword v10, v9, s[10:11]')
    a('s_cmp_lg_u32 s22, 0')
    a(f's_cbranch_scc1 {name}_wait')
    a('s_mov_b64 exec, 1')
    a('s_and_b32 s24, s23, 3')
    a('s_lshl_b32 s24, s24, 6')
    a('s_lshr_b32 s25, s23, 2')
    a('s_lshl_b32 s25, s25, 2')
    a('s_add_u32 s24, s24, s25')
    a('v_mov_b32 v1, s24')
    a('v_mov_b32 v2, 1')
    a('global_atomic_add v3, v1, v2, s[6:7] sc0')
    a('s_waitcnt vmcnt(0)')
    a('v_readfirstlane_b32 s24, v3')
    a('v_mov_b32 v1, 0')
    a('s_cmp_lg_u32 s24, 0')
    a(f's_cbranch_scc1 {name}_notag')
    a('s_or_b32 s20, s16, 1')
    a('v_mov_b32 v6, s20')
    a('v_mov_b32 v7, 0')
    a(f'global_atomic_cmpswap v1, v[6:7], s[6:7] offset:{DBG_TAG}')
    a.label(f'{name}_notag')
    a('s_lshl_b32 s25, s23, 5')
    a('s_add_u32 s25, s25, s24')
    a('v_mov_b32 v3, s25')
    a('s_cmp_lt_u32 s24, 32')
    a(f's_cbranch_scc1 {name}_pub')
    a(f'global_atomic_add v3, v1, v2, s[6:7] offset:{DBG_OVF} sc0')
    a('s_mov_b32 s40, 1000000')
    wait_arrivals(a, name + '_o')
    a('v_readfirstlane_b32 s24, v3')
    a('s_mov_b32 s26, 255')
    for x in range(8):
        lx = a.newlabel('ovf')
        a(f'v_readfirstlane_b32 s25, v{8 + 2*(x%4) + x//4}')
        a('s_min_u32 s25, s25, 32')
        a('s_sub_u32 s27, 32, s25')
        a('s_cmp_lt_u32 s24, s27')
        a(f's_cbranch_scc0 {lx}')
        a('s_add_u32 s26, s24, s25')
        a(f's_add_u32 s26, s26, {32*x}')
        a(f's_branch {name}_ovd')
        a.label(lx)
        a('s_sub_u32 s24, s24, s27')
    a.label(f'{name}_ovd')
    a('v_mov_b32 v3, s26')
    a.label(f'{name}_pub')
    a(f'v_mov_b32 v1, {L_MISC}')
    a('ds_write_b32 v1, v3')
    a('s_waitcnt lgkmcnt(0)')
    a('s_mov_b64 exec, -1')
    a.label(f'{name}_wait')
    a('s_barrier')
    a(f'v_mov_b32 v1, {L_MISC}')
    a('ds_read_b32 v2, v1')
    a('s_waitcnt lgkmcnt(0)')
    a('v_readfirstlane_b32 s24, v2')
    a('s_cmp_ge_u32 s24, 32')
    a(f's_cbranch_scc1 {name}_helper')
    gen_chain(a, name + '_c', merged=True)
    a(f's_branch {name}_fin')
    a.label(f'{name}_helper')
    a('s_sub_u32 s24, s24, 32')
    a('v_mov_b32 v250, v0')
    a('s_mov_b32 s38, s24')
    a('s_and_b32 s21, s24, 31')
    a('s_mul_i32 s21, s21, 7')
    a('s_lshr_b32 s25, s24, 5')
    a('s_add_u32 s21, s21, s25')
    a('s_mov_b32 s24, s21')
    if STAMPS: a('s_add_u32 s74, s21, 100')
    a('s_sub_u32 s25, s24, 140')
    a(f's_cmp_ge_u32 s25, {16*NS_REP}')
    a(f's_cbranch_scc1 {name}_nopf')
    a('s_cmp_ge_u32 s22, 3')
    a(f's_cbranch_scc1 {name}_nopf')
    a('s_mul_i32 s25, s25, 2560')
    a(f's_add_u32 s25, s25, {WS_PX}')
    a('v_min_u32 v1, 159, v0')
    a('v_lshlrev_b32 v1, 4, v1')
    a('v_add_u32 v1, s25, v1')
    for r in range(4): a(f'v_mov_b32 v{4+r}, -1')
    for i in range(64 // NS_REP):
        a('global_store_dwordx4 v1, v[4:7], s[4:5] sc1')
        a(f'v_add_u32 v1, {NS_REP*16*2560}, v1')
    a.label(f'{name}_nopf')
    a('s_sub_u32 s25, s24, 112')
    a('s_cmp_ge_u32 s25, 28')
    a(f's_cbranch_scc1 {name}_nopm')
    a('s_lshl_b32 s25, s25, 12')
    a(f's_add_u32 s25, s25, {WS_M2 + 63*28*4096}')
    a('v_lshlrev_b32 v1, 4, v0')
    a('v_add_u32 v1, s25, v1')
    for r in range(4): a(f'v_mov_b32 v{4+r}, -1')
    a('global_store_dwordx4 v1, v[4:7], s[4:5] sc1')
    a('s_nop 1')
    a.label(f'{name}_nopm')
    a('s_lshr_b32 s25, s38, 3')
    a('s_mul_i32 s26, s25, 9363')
    a('s_lshr_b32 s26, s26, 16')
    a('s_mul_i32 s27, s26, 7')
    a('s_sub_u32 s27, s25, s27')
    a('s_lshl_b32 s26, s26, 3')
    a('s_and_b32 s25, s38, 7')
    a('s_add_u32 s26, s26, s25')
    a('s_mul_i32 s39, s26, 7')
    a('s_add_u32 s39, s39, s27')
    gen_img_job(a, name, 's39', unit='s21')
    a('s_barrier')
    a('v_mov_b32 v0, v250')
    a('s_mov_b32 s24, s21')
    if ENV('BISECT', 0) == 1 or ENV('NOH', 0): a(f's_branch {name}_fin')
    a('s_cmp_lt_u32 s24, 112')
    a(f's_cbranch_scc1 {name}_hu')
    a('s_cmp_lt_u32 s24, 140')
    a(f's_cbranch_scc1 {name}_hf')
    a(f's_cmp_lt_u32 s24, {140 + 16*NS_REP}')
    a(f's_cbranch_scc1 {name}_hs')
    a(f's_branch {name}_ho')
    a.label(f'{name}_hu')
    gen_ugemm(a, name, 's24', 's22', ENV('UN', 16), 4, st=os.environ.get('UST', 'sc1'), sig=True)
    a(f's_cmp_lt_u32 s24, {ENV("NUO", 28)}')
    a(f's_cbranch_scc0 {name}_fin')
    a(f's_branch {name}_ho')
    a.label(f'{name}_hf')
    if ENV('NOF', 0): a(f's_branch {name}_fin')
    a('s_sub_u32 s24, s24, 112')
    a('s_mov_b32 s40, 1000000')
    a('v_and_b32 v3, 63, v0')
    with WgWait(a): wait_prog(a, name, 1, va=4, sleep=80)
    gen_ffn(a, name, st='sc1')
    gen_mjob(a, name, 's24')
    a(f's_branch {name}_fin')
    a.label(f'{name}_hs')
    if ENV('NOS', 0): a(f's_branch {name}_fin')
    a('s_sub_u32 s24, s24, 140')
    a('s_lshr_b32 s25, s24, 4')
    a('s_and_b32 s24, s24, 15')
    a('s_mov_b32 s40, 1000000')
    a('v_and_b32 v3, 63, v0')
    a('s_mul_i32 s26, s24, 112')
    a(f's_add_u32 s26, s26, {WS_FLG + F_IMG}')
    with WgWait(a, True):
        wait_prog(a, name, 1, va=4, sleep=80)
        wait_flags(a, name, 's26', 28, lane='v3', va=4)
    gen_hs(a, name, 's24', 's25', 64 // NS_REP, NS_REP, merged=True)
    a(f's_branch {name}_fin')
    a.label(f'{name}_ho')
    if ENV('NOO', 0): a(f's_branch {name}_fin')
    a('s_waitcnt vmcnt(0) lgkmcnt(0)')
    a('v_mov_b32 v0, v250')
    a('s_mov_b32 s40, 1000000')
    a('v_and_b32 v3, 63, v0')
    with WgWait(a):
        wait_prog(a, name, 1, va=4, sleep=80)
        wait_flags(a, name, WS_FLG + F_IMG, 896, lane='v3', va=4, sleep=40)
    gen_argmax(a)
    a('s_mov_b32 s40, s27')
    out_setup(a)
    a('s_mov_b32 s42, 2000000')
    a('v_cmp_gt_u32 s[48:49], 32, v0')
    a('v_and_b32 v131, 15, v0')
    a('v_lshlrev_b32 v131, 2, v131')
    a(f'v_add_u32 v131, {WS_FLG + F_M}, v131')
    a('s_waitcnt lgkmcnt(0)')
    a.label(f'{name}_oloop')
    a('s_waitcnt vmcnt(0)')
    with WgWait(a):
        a('s_mov_b64 exec, 1')
        a('v_mov_b32 v2, 0')
        a('v_mov_b32 v3, 1')
        a(f'global_atomic_add v7, v2, v3, s[6:7] offset:{DBG_OT} sc0')
        a('s_waitcnt vmcnt(0)')
        a('ds_write_b32 v2, v7 offset:64')
        a('s_mov_b64 exec, -1')
        a('v_readfirstlane_b32 s26, v7')
        a('s_min_u32 s26, s26, 447')
        a('s_mul_i32 s24, s26, 9363')
        a('s_lshr_b32 s24, s24, 16')
        a('s_mul_i32 s25, s24, 7')
        a('s_sub_u32 s25, s26, s25')
        a('s_mul_i32 s30, s24, 448')
        a('s_lshl_b32 s31, s25, 6')
        a('s_add_u32 s30, s30, s31')
        a(f's_add_u32 s30, s30, {WS_FLG + F_U}')
        wait_flags(a, name, 's30', 16, va=140, sleep=30, budget='s42')
        a('s_waitcnt lgkmcnt(0)')
    a('v_mov_b32 v2, 0')
    a('ds_read_b32 v7, v2 offset:64')
    a('s_waitcnt lgkmcnt(0)')
    a('v_readfirstlane_b32 s26, v7')
    a('s_cmp_ge_u32 s26, 448')
    a(f's_cbranch_scc1 {name}_fin')
    a('s_mul_i32 s24, s26, 9363')
    a('s_lshr_b32 s24, s24, 16')
    a('s_mul_i32 s25, s24, 7')
    a('s_sub_u32 s25, s26, s25')
    def mid():
        with WgWait(a):
            a(f's_mul_i32 s32, s24, {16*2560}')
            a(f's_add_u32 s32, s32, {WS_PX}')
            a('v_add_u32 v140, s32, v130')
            a('s_mul_i32 s32, s24, 448')
            a('s_lshl_b32 s35, s25, 6')
            a('s_add_u32 s32, s32, s35')
            a('v_add_u32 v141, s32, v131')
            a('v_cndmask_b32 v140, v141, v140, s[48:49]')
            a('s_cmp_eq_u32 s24, 63')
            a('s_cselect_b32 s35, 0, -1')
            a.label(f'{name}_pw')
            a('global_load_dword v141, v140, s[4:5] sc1')
            a('s_waitcnt vmcnt(0)')
            a('v_cmp_eq_u32 vcc, -1, v141')
            a('v_cmp_ne_u32 s[50:51], s20, v141')
            a('s_and_b32 vcc_hi, s51, s35')
            a('s_cmp_eq_u64 vcc, 0')
            a(f's_cbranch_scc1 {name}_cwd')
            a('s_sleep 2')
            a('s_cmp_ge_u32 s24, 61')
            a(f's_cbranch_scc1 {name}_pws')
            a(f's_sleep {ENV("OSLP", 24)}')
            a.label(f'{name}_pws')
            a('s_sub_u32 s42, s42, 1')
            a(f's_cbranch_scc0 {name}_pw')
            a('s_mov_b32 s42, 0')
            a.label(f'{name}_cwd')
    gen_out_item(a, name, 's24', 's25', st_ld='sc1', merged=True, mid=mid)
    a(f's_branch {name}_oloop')
    gen_ffnrow(a, name, st_ld='sc1', merged=True)
    a.label(f'{name}_fin')
    if STAMPS:
        a('s_memrealtime s[80:81]')
        a('s_memtime s[84:85]')
        a('s_waitcnt lgkmcnt(0) vmcnt(0)')
        a('s_mov_b64 exec, 1')
        a('s_lshl_b32 s3, s2, 2')
        a('s_add_u32 s3, s3, s22')
        a('s_lshl_b32 s3, s3, 4')
        a(f's_add_u32 s3, s3, {WS_STAMP + 3*0x20000}')
        a('s_sub_u32 s84, s84, s82')
        a('s_lshl_b32 s86, s87, 24')
        a('s_or_b32 s76, s76, s86')
        a('s_lshl_b32 s77, s77, 16')
        a('s_or_b32 s76, s76, s77')
        a('v_mov_b32 v0, s3')
        a('v_mov_b32 v4, s84' if ENV('CLK', 0) else 'v_mov_b32 v4, s76'); a('v_mov_b32 v5, s88'); a('v_mov_b32 v6, s78'); a('v_mov_b32 v7, s80')
        a('global_store_dwordx4 v0, v[4:7], s[4:5]')
        a('s_nop 1')
    stamp_end(a, 2, n=9)
    a.label(f'{name}_end')
    a('s_endpgm')
    a(f'.set CODE_BYTES, {name}_end - {name} - 256')
    return dict(name=name, vgpr=256, agpr=256, sgpr=96, grid=256, block=256, lds=LDS_BYTES)
```

```python
from asmlib import *
from layout import *
from k1 import wave_sum2, stamp
import os
IMGST = os.environ.get('IMGST', 'sc1')

def set_flag(a, off_sgpr_or_imm, vt=1, ws='s[4:5]'):
    a('s_waitcnt vmcnt(0)')
    a(f'v_mov_b32 v{vt}, {off_sgpr_or_imm}')
    a(f'v_mov_b32 v{vt+1}, s20')
    a('s_mov_b64 exec, 1')
    a(f'global_store_dword v{vt}, v{vt+1}, {ws} sc1')
    a('s_mov_b64 exec, -1')

def wait_flags(a, name, base, nwords, lane='v0', va=1, sleep=8, budget='s40', ws='s[4:5]'):
    k = (nwords + 63) // 64
    L = a.newlabel(name + '_wf'); D = a.newlabel(name + '_wd')
    a(f'v_lshlrev_b32 v{va}, 2, {lane}')
    if nwords < 64: a(f'v_min_u32 v{va}, {4*(nwords-1)}, v{va}')
    else: assert nwords % 64 == 0
    a(f'v_add_u32 v{va}, {base}, v{va}')
    a.label(L)
    for i in range(k): a(f'global_load_dword v{va+1+i}, v{va}, {ws} offset:{256*i} sc1')
    a('s_waitcnt vmcnt(0)')
    for i in range(k):
        a(f'v_xor_b32 v{va+1+i}, s20, v{va+1+i}')
        if i: a(f'v_or_b32 v{va+1}, v{va+1}, v{va+1+i}')
    a(f'v_cmp_ne_u32 vcc, 0, v{va+1}')
    a(f's_cbranch_vccz {D}')
    a(f's_sleep {sleep}')
    a(f's_sub_u32 {budget}, {budget}, 1')
    a(f's_cbranch_scc0 {L}')
    a(f's_mov_b32 {budget}, 0')
    a.label(D)

class WgWait:
    def __init__(self, a, inv=False): self.a = a; self.l = a.newlabel('wgw'); self.inv = inv
    def __enter__(self):
        self.a('s_cmp_lg_u32 s22, 0'); self.a(f's_cbranch_scc1 {self.l}')
    def __exit__(self, *x):
        if self.inv:
            self.a('buffer_inv sc1'); self.a('s_waitcnt vmcnt(0)')
        self.a.label(self.l); self.a('s_barrier')

def wait_prog(a, name, need, va=1, sleep=60, budget='s40'):
    L = a.newlabel(name + '_pg'); D = a.newlabel(name + '_pd')
    a('s_and_b32 s3, s2, 15')
    a('s_lshl_b32 s3, s3, 8')
    a(f's_add_u32 s3, s3, {WS_FLG + F_PROG}')
    a(f'v_mov_b32 v{va}, s3')
    a.label(L)
    a(f'global_load_dword v{va+1}, v{va}, s[4:5] sc1')
    a('s_waitcnt vmcnt(0)')
    a(f'v_readfirstlane_b32 s3, v{va+1}')
    a('s_sub_u32 s3, s3, s20')
    a(f's_sub_u32 s3, s3, {need}')
    a('s_cmp_lt_u32 s3, 128')
    a(f's_cbranch_scc1 {D}')
    a(f's_sleep {sleep}')
    a(f's_sub_u32 {budget}, {budget}, 1')
    a(f's_cbranch_scc0 {L}')
    a(f's_mov_b32 {budget}, 0')
    a.label(D)

def get_tag(a, name, v=1):
    L = a.newlabel(name + '_gt'); D = a.newlabel(name + '_gd')
    a(f'v_mov_b32 v{v}, 0')
    a.label(L)
    a(f'global_load_dword v{v+1}, v{v}, s[6:7] offset:{DBG_TAG} sc1')
    a('s_waitcnt vmcnt(0)')
    a(f'v_readfirstlane_b32 s20, v{v+1}')
    a('s_cmp_lg_u32 s20, 0')
    a(f's_cbranch_scc1 {D}')
    a('s_sleep 2')
    a('s_sub_u32 s40, s40, 1')
    a(f's_cbranch_scc0 {L}')
    a('s_mov_b32 s40, 0')
    a.label(D)

def wait_arrivals(a, name):
    L = a.newlabel(name + '_aw'); D = a.newlabel(name + '_ad')
    a('v_mov_b32 v7, 0')
    a.label(L)
    for i in range(4): a(f'global_load_dwordx2 v[{8+2*i}:{9+2*i}], v7, s[6:7] offset:{64*i} sc1')
    a('s_waitcnt vmcnt(0)')
    a('v_add3_u32 v16, v8, v9, v10')
    a('v_add3_u32 v16, v16, v11, v12')
    a('v_add3_u32 v16, v16, v13, v14')
    a('v_add_u32 v16, v16, v15')
    a('v_readfirstlane_b32 s25, v16')
    a('s_cmp_ge_u32 s25, 256')
    a(f's_cbranch_scc1 {D}')
    a('s_sleep 4')
    a('s_sub_u32 s40, s40, 1')
    a(f's_cbranch_scc0 {L}')
    a('s_mov_b32 s40, 0')
    a.label(D)

def gen_img_job(a, name, job='s24', unit='s24'):
    AOP, ACC, BOP = 16, 144, 208
    a(f's_load_dwordx4 s[8:11], s[0:1], {KA_WQ}')
    a(f's_load_dwordx4 s[12:15], s[0:1], {KA_WV}')
    a(f's_mul_i32 s25, {job}, 9363')
    a('s_lshr_b32 s25, s25, 16')
    a('s_mul_i32 s26, s25, 7')
    a(f's_sub_u32 s26, {job}, s26')
    a('s_lshr_b32 s23, s25, 4')
    a('s_and_b32 s25, s25, 15')
    a('v_and_b32 v3, 63, v0')
    a('v_and_b32 v8, 15, v3')
    a('v_lshrrev_b32 v9, 4, v3')
    a('s_waitcnt lgkmcnt(0)')
    a('s_cmp_eq_u32 s23, 1')
    a('s_cselect_b32 s28, s12, s8')
    a('s_cselect_b32 s29, s13, s9')
    a(f's_cselect_b32 s30, {WS_VIMG}, {WS_AIMG}')
    a('s_cselect_b32 s31, 1.0, 0x3db8aa3b')
    a(f's_cbranch_scc1 {name}_stV')
    a('v_lshrrev_b32 v14, 5, v0')
    a('v_and_b32 v15, 31, v0')
    a('s_lshl_b32 s34, s26, 6')
    a('v_add_u32 v1, s34, v14')
    a('v_lshlrev_b32 v1, 13, v1')
    a('s_lshl_b32 s33, s25, 9')
    a('v_lshl_add_u32 v1, v15, 4, v1')
    a('v_add_u32 v1, s33, v1')
    for i in range(8):
        a(f'global_load_dwordx4 {vr(BOP + 4*i, 4)}, v1, s[10:11]')
        if i < 7: a('v_add_u32 v1, 0x10000, v1')
    a('v_mul_u32_u24 v2, 528, v14')
    a('v_lshl_add_u32 v2, v15, 4, v2')
    a('s_mov_b32 s35, 4224')
    a(f's_branch {name}_stD')
    a.label(f'{name}_stV')
    a('v_lshrrev_b32 v14, 3, v0')
    a('v_and_b32 v15, 7, v0')
    a('v_mul_u32_u24 v1, 896, v14')
    a('v_lshl_add_u32 v1, v15, 4, v1')
    a('s_mul_i32 s33, s25, 229376')
    a('s_lshl_b32 s34, s26, 7')
    a('s_add_u32 s33, s33, s34')
    a('v_add_u32 v1, s33, v1')
    for i in range(8):
        a(f'global_load_dwordx4 {vr(BOP + 4*i, 4)}, v1, s[14:15]')
        if i < 7: a('v_add_u32 v1, 28672, v1')
    a('v_mul_u32_u24 v2, 144, v14')
    a('v_lshl_add_u32 v2, v15, 4, v2')
    a('s_mov_b32 s35, 4608')
    a.label(f'{name}_stD')
    LA = 0xA000
    a('s_add_u32 s36, s22, s26')
    a('s_cmp_ge_u32 s36, 7')
    a('s_cselect_b32 s32, 7, 0')
    a('s_sub_u32 s36, s36, s32')
    a('s_add_u32 s37, s36, 4')
    a('s_cmp_ge_u32 s37, 7')
    a('s_cselect_b32 s32, 7, 0')
    a('s_sub_u32 s37, s37, s32')
    a('v_lshlrev_b32 v10, 13, v9')
    a('v_lshl_add_u32 v10, v8, 4, v10')
    a('s_lshl_b32 s33, s25, 9')
    a('v_add_u32 v10, s33, v10')
    a('s_lshl_b32 s32, s36, 19')
    a('s_add_u32 s16, s28, s32')
    a('s_addc_u32 s17, s29, 0')
    a('s_lshl_b32 s32, s37, 19')
    a('s_add_u32 s18, s28, s32')
    a('s_addc_u32 s19, s29, 0')
    def areg(sl, hh, i): return (vr if sl == 0 else ar)((AOP if sl == 0 else 0) + 64*hh + 4*i, 4)
    def aload_ops(sl):
        ops = []
        for qd in range(4):
            ops.append([f's_add_u32 s32, s22, {qd}', 's_and_b32 s32, s32, 3', 's_lshl_b32 s32, s32, 17', 'v_add_u32 v11, s32, v10'])
            for i4 in range(4):
                for hh in range(2):
                    ops.append([f'global_load_dwordx4 {areg(sl, hh, 4*qd + i4)}, v11, s[{16+2*sl}:{17+2*sl}] offset:{256*hh}'])
                if i4 < 3: ops.append(['v_add_u32 v11, 0x8000, v11'])
        return ops
    a('s_cmp_eq_u32 s22, 3')
    a(f's_cbranch_scc1 {name}_skA')
    for l in aload_ops(0):
        for o in l: a(o)
    a(f's_branch {name}_skAd')
    a.label(f'{name}_skA')
    a('s_waitcnt vmcnt(0)')
    a.label(f'{name}_skAd')
    for i in range(8):
        a(f's_waitcnt vmcnt({32 + 7 - i})')
        a(f'ds_write_b128 v2, {vr(BOP + 4*i, 4)}')
        if i < 7: a('v_add_u32 v2, s35, v2')
    a('s_mul_i32 s32, s22, 17408')
    a(f's_add_u32 s32, s32, {LA}')
    a('v_mul_u32_u24 v12, 272, v9')
    a('v_lshl_add_u32 v12, v8, 4, v12')
    a('v_add_u32 v12, s32, v12')
    a('v_lshrrev_b32 v13, 3, v8')
    a('v_lshlrev_b32 v13, 4, v13')
    a('v_bfe_u32 v11, v8, 2, 1')
    a('v_lshl_add_u32 v13, v11, 2, v13')
    a('v_and_b32 v11, 3, v8')
    a('v_add_u32 v13, v13, v11')
    a('v_mul_u32_u24 v13, 272, v13')
    a('v_lshl_add_u32 v13, v9, 4, v13')
    a('v_add_u32 v13, s32, v13')
    a('s_waitcnt lgkmcnt(0)')
    a('s_barrier')
    stamp(a, 3)
    a('s_mov_b32 s40, 1000000')
    get_tag(a, name, v=5)
    a(f's_lshl_b32 s38, {job}, 2')
    a('s_add_u32 s38, s38, s22')
    a('s_lshl_b32 s38, s38, 2')
    a(f's_add_u32 s38, s38, {WS_FLG + F_IMG0}')
    a('s_cmp_lg_u32 s22, 3')
    a(f's_cbranch_scc1 {name}_nx')
    set_flag(a, 's38', vt=5)
    a(f's_cmp_ge_u32 {unit}, 128')
    a(f's_cbranch_scc1 {name}_nx2')
    a('v_mov_b32 v251, v10'); a('v_mov_b32 v252, v12'); a('v_mov_b32 v253, v13')
    a('s_mov_b64 s[44:45], s[16:17]'); a('s_mov_b64 s[46:47], s[18:19]'); a('s_mov_b32 s48, s25'); a('s_mov_b32 s49, s26')
    a(f's_mov_b32 s34, {0xA000 + 3*17408}')
    gen_xprep(a, name, unit, 's34')
    a('v_mov_b32 v10, v251'); a('v_mov_b32 v12, v252'); a('v_mov_b32 v13, v253')
    a('s_mov_b64 s[16:17], s[44:45]'); a('s_mov_b64 s[18:19], s[46:47]'); a('s_mov_b32 s25, s48'); a('s_mov_b32 s26, s49')
    a.label(f'{name}_nx2')
    for l in aload_ops(0):
        for o in l: a(o)
    a.label(f'{name}_nx')
    a('s_mul_i32 s33, s25, 28')
    a('s_lshl_b32 s34, s26, 2')
    a('s_add_u32 s33, s33, s34')
    a('s_mul_i32 s33, s33, 14')
    a('s_lshl_b32 s33, s33, 10')
    a('s_add_u32 s33, s33, s30')
    a('v_lshlrev_b32 v1, 4, v3')
    a('v_add_u32 v1, s33, v1')
    a('s_lshl_b32 s34, s37, 11')
    a('v_add_u32 v15, s34, v1')
    a('s_lshl_b32 s34, s36, 11')
    a('v_add_u32 v1, s34, v1')
    def epi():
        a('v_mov_b32 v4, v1')
        for jn in range(4):
            for u in range(2):
                X = ACC + 16*(2*u) + 4*jn; Y = ACC + 16*(2*u+1) + 4*jn
                for r in range(0, 4, 2):
                    a(f'v_pk_mul_f32 {vr(X+r,2)}, {vr(X+r,2)}, s[42:43]')
                    a(f'v_pk_mul_f32 {vr(Y+r,2)}, {vr(Y+r,2)}, s[42:43]')
                o = 240 + 4*((2*jn+u) % 2)
                a(f'v_cvt_pk_bf16_f32 v{o}, v{X}, v{X+1}')
                a(f'v_cvt_pk_bf16_f32 v{o+1}, v{Y}, v{Y+1}')
                a(f'v_cvt_pk_bf16_f32 v{o+2}, v{X+2}, v{X+3}')
                a(f'v_cvt_pk_bf16_f32 v{o+3}, v{Y+2}, v{Y+3}')
                a(f'global_store_dwordx4 v4, {vr(o,4)}, s[4:5] offset:{1024*u} sc1')
            if jn < 3: a(f'v_add_u32 v4, {TILE_B}, v4')
    a('s_mov_b32 s42, s31'); a('s_mov_b32 s43, s31')
    a('v_mul_u32_u24 v2, 528, v8')
    a('v_lshl_add_u32 v2, v9, 4, v2')
    a('v_lshrrev_b32 v5, 2, v8')
    a('v_lshl_add_u32 v5, v9, 3, v5')
    a('v_mul_u32_u24 v5, 144, v5')
    a('v_and_b32 v14, 3, v8')
    a('v_lshl_add_u32 v5, v14, 3, v5')
    a('s_cmp_eq_u32 s23, 1')
    a('s_cselect_b64 vcc, -1, 0')
    a('v_cndmask_b32 v2, v2, v5, vcc')
    a('s_movk_i32 s35, 256')
    a(f's_cselect_b32 s35, {4*4608}, s35')
    a('v_mov_b32 v7, v10')
    a('s_mov_b32 s41, 0')
    OP = AOP
    side = aload_ops(1)
    a.label(f'{name}_ul')
    for un in range(4):
        sl, hh = un // 2, un % 2
        if un < 3:
            a(f's_cmp_lg_u32 s41, {un}')
            a(f's_cbranch_scc1 {name}_un{un+1}')
        if hh == 0:
            a('s_waitcnt vmcnt(8)' if sl else 's_waitcnt vmcnt(0)')
            for r in range(0, 64, 2): a(f'v_pk_mul_f32 {vr(ACC+r,2)}, {vr(ACC+r,2)}, 0') if False else None
        for qd in range(4):
            a(f's_add_u32 s32, s22, {qd}'); a('s_and_b32 s32, s32, 3'); a('s_mul_i32 s32, s32, 4352'); a('v_add_u32 v14, s32, v12')
            for i4 in range(4):
                a(f'ds_write_b128 v14, {areg(sl, hh, 4*qd + i4)} offset:{1088*i4}')
        if un == 0:
            for qd in range(4):
                a(f's_add_u32 s32, s22, {qd}'); a('s_and_b32 s32, s32, 3'); a('s_lshl_b32 s32, s32, 17'); a(f'v_add_u32 v{(5,6,7,11)[qd]}, s32, v10')
        if un == 2: set_flag(a, 's38', vt=5)
        if un < 3:
            a(f's_branch {name}_und')
            a.label(f'{name}_un{un+1}')
    a.label(f'{name}_und')
    a('s_bitcmp1_b32 s41, 0')
    a(f's_cbranch_scc1 {name}_nz')
    for r in range(64): a(f'v_mov_b32 v{ACC+r}, 0')
    a.label(f'{name}_nz')
    a('s_waitcnt lgkmcnt(0)')
    a('s_cmp_eq_u32 s23, 1')
    a(f's_cbranch_scc1 {name}_mV')
    for typ in 'AV':
        if typ == 'V': a.label(f'{name}_mV')
        def rd(kk, buf):
            for q in range(4):
                a(f'ds_read_b128 {vr(OP + 16*buf + 4*q, 4)}, v13 offset:{(32*(q//2) + 8*(q%2))*272 + 64*kk}')
            for jn in range(4):
                dst = BOP + 16*buf + 4*jn
                if typ == 'A': a(f'ds_read_b128 {vr(dst, 4)}, v2 offset:{8448*jn + 64*kk}')
                else:
                    a(f'ds_read_b64_tr_b16 {vr(dst, 2)}, v2 offset:{4608*kk + 32*jn}')
                    a(f'ds_read_b64_tr_b16 {vr(dst + 2, 2)}, v2 offset:{4608*kk + 576 + 32*jn}')
        nrd = 4 if typ == 'A' else 8
        a('s_cmp_eq_u32 s41, 0')
        rd(0, 0)
        for kk in range(4):
            if kk < 3:
                rd(kk+1, (kk+1) % 2)
                a(f's_waitcnt lgkmcnt({4 + nrd})')
            else:
                a('s_waitcnt lgkmcnt(0)')
            for q in range(4):
                for jn in range(4):
                    acc = vr(ACC + 16*q + 4*jn, 4)
                    a(f'v_mfma_f32_16x16x32_bf16 {acc}, {vr(OP + 16*(kk%2) + 4*q, 4)}, {vr(BOP + 16*(kk%2) + 4*jn, 4)}, {acc}')
                ls = a.newlabel('sk')
                a(f's_cbranch_scc0 {ls}')
                va = (5,6,7,11)[kk]
                for hh in range(2): a(f'global_load_dwordx4 {areg(1, hh, 4*kk + q)}, v{va}, s[18:19] offset:{256*hh}')
                a(f'v_add_u32 v{va}, 0x8000, v{va}')
                a.label(ls)
        if typ == 'A': a(f's_branch {name}_mD')
    a.label(f'{name}_mD')
    a('s_add_u32 s41, s41, 1')
    a('v_add_u32 v2, s35, v2')
    a('s_bitcmp1_b32 s41, 0')
    a(f's_cbranch_scc1 {name}_ul')
    epi()
    a('s_lshl_b32 s32, s35, 1')
    a('v_subrev_u32 v2, s32, v2')
    a('v_mov_b32 v1, v15')
    a('s_cmp_eq_u32 s22, 3')
    a(f's_cbranch_scc1 {name}_jd')
    a('s_cmp_lt_u32 s41, 4')
    a(f's_cbranch_scc1 {name}_ul')
    a.label(f'{name}_jd')
    stamp(a, 1)
    if IMGST == '':
        a('buffer_wbl2 sc1'); a('s_waitcnt vmcnt(0)')
    a(f's_lshl_b32 s33, {job}, 2')
    a('s_add_u32 s33, s33, s22')
    a('s_lshl_b32 s33, s33, 2')
    a(f's_add_u32 s33, s33, {WS_FLG + F_IMG}')
    set_flag(a, 's33')
    stamp(a, 2)

def gen_xprep(a, name, unit, lds_base):
    a(f's_load_dwordx2 s[16:17], s[0:1], {KA_X}')
    a(f's_load_dwordx2 s[18:19], s[0:1], {KA_WR}')
    a(f's_load_dwordx2 s[12:13], s[0:1], {KA_GW}')
    a('v_lshlrev_b32 v1, 4, v3')
    a(f's_mul_i32 s25, {unit}, 14336')
    a('v_add_u32 v2, s25, v1')
    a('v_add_u32 v4, 8192, v2')
    a('v_min_u32 v5, 880, v1')
    a('s_waitcnt lgkmcnt(0)')
    for i in range(14):
        a(f'global_load_dwordx4 {vr(16+4*i,4)}, v{2 if i < 4 or (i < 8) else 4}, s[16:17] offset:{1024*i if i < 4 else (1024*(i-8) if i >= 8 else 0)}' if (i < 4 or 8 <= i < 12) else
          f'global_load_dwordx4 {vr(16+4*i,4)}, v{4 if i < 8 else 6}, s[16:17] offset:{1024*(i-8) if i < 8 else 1024*(i-12)}')
        if i == 3: a('v_add_u32 v6, 4096, v4')
    a('global_load_dwordx4 v[72:75], v5, s[18:19]')
    a('global_load_dwordx4 v[76:79], v5, s[12:13]')
    for i in range(14):
        a(f'v_add_u32 v10, {64*i}, v3')
        a('v_mul_u32_u24 v11, 1171, v10')
        a('v_lshrrev_b32 v11, 16, v11')
        a('v_add_lshl_u32 v10, v10, v11, 4')
        a(f'v_add_u32 v10, {lds_base}, v10')
        a(f's_waitcnt vmcnt({15 - i})')
        a(f'ds_write_b128 v10, {vr(16+4*i,4)}')
    a(f'v_add_u32 v10, {lds_base}, v5')
    a('s_waitcnt vmcnt(0)')
    a(f'ds_write_b128 v10, v[72:75] offset:{16*912}')
    a(f'ds_write_b128 v10, v[76:79] offset:{17*912}')
    a('v_lshrrev_b32 v11, 1, v9')
    a('v_lshlrev_b32 v11, 5, v11')
    a('v_and_b32 v12, 1, v9')
    a('v_lshl_add_u32 v11, v12, 3, v11')
    a(f'v_add_u32 v11, {lds_base}, v11')
    a('v_mul_u32_u24 v12, 912, v8')
    a('v_add_u32 v13, v12, v11')
    a('v_lshl_add_u32 v12, v9, 3, v12')
    a(f'v_add_u32 v12, {lds_base}, v12')
    a(f's_add_u32 s25, s25, {WS_XP}')
    a('v_add_u32 v2, s25, v1')
    a(f's_lshr_b32 s26, {unit}, 1')
    a('s_lshl_b32 s26, s26, 15')
    a(f's_and_b32 s27, {unit}, 1')
    a('s_lshl_b32 s27, s27, 12')
    a('s_add_u32 s26, s26, s27')
    a(f's_add_u32 s26, s26, {WS_XK}')
    a('v_add_u32 v4, s26, v1')
    a('s_waitcnt lgkmcnt(0)')
    for w in range(4):
        for k in range(4):
            o = (224*w + 64*k) // 8
            r = 80 + 16*w + 4*k
            if k < 3: a(f'ds_read2_b64 {vr(r,4)}, v12 offset0:{o} offset1:{o+4}')
            else:
                a(f'ds_read_b64 {vr(r,2)}, v12 offset:{8*o}')
                a(f'v_mov_b32 v{r+2}, 0'); a(f'v_mov_b32 v{r+3}, 0')
    a('s_waitcnt lgkmcnt(0)')
    for w in range(4):
        for k in range(4):
            a(f'global_store_dwordx4 v4, {vr(80+16*w+4*k,4)}, s[4:5] offset:{1024*k} sc1')
        if w < 3: a('v_add_u32 v4, 8192, v4')
    a('v_mov_b32 v14, 0')
    a('v_mov_b32 v15, 0')
    a(f'v_add_u32 v10, {16*912}, v11')
    a('s_mov_b32 s27, 0')
    a.label(f'{name}_xb')
    x = 16
    a('ds_read2_b64 v[16:19], v13 offset0:0 offset1:2')
    a('ds_read2_b64 v[144:147], v10 offset0:0 offset1:2')
    a('ds_read2_b64 v[148:151], v10 offset0:114 offset1:116')
    a('v_add_u32 v13, 64, v13')
    a('v_add_u32 v10, 64, v10')
    a('s_waitcnt lgkmcnt(2)')
    for i in range(4):
        a(f'v_lshlrev_b32 v{152+2*i}, 16, v{x+i}')
        a(f'v_and_b32 v{153+2*i}, 0xffff0000, v{x+i}')
    a(f'v_swap_b32 v{x+1}, v{x+2}')
    a(f'global_store_dwordx4 v2, {vr(x,4)}, s[4:5] sc1')
    a('v_add_u32 v2, 1024, v2')
    a('s_waitcnt lgkmcnt(0)')
    for i in range(4):
        a(f'v_lshlrev_b32 v160, 16, v{144+i}')
        a(f'v_and_b32 v161, 0xffff0000, v{144+i}')
        a(f'v_fmac_f32 v14, v{152+2*i}, v160')
        a(f'v_fmac_f32 v14, v{153+2*i}, v161')
        a(f'v_lshlrev_b32 v160, 16, v{148+i}')
        a(f'v_and_b32 v161, 0xffff0000, v{148+i}')
        a(f'v_mul_f32 v160, v{152+2*i}, v160')
        a(f'v_mul_f32 v161, v{153+2*i}, v161')
        a('v_cvt_pk_bf16_f32 v160, v160, v161')
        a('v_and_b32 v161, 0xffff0000, v160')
        a('v_lshlrev_b32 v160, 16, v160')
        a('v_add_f32 v15, v15, v160')
        a('v_add_f32 v15, v15, v161')
    a('s_add_u32 s27, s27, 1')
    a('s_cmp_lt_u32 s27, 14')
    a(f's_cbranch_scc1 {name}_xb')
    for sw in ('v_permlane16_swap_b32', 'v_permlane32_swap_b32'):
        a('v_mov_b32 v160, v14'); a('v_mov_b32 v161, v15')
        a(f'{sw} v14, v160'); a(f'{sw} v15, v161')
        a('v_add_f32 v14, v14, v160'); a('v_add_f32 v15, v15, v161')
    a('v_cvt_pk_bf16_f32 v98, v14, v15')
    a('v_lshlrev_b32 v99, 16, v98')
    a('v_ashrrev_i32 v100, 31, v99')
    a('v_or_b32 v100, 0x80000000, v100')
    a('v_xor_b32 v99, v99, v100')
    a('v_and_b32 v99, 0xffff0000, v99')
    a(f's_lshl_b32 s26, {unit}, 4')
    a('v_add_u32 v102, s26, v8')
    a('v_sub_u32 v103, 2047, v102')
    a('v_or_b32 v99, v103, v99')
    a('v_and_b32 v100, 0xffff0000, v98')
    a('v_mul_f32 v100, 0xbfb8aa3b, v100')
    a('v_exp_f32 v100, v100')
    a('v_add_f32 v100, 1.0, v100')
    a('v_rcp_f32 v100, v100')
    a('v_cvt_pk_bf16_f32 v100, v100, v100')
    a('v_and_b32 v100, 0xffff0000, v100')
    a('v_sub_f32 v101, 1.0, v100')
    a('v_cvt_pk_bf16_f32 v101, v101, v101')
    a('v_and_b32 v101, 0xffff0000, v101')
    a('v_lshlrev_b32 v103, 3, v102')
    a(f'v_add_u32 v103, {WS_G}, v103')
    a('v_lshlrev_b32 v102, 2, v102')
    a(f'v_add_u32 v102, {WS_KEY}, v102')
    a('s_mov_b64 exec, 0xffff')
    a('global_store_dword v102, v99, s[4:5] sc1')
    a('global_store_dwordx2 v103, v[100:101], s[4:5] sc1')
    a('s_mov_b64 exec, -1')
    a(f's_lshl_b32 s26, {unit}, 2')
    a(f's_add_u32 s26, s26, {WS_FLG + F_XP}')
    set_flag(a, 's26')

def gen_chain_prep(a, name, role='s24'):
    a(f's_load_dwordx2 s[14:15], s[0:1], {KA_MEM0}')
    a('v_and_b32 v3, 63, v0')
    for r in range(4): a(f'v_mov_b32 v{4+r}, -1')
    a(f's_lshl_b32 s25, {role}, 12')
    a(f's_add_u32 s25, s25, {WS_RING}')
    a('v_lshlrev_b32 v1, 4, v0')
    a('v_add_u32 v1, s25, v1')
    for i in range(6):
        if i == 5:
            a(f's_cmp_ge_u32 {role}, 20')
            a(f's_cbranch_scc1 {name}_rf')
        a('global_store_dwordx4 v1, v[4:7], s[4:5] sc1')
        if i < 5: a('v_add_u32 v1, 0x20000, v1')
    a.label(f'{name}_rf')
    a(f's_lshl_b32 s25, {role}, 12')
    a(f's_add_u32 s25, s25, {WS_MEM2 + 7168}')
    a('v_lshlrev_b32 v1, 4, v0')
    a('v_add_u32 v1, s25, v1')
    for i in range(4):
        if i == 3:
            a(f's_cmp_ge_u32 {role}, 15')
            a(f's_cbranch_scc1 {name}_mf')
        a('global_store_dwordx4 v1, v[4:7], s[4:5] sc1')
        if i < 3: a('v_add_u32 v1, 0x20000, v1')
    a.label(f'{name}_mf')
    a('s_waitcnt lgkmcnt(0)')
    a(f's_cmp_lg_u32 {role}, 0')
    a(f's_cbranch_scc1 {name}_nm0')
    a('v_bfe_u32 v8, v0, 1, 3')
    a('v_mul_u32_u24 v8, 896, v8')
    a('v_lshrrev_b32 v9, 4, v0')
    a('v_lshl_add_u32 v8, v9, 5, v8')
    a('v_and_b32 v9, 1, v0')
    a('v_lshl_add_u32 v8, v9, 4, v8')
    a('v_lshlrev_b32 v9, 4, v0')
    a(f'v_add_u32 v9, {WS_MEM2}, v9')
    a('v_add_u32 v10, 4096, v9')
    a('global_load_dwordx4 v[12:15], v8, s[14:15]')
    a('s_waitcnt vmcnt(0)')
    a('global_store_dwordx4 v9, v[12:15], s[4:5] sc1')
    a('s_cmp_eq_u32 s22, 3')
    a(f's_cbranch_scc1 {name}_nm0')
    a('global_load_dwordx4 v[16:19], v8, s[14:15] offset:512')
    a('s_waitcnt vmcnt(0)')
    a('global_store_dwordx4 v10, v[16:19], s[4:5] sc1')
    a('s_nop 1')
    a.label(f'{name}_nm0')
    get_tag(a, name)
    a(f's_lshl_b32 s36, {role}, 2')
    a('s_add_u32 s36, s36, s22')
    a('s_lshl_b32 s36, s36, 2')
    a(f's_add_u32 s36, s36, {WS_FLG + F_XP + 512}')
    set_flag(a, 's36')
    wait_arrivals(a, name)
    a('v_readfirstlane_b32 s21, v8')
```

```python
from asmlib import *
from layout import *
from k1 import stamp, stamp_end, stamp_init
from prep import wait_flags, set_flag, WgWait, wait_prog
import os

WS_IDX = WS_YP + 28*1792

def gen_argmax(a, ws='s[4:5]'):
    a('v_lshlrev_b32 v1, 5, v0')
    a(f'v_add_u32 v1, {WS_KEY}, v1')
    a(f'global_load_dwordx4 v[4:7], v1, {ws} sc1')
    a(f'global_load_dwordx4 v[8:11], v1, {ws} offset:16 sc1')
    a('s_waitcnt vmcnt(0)')
    a('v_max3_u32 v4, v4, v5, v6')
    a('v_max3_u32 v8, v8, v9, v10')
    a('v_max3_u32 v4, v4, v7, v11')
    a('v_max_u32 v4, v4, v8')
    for ror in (8, 4, 2, 1):
        a(f'v_max_u32_dpp v4, v4, v4 row_ror:{ror} row_mask:0xf bank_mask:0xf')
    for sw in ('v_permlane16_swap_b32', 'v_permlane32_swap_b32'):
        a('v_mov_b32 v5, v4')
        a(f'{sw} v4, v5')
        a('v_max_u32 v4, v4, v5')
    a('v_lshrrev_b32 v2, 6, v0')
    a('v_lshlrev_b32 v2, 2, v2')
    a('s_barrier')
    a('ds_write_b32 v2, v4')
    a('s_waitcnt lgkmcnt(0)')
    a('s_barrier')
    a('v_mov_b32 v2, 0')
    a('ds_read_b128 v[4:7], v2')
    a('s_waitcnt lgkmcnt(0)')
    a('v_max3_u32 v4, v4, v5, v6')
    a('v_max_u32 v4, v4, v7')
    a('v_readfirstlane_b32 s26, v4')
    a('s_and_b32 s27, s26, 0x7ff')
    a('s_sub_u32 s27, 2047, s27')
    a('v_and_b32 v5, 0xffff0000, v4')
    a('v_ashrrev_i32 v6, 31, v5')
    a('v_not_b32 v6, v6')
    a('v_or_b32 v6, 0x80000000, v6')
    a('v_xor_b32 v5, v5, v6')
    a('v_and_b32 v5, 0xffff0000, v5')
    a('v_mul_f32 v5, 0xbfb8aa3b, v5')
    a('v_exp_f32 v5, v5')
    a('v_add_f32 v5, 1.0, v5')
    a('v_rcp_f32 v5, v5')
    a('v_cvt_pk_bf16_f32 v5, v5, v5')
    a('v_and_b32 v5, 0xffff0000, v5')
    a('v_readfirstlane_b32 s41, v5')
    a('s_barrier')

def gen_ffn(a, name, wg='s24', ws='s[4:5]', st=''):
    a(f's_load_dwordx2 s[8:9], s[0:1], {KA_X}')
    a(f's_load_dwordx4 s[12:15], s[0:1], {KA_WU}')
    a(f's_load_dwordx2 s[10:11], s[0:1], {KA_WG}')
    gen_argmax(a, ws)
    a('v_and_b32 v1, 7, v0')
    a('v_lshrrev_b32 v2, 3, v0')
    a('v_mul_u32_u24 v3, 28, v2')
    a('s_mul_i32 s28, s27, 896')
    a('v_add_u32 v3, s28, v3')
    for i in range(7): a(f'global_load_dword v{8+i}, v3, s[8:9] offset:{4*i}')
    a(f'v_mul_u32_u24 v4, {14*3584}, v2')
    a('v_lshl_add_u32 v4, v1, 4, v4')
    a(f's_lshl_b32 s28, {wg}, 7')
    a('v_add_u32 v4, s28, v4')
    WG_, WU_ = 64, 120
    for d in range(14):
        a(f'global_load_dwordx4 {vr(WG_+4*d,4)}, v4, s[10:11]')
        a(f'global_load_dwordx4 {vr(WU_+4*d,4)}, v4, s[12:13]')
        if d < 13: a('v_add_u32 v4, 3584, v4')
    for i in range(16): a(f'v_mov_b32 v{32+i}, 0')
    a('s_waitcnt vmcnt(28)')
    for i in range(7):
        a(f'v_lshlrev_b32 v{16+2*i}, 16, v{8+i}')
        a(f'v_and_b32 v{17+2*i}, 0xffff0000, v{8+i}')
    for d in range(14):
        a(f's_waitcnt vmcnt({26-2*d})')
        for base, acc in ((WG_, 32), (WU_, 40)):
            for i in range(4):
                a(f'v_lshlrev_b32 v48, 16, v{base+4*d+i}')
                a(f'v_and_b32 v49, 0xffff0000, v{base+4*d+i}')
                a(f'v_fmac_f32 v{acc+2*i}, v48, v{16+d}')
                a(f'v_fmac_f32 v{acc+2*i+1}, v49, v{16+d}')
    a('v_lshlrev_b32 v4, 9, v2')
    a('v_lshl_add_u32 v4, v1, 5, v4')
    a('ds_write_b128 v4, v[32:35]')
    a('ds_write_b128 v4, v[36:39] offset:16')
    a('ds_write_b128 v4, v[40:43] offset:256')
    a('ds_write_b128 v4, v[44:47] offset:272')
    a('v_mul_u32_u24 v5, 1171, v0')
    a('v_lshrrev_b32 v5, 16, v5')
    a('v_mul_u32_u24 v6, 56, v5')
    a('v_sub_u32 v6, v0, v6')
    a('v_min_u32 v5, 3, v5')
    a(f'v_mul_u32_u24 v7, {16*896}, v5')
    a('v_lshl_add_u32 v7, v6, 4, v7')
    a(f's_mul_i32 s28, {wg}, {64*896}')
    a('v_add_u32 v7, s28, v7')
    for f in range(16):
        a(f'global_load_dwordx4 {vr(WG_+4*f,4)}, v7, s[14:15] offset:{(f%4)*896}')
        if f % 4 == 3 and f < 15: a('v_add_u32 v7, 3584, v7')
    a('s_waitcnt lgkmcnt(0)')
    a('s_barrier')
    a('v_lshlrev_b32 v4, 2, v0')
    a('v_and_b32 v4, 255, v4')
    a('v_mov_b32 v32, 0')
    a('v_mov_b32 v33, 0')
    for blk in range(4):
        for i in range(8):
            a(f'ds_read_b32 v{8+i}, v4 offset:{512*(8*blk+i)}')
            a(f'ds_read_b32 v{16+i}, v4 offset:{512*(8*blk+i)+256}')
        a('s_waitcnt lgkmcnt(0)')
        for i in range(8):
            a(f'v_add_f32 v32, v32, v{8+i}')
            a(f'v_add_f32 v33, v33, v{16+i}')
    a('v_cvt_pk_bf16_f32 v34, v32, v33')
    a('v_lshlrev_b32 v32, 16, v34')
    a('v_and_b32 v33, 0xffff0000, v34')
    a('v_mul_f32 v35, 0xbfb8aa3b, v32')
    a('v_exp_f32 v35, v35')
    a('v_add_f32 v35, 1.0, v35')
    a('v_rcp_f32 v35, v35')
    a('v_mul_f32 v35, v32, v35')
    a('v_cvt_pk_bf16_f32 v35, v35, v35')
    a('v_and_b32 v35, 0xffff0000, v35')
    a('v_mul_f32 v35, v35, v33')
    a('v_cvt_pk_bf16_f32 v35, v35, v35')
    a('v_and_b32 v35, 0xffff0000, v35')
    a('ds_write_b32 v4, v35 offset:16384')
    a('s_waitcnt lgkmcnt(0)')
    a('s_barrier')
    a('v_lshlrev_b32 v4, 6, v5')
    for i in range(4): a(f'ds_read_b128 {vr(8+4*i,4)}, v4 offset:{16384+16*i}')
    for i in range(8): a(f'v_mov_b32 v{32+i}, 0')
    a('s_waitcnt lgkmcnt(0)')
    for f in range(16):
        a(f's_waitcnt vmcnt({15-f})')
        for i in range(4):
            a(f'v_lshlrev_b32 v48, 16, v{WG_+4*f+i}')
            a(f'v_and_b32 v49, 0xffff0000, v{WG_+4*f+i}')
            a(f'v_fmac_f32 v{32+2*i}, v48, v{8+f}')
            a(f'v_fmac_f32 v{33+2*i}, v49, v{8+f}')
    a('v_mul_u32_u24 v4, 1792, v5')
    a('v_lshl_add_u32 v4, v6, 5, v4')
    a('v_cmp_gt_u32 vcc, 224, v0')
    a('s_and_saveexec_b64 s[28:29], vcc')
    a('ds_write_b128 v4, v[32:35]')
    a('ds_write_b128 v4, v[36:39] offset:16')
    a('s_mov_b64 exec, s[28:29]')
    a('s_waitcnt lgkmcnt(0)')
    a('s_barrier')
    a('v_lshlrev_b32 v4, 3, v0')
    a('v_min_u32 v4, 1784, v4')
    for i in range(4): a(f'ds_read_b64 {vr(8+2*i,2)}, v4 offset:{1792*i}')
    a('s_waitcnt lgkmcnt(0)')
    for j in range(2):
        a(f'v_add_f32 v{8+j}, v{8+j}, v{10+j}')
        a(f'v_add_f32 v{12+j}, v{12+j}, v{14+j}')
        a(f'v_add_f32 v{8+j}, v{8+j}, v{12+j}')
    a(f's_mul_i32 s28, {wg}, 1792')
    a(f's_add_u32 s28, s28, {WS_YP}')
    a('v_add_u32 v4, s28, v4')
    a(f'global_store_dwordx2 v4, v[8:9], {ws} {st}')
    a('s_waitcnt vmcnt(0)')
    a('s_barrier')
    a(f's_lshl_b32 s28, {wg}, 2')
    a(f's_add_u32 s28, s28, {WS_FLG + F_FFN}')
    set_flag(a, 's28', vt=5)

def gen_ugemm(a, name, setreg, wv, nseg, stride, ws='s[4:5]', st='', sig=False):
    X, ACC, O = 16, 128, 160
    a('v_and_b32 v3, 63, v0')
    a(f's_mul_i32 s30, {setreg}, 4682')
    a('s_lshr_b32 s30, s30, 16')
    a('s_mul_i32 s31, s30, 14')
    a(f's_sub_u32 s31, {setreg}, s31')
    if sig:
        a('s_mov_b32 s40, 1000000')
        a('s_mul_i32 s32, s30, 14')
        a('s_lshr_b32 s33, s31, 1')
        a('s_add_u32 s32, s32, s33')
        a('s_lshl_b32 s32, s32, 4')
        a(f's_add_u32 s32, s32, {WS_FLG + F_IMG + 112*16}')
        with WgWait(a):
            wait_flags(a, name, 's32', 4, lane='v3', va=4, sleep=10)
            a('s_add_u32 s32, s32, 112')
            wait_flags(a, name, 's32', 4, lane='v3', va=4, sleep=10)
            wait_flags(a, name, WS_FLG + F_XP, 128, lane='v3', va=4, sleep=20)
    stamp(a, 4)
    a('s_mul_i32 s32, s30, 56')
    a('s_lshl_b32 s33, s31, 1')
    a('s_add_u32 s32, s32, s33')
    a(f's_mul_i32 s32, s32, {TILE_B}')
    a(f's_add_u32 s32, s32, {WS_VIMG}')
    a('v_lshlrev_b32 v4, 4, v3')
    a('v_add_u32 v5, s32, v4')
    a('v_bfe_u32 v6, v3, 3, 1')
    a('v_mul_u32_u24 v6, 14336, v6')
    a('v_and_b32 v7, 7, v3')
    a('v_lshl_add_u32 v6, v7, 4, v6')
    a('v_lshrrev_b32 v7, 4, v3')
    a('v_lshl_add_u32 v6, v7, 8, v6')
    a(f's_mul_i32 s34, {wv}, {28*1024}')
    a(f's_add_u32 s34, s34, {WS_XP + 4096}')
    for q in range(2):
        a(f'v_add_u32 v{11+q}, s34, v6')
        a('s_add_u32 s34, s34, 7168')
    def xld(blk, tt):
        return f'global_load_dwordx4 {vr(X+8*blk+4*tt,4)}, v{11 + blk//7}, {ws} offset:{1024*(blk%7) - 4096 + 128*tt} sc1'
    for blk in range(14):
        for tt in range(2):
            a(xld(blk, tt))
    for sel in range(2):
        for ci in range(2):
            img = 2*ci + sel
            a(f'v_add_u32 v8, {(sel*28+ci)*TILE_B}, v5')
            for blk in range(14):
                if blk % 4 == 0 and blk: a('v_add_u32 v8, 4096, v8')
                a(f'global_load_dwordx4 {ar(56*img+4*blk,4)}, v8, {ws} offset:{1024*(blk%4)} sc1')
    a(f's_mul_i32 s35, {wv}, 28')
    a('s_add_u32 s35, s35, s33')
    a('s_lshl_b32 s35, s35, 3')
    a('s_add_u32 s35, s35, s30')
    a('s_lshl_b32 s35, s35, 11')
    a(f's_add_u32 s35, s35, {WS_U}')
    a('v_add_u32 v9, s35, v4')
    a('v_add_u32 v10, 16384, v9')
    if sig:
        a(f's_mul_i32 s38, {wv}, 14')
        a('s_add_u32 s38, s38, s31')
        a('s_lshl_b32 s38, s38, 3')
        a('s_add_u32 s38, s38, s30')
        a('s_lshl_b32 s38, s38, 2')
        a(f's_add_u32 s38, s38, {WS_FLG + F_U}')
        a(f's_lshl_b32 s39, {setreg}, 2')
        a(f's_add_u32 s39, s39, {wv}')
        a('s_lshl_b32 s39, s39, 7')
        a(f's_add_u32 s39, s39, {WS_FLG + F_DUMMY}')
        a('v_mov_b32 v5, s39')
        a('v_mov_b32 v6, s20')
    a('s_mov_b32 s36, 0')
    a('s_waitcnt vmcnt(0)')
    stamp(a, 5)
    if os.environ.get('UEXIT'): a('s_endpgm')
    a.label(f'{name}_uloop')
    if sig:
        NF = int(os.environ.get('UFREE', '2'))
        lp = a.newlabel('upace')
        a(f's_cmp_lt_u32 s36, {NF}')
        a(f's_cbranch_scc1 {lp}')
        a('s_lshl_b32 s39, s36, 2')
        a('s_sub_i32 s39, s39, 9')
        a('s_max_i32 s39, s39, 1')
        a('s_waitcnt vmcnt(0)')
        a('s_mov_b64 exec, 1')
        a(f'global_store_dword v5, v6, {ws} sc1')
        a('s_mov_b64 exec, -1')
        with WgWait(a): wait_prog(a, name, 's39', va=176, sleep=50)
        a.label(lp)
    a('s_add_u32 s36, s36, 1')
    a(f's_cmp_lt_u32 s36, {nseg}')
    a(f's_cselect_b32 s37, {stride*32*896}, 0')
    for q in range(2): a(f'v_add_u32 v{11+q}, s37, v{11+q}')
    for blk in range(14):
        for tt in range(2):
            a('s_waitcnt vmcnt(27)')
            x = vr(X+8*blk+4*tt, 4)
            for img in range(4):
                acc = vr(ACC + 16*tt + 4*img, 4)
                a(f'v_mfma_f32_16x16x32_bf16 {acc}, {x}, {ar(56*img+4*blk,4)}, {acc if blk else 0}')
            a(xld(blk, tt))
    if sig:
        a('s_waitcnt vmcnt(27)')
        a('s_mov_b64 exec, 1')
        a(f'global_store_dword v5, v6, {ws} sc1')
        a('v_mov_b32 v5, s38')
        a('s_mov_b64 exec, -1')
        a(f's_add_u32 s38, s38, {stride*448}')
    for ci in range(2):
        for tt in range(2):
            A = ACC + 8*ci + 4*tt; B = A + 16; o = O + 4*(2*ci+tt)
            a(f'v_cvt_pk_bf16_f32 v{o}, v{A}, v{A+1}')
            a(f'v_cvt_pk_bf16_f32 v{o+1}, v{B}, v{B+1}')
            a(f'v_cvt_pk_bf16_f32 v{o+2}, v{A+2}, v{A+3}')
            a(f'v_cvt_pk_bf16_f32 v{o+3}, v{B+2}, v{B+3}')
            a(f'global_store_dwordx4 v{9+ci}, {vr(o,4)}, {ws} offset:{1024*tt} {st}')
    if sig:
        lq = a.newlabel('uq')
        a('s_cmp_lg_u32 s36, 1')
        a(f's_cbranch_scc1 {lq}')
        a('s_waitcnt vmcnt(0)')
        a('s_mov_b64 exec, 1')
        a(f'global_store_dword v5, v6, {ws} sc1')
        a('s_mov_b64 exec, -1')
        stamp(a, 6)
        a.label(lq)
    a(f'v_add_u32 v9, {stride*28*16384}, v9')
    a(f'v_add_u32 v10, {stride*28*16384}, v10')
    a(f's_cmp_lt_u32 s36, {nseg}')
    a(f's_cbranch_scc1 {name}_uloop')
    if sig:
        a('s_waitcnt vmcnt(0)')
        a('s_mov_b64 exec, 1')
        a(f'global_store_dword v5, v6, {ws} sc1')
        a('s_mov_b64 exec, -1')

def gen_k2(a, name='ugemm_kernel'):
    a(f'.globl {name}\n.p2align 8\n.type {name},@function\n{name}:')
    a('s_cmp_ge_u32 s2, 252')
    a(f's_cbranch_scc1 {name}_end')
    a(f's_load_dwordx2 s[4:5], s[0:1], {KA_WS}')
    stamp_init(a)
    a('v_lshrrev_b32 v2, 6, v0')
    a('v_readfirstlane_b32 s22, v2')
    a('s_waitcnt lgkmcnt(0)')
    a('s_cmp_ge_u32 s2, 224')
    a(f's_cbranch_scc1 {name}_ffn')
    a('s_and_b32 s24, s2, 7')
    a('s_mul_i32 s24, s24, 14')
    a('s_lshr_b32 s25, s2, 3')
    a('s_cmp_ge_u32 s25, 14')
    a('s_cselect_b32 s26, 14, 0')
    a('s_cselect_b32 s27, 4, 0')
    a('s_sub_u32 s25, s25, s26')
    a('s_add_u32 s24, s24, s25')
    a('s_add_u32 s27, s27, s22')
    gen_ugemm(a, name, 's24', 's27', 8, 8)
    stamp_end(a, 1)
    a('s_endpgm')
    a.label(f'{name}_ffn')
    a('s_sub_u32 s24, s2, 224')
    gen_ffn(a, name)
    stamp_end(a, 1)
    a.label(f'{name}_end')
    a('s_endpgm')
    return dict(name=name, vgpr=180, agpr=224, sgpr=80, grid=252, block=256, lds=20480)
```

```python
from asmlib import *
from layout import *
from k1 import stamp, stamp_end, stamp_init
import os
from prep import wait_flags, gen_chain_prep, set_flag, WgWait
ENV = lambda k, d: int(os.environ.get(k, d))

L_MEM, L_T, L_S, L_MISC, L_STASH, L_K1, L_U = 0, 0xC000, 0x6000, 0x9400, 0x9800, 0xA000, 0x10000
L_MS = 0x2000
LDS_BYTES = 0x28000
L_MX, L_W8 = 0x2000, 0x4000
L_UV = 0x18000
MA, ACC, SACC, TB, TBZ, K0, KM0, K2, CV, IDX, KM1 = 8, 36, 64, 76, 84, 88, 96, 100, 108, 112, 116
PA, MB, UB, PACC = 8, 48, 64, 96
LOG2E = 0x3fb8aa3b
A_FST, A_FL, A_TW, A_TR, A_MK, A_SR, A_PST, A_SW = 0, 2, 5, 6, 7, 113, 114, 115
A_XK = 87
A_MST = 114
A_CP = 113
A_UR, A_ML, A_MEMST, A_PERM = 100, 101, 102, 103
FR = (104, 105, 106)
TMP = 119
XKF = os.environ.get('XKF', 'sc1')
TMP2 = 99
NREP = ENV('NREP', 4)
RMASK = (1 << NREP) - 1
A_DM = 0

def cstamp(a, i, step=30):
    if not STAMPS or ENV('NOCST', 0): return
    l = a.newlabel('cst')
    a(f's_cmp_lg_u32 s36, {step}')
    a(f's_cbranch_scc1 {l}')
    a(f's_mem{"real" if ENV("RT",0) else ""}time s[{60+2*i}:{61+2*i}]')
    a('s_waitcnt lgkmcnt(0)')
    a.label(l)

def W(j, t):
    g = 7*j + t
    return ar(8*g, 8) if g < 32 else vr(120 + 8*(g-32), 8)

def max_ops(regs, tmp, first=True):
    r = list(regs); out = []
    while r:
        if first:
            if len(r) >= 3: out.append(f'v_max3_u32 v{tmp}, v{r[0]}, v{r[1]}, v{r[2]}'); r = r[3:]
            else: out.append(f'v_max_u32 v{tmp}, v{r[0]}, v{r[1]}'); r = r[2:]
            first = False
        elif len(r) >= 2: out.append(f'v_max3_u32 v{tmp}, v{tmp}, v{r[0]}, v{r[1]}'); r = r[2:]
        else: out.append(f'v_max_u32 v{tmp}, v{tmp}, v{r[0]}'); r = r[1:]
    return out

class Cnt:
    def __init__(self): self.n = 0; self.last = {}
    def reset(self): self.n = 0; self.last = {}
    def issue(self, tag): self.n += 1; self.last[tag] = self.n
    def need(self, tag): return self.n - self.last[tag]

def sadd64(a, lo, imm):
    a(f's_add_u32 s{lo}, s{lo}, {imm}')
    a(f's_addc_u32 s{lo+1}, s{lo+1}, 0')

def flag_ld(r): return f'global_load_dword v{r}, v{A_FL}, s[46:47] sc1'

def flag_poll(a, name, FR=FR, gap=7):
    L = a.newlabel(name + '_fp'); D = a.newlabel(name + '_fd')
    n = len(FR)
    for r in FR[:n-1]:
        a(flag_ld(r))
        a(f's_nop {gap}')
    a.label(L)
    for j in range(n):
        a(flag_ld(FR[(j+n-1) % n]))
        a(f's_waitcnt vmcnt({n-1})')
        a(f'v_cmp_eq_u32 vcc, -1, v{FR[j]}')
        a(f's_cbranch_vccz {D}')
    a('s_sub_u32 s40, s40, 1')
    a(f's_cbranch_scc0 {L}')
    a('s_mov_b32 s40, 0')
    a.label(D)

def gen_chain(a, name, role='s24', merged=False):
    ws = 's[4:5]'
    NEG = 104
    a('s_mov_b32 s40, 2000000')
    if merged:
        gen_chain_prep(a, name, role)
        if ENV('BISECT', 0) == 1: a(f's_branch {name}_done')
        a('v_and_b32 v0, 63, v0')
        stamp(a, 1)
    a('v_and_b32 v0, 63, v0')
    a('v_lshlrev_b32 v1, 4, v0')
    a(f's_and_b32 s25, {role}, 15')
    a(f's_lshr_b32 s26, {role}, 4')
    a('s_lshl_b32 s29, s22, 1')
    a(f's_cmp_ge_u32 {role}, 30')
    a(f's_cbranch_scc1 {name}_spare')
    a('s_mul_i32 s30, s22, 7')
    a('s_lshr_b32 s30, s30, 2')
    a('s_lshl_b32 s30, s30, 2')
    a('v_min_u32 v5, 11, v0')
    a('s_cmp_eq_u32 s22, 0')
    a('s_cselect_b32 s31, 7, 27')
    a('v_add_u32 v5, s30, v5')
    a('v_min_u32 v5, s31, v5')
    a(f's_mul_i32 s30, {role}, 28')
    a('v_add_u32 v5, s30, v5')
    a('v_bfe_u32 v6, v0, 2, 2')
    a('v_mul_u32_u24 v6, 28, v6')
    a('v_and_b32 v7, 3, v0')
    a('v_add_u32 v6, v6, v7')
    a('s_lshr_b32 s37, s25, 1')
    a('s_lshl_b32 s30, s37, 2')
    a('s_mul_i32 s31, s22, 112')
    a('s_add_u32 s30, s30, s31')
    a('s_add_u32 s30, s30, 448')
    a('v_add_u32 v6, s30, v6')
    a('s_cmp_eq_u32 s26, 1')
    a('s_cselect_b64 vcc, -1, 0')
    a('v_cndmask_b32 v5, v5, v6, vcc')
    if merged:
        wait_flags(a, name, WS_FLG + F_IMG0, 64, lane='v5', va=6, sleep=3)
        stamp(a, 2)
    a('s_cmp_eq_u32 s26, 1')
    a(f's_cbranch_scc1 {name}_vw')
    a('s_mul_i32 s27, s25, 28')
    a('s_mul_i32 s28, s22, 7')
    a('s_add_u32 s27, s27, s28')
    a(f's_mul_i32 s27, s27, {TILE_B}')
    def wloads(w, batch):
        for j in range(7):
            grp = (7*w + j) // 4
            ts = [(grp + i) % 7 for i in (range(3) if batch == 0 else range(3, 7))]
            for t in sorted(ts):
                g = 7*j + t
                off = j*TILE_B + t*2048
                a(f's_add_u32 s30, s27, {off}')
                a('v_add_u32 v2, s30, v1')
                for u in range(2):
                    dst = ar(8*g+4*u, 4) if g < 32 else vr(120 + 8*(g-32) + 4*u, 4)
                    a(f'global_load_dwordx4 {dst}, v2, {ws} offset:{1024*u} sc1')
    for batch in range(2):
        for w in range(4):
            if w < 3:
                a(f's_cmp_lg_u32 s22, {w}')
                a(f's_cbranch_scc1 {name}_wl{batch}{w+1}')
            wloads(w, batch)
            if w < 3:
                a(f's_branch {name}_wld{batch}')
                a.label(f'{name}_wl{batch}{w+1}')
        a.label(f'{name}_wld{batch}')
        if batch == 0 and merged:
            wait_flags(a, name, WS_FLG + F_IMG, 64, lane='v5', va=6, sleep=3)
    a(f's_branch {name}_wdone')
    a.label(f'{name}_vw')
    a('s_mul_i32 s27, s22, 112')
    a('s_lshl_b32 s28, s25, 1')
    a('s_add_u32 s27, s27, s28')
    a(f's_mul_i32 s27, s27, {TILE_B}')
    a(f's_add_u32 s27, s27, {WS_VIMG}')
    a(f's_mul_i32 s33, s22, {TILE_B}')
    a(f's_add_u32 s33, s33, {L_W8}')
    for pi in range(7):
        if pi == 3 and merged:
            wait_flags(a, name, WS_FLG + F_IMG, 64, lane='v5', va=6, sleep=3)
        a(f's_add_u32 s31, s37, {pi}')
        a('s_cmp_ge_u32 s31, 7')
        a('s_cselect_b32 s32, 7, 0')
        a('s_sub_u32 s31, s31, s32')
        a('s_lshl_b32 s31, s31, 11')
        a('s_add_u32 s31, s31, s27')
        for j in range(8):
            a(f's_add_u32 s30, s31, {((j//2)*28 + j%2)*TILE_B}')
            a('v_add_u32 v2, s30, v1')
            if j < 7:
                g = 7*j + pi
                for u in range(2):
                    dst = ar(8*g+4*u, 4) if g < 32 else vr(120 + 8*(g-32) + 4*u, 4)
                    a(f'global_load_dwordx4 {dst}, v2, {ws} offset:{1024*u} sc1')
            else:
                a(f's_add_u32 m0, s33, {2048*pi}')
                for u in range(2): a(f'global_load_lds_dwordx4 v2, {ws} offset:{1024*u} sc1')
    a.label(f'{name}_wdone')
    if merged:
        with WgWait(a): wait_flags(a, name, WS_FLG + F_XP, 256, va=16, sleep=8)
        a('s_waitcnt vmcnt(0)')
    stamp(a, 3)
    if ENV('BISECT', 0) == 3:
        a('s_mov_b32 s88, 1'); a(f's_branch {name}_done')
    def sbase(lo, off):
        a(f's_add_u32 s{lo}, s4, {off}')
        a(f's_addc_u32 s{lo+1}, s5, 0')
    C, G, T1, T2, T3 = 8, 9, 10, 11, 12
    a(f'v_and_b32 v{C}, 15, v0')
    a(f'v_lshrrev_b32 v{G}, 4, v0')
    a(f'v_and_b32 v{T1}, 1, v0')
    a(f'v_cmp_eq_u32 vcc, 1, v{T1}')
    a(f'v_mov_b32 v{IDX}, 0x4444')
    a(f'v_mov_b32 v{T1}, 0xeeee')
    a(f'v_cndmask_b32 v{IDX}, v{IDX}, v{T1}, vcc')
    a('v_add_u32 v3, 4096, v1')
    a('v_add_u32 v4, 8192, v1')
    for r in (5, 6, 7, 100, 101, 102, 103, 105, 113, 114, 115, 116): a(f'v_mov_b32 v{r}, v1')
    a(f's_lshl_b32 s30, {role}, 2')
    a('s_add_u32 s30, s30, s22')
    a('s_mul_i32 s30, s30, 4608')
    a(f's_add_u32 s30, s30, {WS_RING + 4096}')
    a(f'v_add_u32 v{T1}, s30, v1')
    for i in range(5): a(f'global_load_dwordx4 {vr(16+4*i,4)}, v{T1}, {ws} offset:{1024*i-4096 if i < 4 else -512} sc1')
    for lo in (8, 10, 12, 14, 52, 54, 56, 58): sbase(lo, WS_RING + 4*RS)
    sbase(44, WS_MEM2)
    sbase(46, WS_RING)
    sbase(48, WS_RING + 3*RS)
    sbase(50, WS_RING + RS)
    a(f's_mov_b32 s38, {2*RS}')
    a('s_mov_b32 s36, 0')
    a(f's_and_b32 s31, {role}, {NREP-1}')
    a('s_lshl_b32 s31, s31, 8')
    a(f's_add_u32 s31, s31, {R_FM}')
    a(f'v_min_u32 v{A_FL}, 27, v0')
    a(f'v_lshlrev_b32 v{A_FL}, 2, v{A_FL}')
    a(f'v_add_u32 v{A_FL}, s31, v{A_FL}')
    a('s_cmp_eq_u32 s26, 1')
    a(f's_cbranch_scc1 {name}_vsetup')
    if ENV('NOB0', 0):
        NSUB = ENV('NSUB', 12)
        a(f'v_min_u32 v{T1}, {NSUB-1}, v0')
        a('s_lshl_b32 s30, s22, 3')
        a(f'v_add_u32 v{T1}, s30, v{T1}')
        a(f'v_subrev_u32 v{T2}, 28, v{T1}')
        a(f'v_min_u32 v{T1}, v{T1}, v{T2}')
        a(f'v_lshlrev_b32 v{A_FL}, 2, v{T1}')
        a(f'v_add_u32 v{A_FL}, s31, v{A_FL}')
    a('s_lshl_b32 s30, s22, 12')
    a(f's_add_u32 s30, s30, {L_T}')
    a(f'v_lshlrev_b32 v{A_TW}, 5, v{C}')
    a(f'v_lshrrev_b32 v{T1}, 2, v{C}')
    a(f'v_lshrrev_b32 v{T2}, 1, v{G}')
    a(f'v_xor_b32 v{T1}, v{T1}, v{T2}')
    a(f'v_lshl_add_u32 v{A_TW}, v{T1}, 3, v{A_TW}')
    a(f'v_and_b32 v{T2}, 1, v{G}')
    a(f'v_lshl_add_u32 v{A_TW}, v{T2}, 2, v{A_TW}')
    a(f'v_add_u32 v{A_TW}, s30, v{A_TW}')
    a(f'v_add_u32 v{T1}, s30, v1')
    for r in range(4): a(f'v_mov_b32 v{16+r}, 0')
    a('s_waitcnt vmcnt(0)')
    for r in range(4): a(f'v_mov_b32 v{16+r}, 0')
    for i in range(4): a(f'ds_write_b128 v{T1}, v[16:19] offset:{1024*i}')
    a(f'v_and_b32 v{T1}, 3, v0')
    a(f'v_xor_b32 v{T1}, v{T1}, v{G}')
    a(f'v_lshrrev_b32 v{A_TR}, 2, v0')
    a(f'v_lshlrev_b32 v{A_TR}, 5, v{A_TR}')
    a(f'v_lshl_add_u32 v{A_TR}, v{T1}, 3, v{A_TR}')
    a(f'v_add_u32 v{A_TR}, s30, v{A_TR}')
    a(f'v_lshrrev_b32 v{T1}, 1, v{G}')
    a(f'v_and_b32 v{T2}, 1, v{G}')
    a(f'v_lshlrev_b32 v{A_MK}, 4, v{T1}')
    a(f'v_lshl_add_u32 v{A_MK}, v{T2}, 3, v{A_MK}')
    a(f'v_and_b32 v{T3}, 7, v0')
    a(f'v_lshl_add_u32 v{A_MK}, v{T3}, 5, v{A_MK}')
    a('s_mul_i32 s30, s22, 14')
    a('s_and_b32 s30, s30, 7')
    a('s_lshl_b32 s30, s30, 7')
    a('s_mul_i32 s31, s22, 3072')
    a('s_add_u32 s30, s30, s31')
    a(f'v_add_u32 v{A_MK}, s30, v{A_MK}')
    a(f'v_mul_u32_u24 v{A_SW}, 208, v{C}')
    a(f'v_lshl_add_u32 v{A_SW}, v{G}, 4, v{A_SW}')
    a('s_mul_i32 s30, s22, 3328')
    a(f's_add_u32 s30, s30, {L_S}')
    a(f'v_add_u32 v{A_SW}, s30, v{A_SW}')
    a(f'v_lshrrev_b32 v{T1}, 5, v0')
    a(f'v_add_u32 v{T1}, s29, v{T1}')
    a(f'v_and_b32 v{T2}, 31, v0')
    a(f'v_mul_u32_u24 v{A_SR}, 208, v{T1}')
    a(f'v_lshl_add_u32 v{A_SR}, v{T2}, 3, v{A_SR}')
    a(f'v_add_u32 v{A_SR}, {L_S}, v{A_SR}')
    a(f'v_lshrrev_b32 v{A_PST}, 3, v{T2}')
    a(f'v_lshlrev_b32 v{A_PST}, 8, v{A_PST}')
    a(f'v_and_b32 v{T3}, 7, v{T2}')
    a(f'v_lshl_add_u32 v{A_PST}, v{T3}, 2, v{A_PST}')
    a('s_lshl_b32 s30, s25, 9')
    a(f'v_add_u32 v{A_PST}, s30, v{A_PST}')
    a(f'v_and_b32 v{C}, 3, v{T2}')
    a(f'v_lshlrev_b32 v{C}, 2, v{C}')
    a('s_lshr_b32 s30, s25, 1')
    a('s_lshl_b32 s30, s30, 8')
    a('s_and_b32 s31, s25, 1')
    a('s_lshl_b32 s32, s31, 4')
    a('s_add_u32 s30, s30, s32')
    a('s_add_u32 s30, s30, 8192')
    a(f'v_add_u32 v{C}, s30, v{C}')
    a(f'v_cmp_lt_u32 vcc, 15, v{T2}')
    a(f'v_cndmask_b32 v{A_PST}, v{A_PST}, v{C}, vcc')
    a(f'v_lshl_add_u32 v{A_PST}, v{T1}, 5, v{A_PST}')
    a(f'v_cmp_gt_u32 vcc, 20, v{T2}')
    a('s_mov_b64 s[42:43], vcc')
    a('s_lshl_b32 s31, s25, 2')
    a(f's_add_u32 s31, s31, {R_FP}')
    a(f'v_lshlrev_b32 v{A_FST}, 8, v0')
    a(f'v_add_u32 v{A_FST}, s31, v{A_FST}')
    a('s_lshl_b32 s30, s22, 13')
    a(f's_add_u32 s30, s30, {WS_XK}')
    sbase(54, 's30')
    a('s_lshl_b32 s30, s25, 2')
    a('s_add_u32 s30, s30, s22')
    a(f's_mul_i32 s30, s30, {7168}')
    a(f's_add_u32 s30, s30, {WS_U + 2*28*16384}')
    sbase(8, 's30')
    a(f's_branch {name}_go')
    a.label(f'{name}_vsetup')
    a('s_and_b32 s33, s22, 1')
    a('s_lshl_b32 s30, s25, 1')
    a('s_add_u32 s33, s33, s30')
    a('s_and_b32 s30, s22, 1')
    a('s_lshl_b32 s31, s30, 14')
    a(f's_add_u32 s31, s31, {L_UV}')
    a(f'v_add_u32 v{A_UR}, s31, v1')
    a('s_lshl_b32 s31, s30, 12')
    a(f's_add_u32 s31, s31, {L_MX}')
    a(f'v_add_u32 v{A_ML}, s31, v1')
    a(f'v_lshrrev_b32 v{A_MEMST}, 3, v{C}')
    a(f'v_lshlrev_b32 v{A_MEMST}, 4, v{A_MEMST}')
    a(f'v_lshl_add_u32 v{A_MEMST}, v{G}, 6, v{A_MEMST}')
    a(f'v_and_b32 v{T3}, 1, v{C}')
    a(f'v_lshl_add_u32 v{A_MEMST}, v{T3}, 5, v{A_MEMST}')
    a(f'v_bfe_u32 v{A_PERM}, v{C}, 1, 2')
    a(f'v_lshl_add_u32 v{A_MEMST}, v{A_PERM}, 2, v{A_MEMST}')
    a('s_lshl_b32 s30, s33, 8')
    a(f's_add_u32 s30, s30, {R_MEM}')
    a(f'v_add_u32 v{A_MEMST}, s30, v{A_MEMST}')
    a(f'v_cmp_eq_u32 vcc, 1, v{T3}')
    a(f'v_mov_b32 v{A_PERM}, 0x01000504')
    a(f'v_mov_b32 v{T3}, 0x07060302')
    a(f'v_cndmask_b32 v{A_PERM}, v{A_PERM}, v{T3}, vcc')
    a(f'v_lshrrev_b32 v{T1}, 1, v{G}')
    a(f'v_lshlrev_b32 v{A_MST}, 8, v{T1}')
    a(f'v_lshl_add_u32 v{A_MST}, v{C}, 4, v{A_MST}')
    a(f'v_and_b32 v{T1}, 1, v{G}')
    a(f'v_lshl_add_u32 v{A_MST}, v{T1}, 3, v{A_MST}')
    a('s_lshl_b32 s30, s22, 10')
    a(f's_add_u32 s30, s30, {L_MX}')
    a(f'v_add_u32 v{A_MST}, s30, v{A_MST}')
    a(f's_mul_i32 s30, s22, {TILE_B}')
    a(f's_add_u32 s30, s30, {L_W8}')
    a(f'v_add_u32 v{A_CP}, s30, v1')
    for k in range(3):
        a(f's_add_u32 s30, s29, {k}')
        a('s_add_u32 s30, s30, s37')
        for _ in range(2):
            a('s_cmp_ge_u32 s30, 7')
            a('s_cselect_b32 s31, 7, 0')
            a('s_sub_u32 s30, s30, s31')
        a('s_lshl_b32 s30, s30, 10')
        a(f'v_add_u32 v{5+k}, s30, v1')
    a(f'v_mov_b32 v{NEG}, -1')
    a('v_mov_b32 v115, s20')
    a('v_min_u32 v105, 7, v0')
    a('v_lshlrev_b32 v105, 2, v105')
    a('s_cmp_ge_u32 s22, 2')
    a(f's_cbranch_scc1 {name}_npv')
    a(f's_and_b32 s30, s33, {NREP-1}')
    a('s_lshl_b32 s30, s30, 8')
    a(f's_add_u32 s30, s30, {R_FP}')
    a(f'v_min_u32 v{A_FL}, 16, v0')
    a(f'v_lshlrev_b32 v{A_FL}, 2, v{A_FL}')
    a(f'v_add_u32 v{A_FL}, s30, v{A_FL}')
    a.label(f'{name}_npv')
    a('v_mov_b32 v20, v0')
    a('s_lshl_b32 s30, s33, 2')
    a(f's_add_u32 s30, s30, {R_FM}')
    a(f'v_lshlrev_b32 v{A_FST}, 8, v0')
    a(f'v_add_u32 v{A_FST}, s30, v{A_FST}')
    sbase(10, WS_RING + 4*RS)
    a('s_lshl_b32 s31, s25, 5')
    a(f's_add_u32 s31, s31, {WS_FLG + F_U}')
    sbase(12, 's31')
    a('s_mov_b32 s39, s31')
    a('s_lshl_b32 s30, s25, 15')
    a('s_lshl_b32 s31, s22, 13')
    a('s_add_u32 s30, s30, s31')
    a(f's_add_u32 s30, s30, {WS_U}')
    sbase(56, 's30')
    a(f's_add_u32 s35, s31, {L_UV}')
    def dma_u(i):
        return [f's_add_u32 m0, s35, {4096*(i//4)}', f'global_load_lds_dwordx4 {"v1" if i < 4 else "v3"}, s[56:57] offset:{1024*(i%4)} sc1']
    if merged:
        a('s_waitcnt vmcnt(0)')
        a('v_lshrrev_b32 v20, 4, v1')
        with WgWait(a):
            wait_flags(a, name, 's39', 8, lane='v20', va=16, sleep=4)
            a('s_add_u32 s39, s39, 448')
            wait_flags(a, name, 's39', 8, lane='v20', va=16, sleep=4)
    for i in range(8):
        for o in dma_u(i): a(o)
    sadd64(a, 56, 28*16384); sadd64(a, 12, 896)
    a('s_xor_b32 s35, s35, 0x38000')
    a.label(f'{name}_go')
    for r in range(32): a(f'v_mov_b32 v{ACC+r}, 0')
    a('s_waitcnt vmcnt(0) lgkmcnt(0)')
    if STAMPS or ENV('DBGT', 0):
        a('s_mov_b32 s74, s24'); a('s_memrealtime s[88:89]'); a('s_waitcnt lgkmcnt(0)')
    a('s_lshl_b32 s30, s26, 2')
    a('s_add_u32 s30, s30, s22')
    if merged:
        a('s_cmp_lt_u32 s21, 32')
        a('s_cselect_b32 s31, 8, 0')
        a('s_add_u32 s30, s30, s31')
    for k in range(16 if merged else 8):
        a(f's_cmp_eq_u32 s30, {k}')
        a(f's_cbranch_scc1 {name}_{"fs"[k//8]}{"sv"[(k//4)%2]}{k%4}_entry')

    def gaddr(off):
        if off < 4096: return 'v1', off
        if off < 8192: return 'v3', off - 4096
        return 'v4', off - 8192

    def gen_wave(kind, w, st):
        tag = f'{name}_{"s" if st else "f"}{kind}{w}'
        own = [2*w, 2*w+1, 2*w+2] if w < 3 else [6, 0, 1]
        wr = own[:2] if w < 3 else own[:1]
        others = [t for t in range(7) if t not in own]
        pvw = kind == 'v' and w < 2
        NB0 = ENV('NOB0', 0)
        poller = (w == 1 or NB0) if kind == 's' else (w == 2)
        SLOW = []
        L = Cnt(); V = Cnt()
        def emit(op):
            if isinstance(op, str): a(op); return
            text, k, tg = op
            if k == 'wl': a(f's_waitcnt lgkmcnt({L.need(text)})'); return
            if k == 'wv': a(f's_waitcnt vmcnt({V.need(text)})'); return
            a(text)
            (L if k == 'l' else V).issue(tg)
        def smf(j, t):
            a(f'v_smfmac_f32_16x16x64_bf16 {vr(ACC+4*j,4)}, {vr(MA+4*t,4)}, {W(j,t)}, v{IDX}')
        def rest_adv():
            a(f's_add_u32 s30, s38, {WS_RING}')
            a('s_add_u32 s50, s4, s30')
            a('s_addc_u32 s51, s5, 0')
            a(f's_add_u32 s38, s38, {RS}')
            a(f's_cmp_eq_u32 s38, {4*RS}')
            a('s_cselect_b32 s38, 0, s38')
            if kind == 'v':
                if w == 3 and merged: sadd64(a, 12, 448)
                if w < 2: a(f'v_xor_b32 v{A_UR}, 0x38000, v{A_UR}')
            else:
                sadd64(a, 8, 28*16384)
            for r in range(28 if kind == 's' else 32): a(f'v_mov_b32 v{ACC+r}, 0')
        def mem_loads(em=True):
            for n, t in enumerate(own):
                tx = f'global_load_dwordx4 {vr(MA+4*t,4)}, v{5+n}, s[44:45] sc1'
                if em: emit((tx, 'v', f'm{t}'))
                else: a(tx)
                if n < 2 and em and ENV('MSP', 1): a(f's_nop {ENV("MSPN", 3)}')
        def kreg(k, kt):
            if k == 1: return MA + 4*own[kt]
            if k == 3: return [TBZ+2, CV+2][kt]
            return {0: K0, 2: K2}[k] + 4*kt
        def xk1(k, kt):
            va = "v1" if kt == 0 else "v3"
            if k == 1: return [f's_mov_b32 m0, {L_K1 + 2048*w + 1024*kt - 1024}', f'global_load_lds_dwordx4 {va}, s[54:55] offset:1024 {XKF}']
            n = 2 if k == 3 else 4
            return [f'global_load_dwordx{n} {vr(kreg(k,kt),n)}, {va}, s[54:55] offset:{1024*k} {XKF}']
        def xk_all(ks=(0, 1, 2, 3), adv=True):
            for k in ks:
                for kt in range(2):
                    for o in xk1(k, kt): a(o)
            if adv: sadd64(a, 54, 32768)
        XE = ENV('XEARLY', 0)
        cps = {2: [0, 1, 2, 3], 3: [4, 5, 6]}.get(w, []) if kind == 'v' else []
        CPB, CP2 = 64, 80
        def stage_reads():
            for n, i in enumerate(cps):
                a(f'ds_read_b128 {vr(CPB+4*n,4)}, v1 offset:{L_MS + 1024*i}')
                a(f'ds_read_b128 {vr(CP2+4*n,4)}, v1 offset:{L_MEM + 1024*i}')
            a('s_waitcnt lgkmcnt(0)')
        def mem2_copy():
            l2 = a.newlabel('nm2')
            a('s_cmp_lg_u32 s25, 15')
            a(f's_cbranch_scc1 {l2}')
            for n, t in enumerate(cps):
                va, im = gaddr(1024*t)
                a(f'global_store_dwordx4 {va}, {vr(MA+4*t,4)}, s[58:59] offset:{im} sc1')
            a.label(l2)
        a.label(f'{tag}_loop')
        if poller and ENV('XST', 0):
            a('s_waitcnt vmcnt(0)'); cstamp(a, 1, 31)
        if poller: flag_poll(a, tag, FR=(96, 97, 98, 99, 117, 118)[:ENV('NMP', 5)], gap=ENV('MGAP', 11))
        if not (kind == 's' and NB0): a('s_barrier')
        if not pvw: cstamp(a, 5, 31)
        a.label(f'{tag}_mem')
        DIRECT = kind == 's' and ENV('DIRECT', 1)
        if DIRECT:
            others.sort(key=lambda t: (t - own[0]) % 7)
            def mld(t):
                va, im = gaddr(1024*t)
                return (f'global_load_dwordx4 {vr(MA+4*t,4)}, {va}, s[44:45] offset:{im} sc1', 'v', f'm{t}')
            seq = own + others
            NPRE = ENV('NPRE', 4)
            for n in range(NPRE):
                emit(mld(seq[n]))
                if n < NPRE - 1: a(f's_nop {ENV("DSP", 11)}')
            need = sorted(set(range((14*w)//8, (14*w+13)//8 + 1)))
            def pw(t): return (f'ds_write_b128 v1, {vr(MA+4*t,4)} offset:{L_MEM + 3072*w + 1024*(t - need[0])}', 'l', f'pw{t}')
            fl = {}
            for n in range(NPRE, 7): fl.setdefault((0, 2*(n-NPRE)+1), []).append(mld(seq[n]))
            for p in range(3):
                if own[p] in need: fl.setdefault((p, 0), []).append(pw(own[p]))
            def c2(t, first=False):
                r = MA + 4*t
                return [f'v_max3_u32 v{TMP}, v{r}, v{r+1}, v{r+2}' if first else f'v_max3_u32 v{TMP}, v{TMP}, v{r}, v{r+1}',
                        f'v_max_u32 v{TMP}, v{TMP}, v{r+3}' if first else f'v_max3_u32 v{TMP}, v{TMP}, v{r+2}, v{r+3}']
            for p in range(2):
                cc = c2(own[p], p == 0)
                fl.setdefault((p, 2), []).append(cc[0]); fl.setdefault((p, 4), []).append(cc[1])
            for p in range(3):
                emit((f'm{own[p]}', 'wv', None))
                if p == 0:
                    cstamp(a, 0); cstamp(a, 6, 31)
                if p == 2: break
                for j in range(7):
                    smf(j, own[p])
                    for o in fl.get((p, j), []): emit(o)
            cstamp(a, 1)
            late_w = [t for t in need if t not in own[:2]]
        else:
            mem_loads()
            if kind == 'v':
                a('s_barrier')
                if pvw:
                    lk = a.newlabel('w0s')
                    a('s_cmp_eq_u32 s36, 0')
                    a(f's_cbranch_scc1 {lk}')
                    rest_adv()
                    a.label(lk)
                NU0 = ENV('NU0', 4)
                uq = [] if ENV('NOU', 0) else [dma_u(i) for i in range(8)]
                for _ in range(NU0):
                    if uq:
                        m_, d_ = uq.pop(0); a(m_); emit((d_, 'v', 'u'))
            a.label(f'{tag}_got')
            chk = max_ops([MA+4*t+r for t in own[:2] for r in range(4)], TMP)
            fill0 = {0: [(f'm{own[1]}', 'wv', None)] + ([(f'ds_write_b128 v1, {vr(MA+4*wr[1],4)} offset:{L_MEM + 1024*wr[1]}', 'l', 'w1')] if len(wr) > 1 else []),
                     1: [chk[0]], 2: [chk[1]], 3: [chk[2]], 4: [chk[3]], 5: [f'v_cmp_eq_u32 vcc, -1, v{TMP}'], 6: [f's_cbranch_vccnz {tag}_redo']}
            emit((f'm{own[0]}', 'wv', None))
            cstamp(a, 0)
            if not pvw: cstamp(a, 6, 31)
            emit((f'ds_write_b128 v1, {vr(MA+4*wr[0],4)} offset:{L_MEM + 1024*wr[0]}', 'l', 'w0'))
            for j in range(7):
                smf(j, own[0])
                for o in fill0[j]: emit(o)
            a.label(f'{tag}_cont')
            smf(0, own[1])
            pre = []
            if kind == 'v':
                pre += uq
                if pvw:
                    pre.append([f'global_store_dword v{A_MEMST}, v{NEG}, s[10:11] {st}', f's_mov_b64 exec, {RMASK}', f'global_store_dword v{A_FST}, v{NEG}, s[10:11] {st}', 's_mov_b64 exec, -1'])
            c2 = MA + 4*own[2]
            for j in range(1, 7):
                smf(j, own[1])
                if pre:
                    ops = pre.pop(0)
                    for o in ops:
                        a(o)
                        if o.startswith('global_'): V.issue('x')
                if j == 4:
                    emit((f'm{own[2]}', 'wv', None))
                    a(f'v_max3_u32 v{TMP}, v{c2}, v{c2+1}, v{c2+2}')
                if j == 5: a(f'v_max_u32 v{TMP}, v{TMP}, v{c2+3}')
                if j == 6: a(f'v_cmp_eq_u32 vcc, -1, v{TMP}')
            a('s_waitcnt lgkmcnt(0)'); L.reset()
            a('s_barrier')
            a(f's_cbranch_vccnz {tag}_fix2')
            a.label(f'{tag}_fix2r')
            if not pvw: cstamp(a, 1)
            for t in others: emit((f'ds_read_b128 {vr(MA+4*t,4)}, v1 offset:{L_MEM + 1024*t}', 'l', f'r{t}'))
        F = {}
        def add(sl, ops): F[sl] = F.get(sl, []) + list(ops)
        if kind == 's':
            def cvt_write(j):
                return [f'v_add_f32 v{CV}, v{ACC+4*j}, v{ACC+4*j+1}',
                        f'v_add_f32 v{CV+1}, v{ACC+4*j+2}, v{ACC+4*j+3}',
                        f'v_cvt_pk_bf16_f32 v{CV}, v{CV}, v{CV+1}',
                        (f'ds_write_b32 v{A_TW}, v{CV} offset:{512*j}', 'l', f'cw{j}')]
            def tbr(k): return TB + 4*(k % 2) if k < 3 else TBZ
            def s_reads(k):
                o = [(f'ds_read_b64_tr_b16 {vr(tbr(k),2)}, v{A_TR} offset:{1024*k}', 'l', f'sr{k}')]
                if k < 3: o.append((f'ds_read_b64_tr_b16 {vr(tbr(k)+2,2)}, v{A_TR} offset:{1024*k+512}', 'l', f'sr{k}'))
                return o
            def kmr(k): return KM0 if k % 2 == 0 else KM1
            def km_read(k):
                if k == 3: return (f'ds_read_b64 {vr(kmr(k),2)}, v{A_MK} offset:{512*k}', 'l', f'km{k}')
                return (f'ds_read2_b64 {vr(kmr(k),4)}, v{A_MK} offset0:{64*k} offset1:{64*k+32}', 'l', f'km{k}')
            def s_mfma(k, fill=()):
                fill = list(fill)
                deps = [f'sr{k}', f'km{k}'] + (['k1'] if k == 1 else [])
                a(f's_waitcnt lgkmcnt({min(L.need(d) for d in deps)})')
                for kt in range(3):
                    acc = vr(SACC+4*kt, 4)
                    src = kreg(k, kt) if kt < 2 else kmr(k)
                    if k == 3: a(f'v_mfma_f32_16x16x16_bf16 {acc}, {vr(src,2)}, {vr(tbr(k),2)}, {acc}')
                    else: a(f'v_mfma_f32_16x16x32_bf16 {acc}, {vr(src,4)}, {vr(tbr(k),4)}, {acc if k else 0}')
                    if fill:
                        for o in fill.pop(0): emit(o)
            assert DIRECT
            f2 = [[(f'ds_read_b128 {vr(kreg(1,0),4)}, v1 offset:{L_K1 + 2048*w}', 'l', 'k1')],
                  [(f'ds_read_b128 {vr(kreg(1,1),4)}, v1 offset:{L_K1 + 2048*w + 1024}', 'l', 'k1')]]
            if own[2] in late_w: f2.insert(0, [pw(own[2])])
            if not ENV('NOTOUCH', 1):
                nl = ENV('NTL', 56)
                add((0, 3), [f'v_lshlrev_b32 v{CV}, 3, v1', (f's_mov_b64 exec, {(1 << nl) - 1}' if nl < 32 else f's_mov_b32 exec_hi, {(1 << (nl - 32)) - 1}'),
                          f'global_load_dword v{2 if w != 1 else 0}, v{CV}, s[8:9] sc1', 's_mov_b64 exec, -1'])
            f2 += [[o] for o in c2(own[2])] + [[f'v_cmp_eq_u32 vcc, -1, v{TMP}']]
            f2 += [[]] * (6 - len(f2)) + [[f's_cbranch_vccnz {tag}_redo', f'{tag}_cont:']]
            for j in range(7):
                smf(j, own[2])
                if f2:
                    for o in f2.pop(0): emit(o)
            for n, t in enumerate(others):
                if t in late_w: add((0, n), [pw(t)])

            add((1, 0), [km_read(0), km_read(1)])
            if XE == 3:
                add((2, 0), [('k1', 'wl', None)] + xk1(1, 0)); add((4, 0), xk1(1, 1))
            for j in range(1, 7):
                cw = cvt_write(j-1)
                add((j, 1), [cw[0]]); add((j, 2), [cw[1]]); add((j, 3), [cw[2]]); add((j+1, 0), [cw[3]])
            add((3,0), s_reads(0)[:1]); add((3,1), s_reads(0)[1:]); add((5,0), s_reads(1)[:1]); add((5,1), s_reads(1)[1:])
            for j in range(7):
                for n, t in enumerate(others):
                    if j == 0: emit((f'm{t}', 'wv', None))
                    smf(j, t)
                    for o in F.get((j, n), []): emit(o)
                if j == 4: s_mfma(0, [[], xk1(0, 0) if XE == 3 else [], [km_read(2)] + (xk1(0, 1) if XE == 3 else [])])
            cstamp(a, 2)
            cw6 = cvt_write(6)
            for o in F[(7, 0)]: emit(o)
            s_mfma(1, [s_reads(2), [cw6[0], cw6[1]], [cw6[2], cw6[3]] + s_reads(3) + [km_read(3)]])
            s_mfma(2)
            s_mfma(3)
            for kt in range(3):
                a(f'ds_write_b128 v{A_SW}, {vr(SACC+4*kt,4)} offset:{64*kt}')
                if kt == 0: a(f'v_cmp_u_f32 vcc, v{SACC}, v{SACC}')
            a(f's_cbranch_vccnz {tag}_redo2')
            a.label(f'{tag}_cont2')
            a('s_waitcnt lgkmcnt(0)'); L.reset()
            a('s_barrier')
            cstamp(a, 3)
            SR = 8
            for i in range(4):
                emit((f'ds_read_b64 {vr(SR+2*i,2)}, v{A_SR} offset:{3328*i}', 'l', f's{i}'))
            a('s_mov_b32 s30, 0x42800000')
            if XE in (1, 2): xk_all((0, 1), False)
            def pflag():
                if w == 0:
                    a(f's_mov_b64 exec, {RMASK}')
                    a(f'global_store_dword v{A_FST}, v{IDX}, s[46:47] {st}')
                    a('s_mov_b64 exec, -1')
            PF = ENV('PFLAG', 2)
            if PF == -1: pflag()
            def pk(d, x, y): a(f'v_pk_add_f32 {vr(SR+d,2)}, {vr(SR+x,2)}, {vr(SR+y,2)}')
            emit(('s1', 'wl', None)); pk(0, 0, 2)
            emit(('s3', 'wl', None)); pk(4, 4, 6); pk(0, 0, 4)
            if PF == -2: pflag()
            m, t = SR+4, SR+5
            a(f'v_max_f32 v{m}, |v{SR}|, |v{SR+1}|')
            a(f'v_exp_f32 v{SR+2}, v{SR}')
            a(f'v_cmp_nge_f32 vcc, s30, v{m}')
            a(f'v_exp_f32 v{SR+3}, v{SR+1}')
            a('s_and_b64 vcc, vcc, s[42:43]')
            a(f's_cbranch_vccnz {tag}_smax')
            a.label(f'{tag}_smax_ret')
            a(f'v_add_f32 v{m}, v{SR+2}, v{SR+3}')
            a(f'v_cndmask_b32 v{m}, 0, v{m}, s[42:43]')
            xq = [xk1(k, kt) for k in (2, 3) for kt in range(2)] if XE == 2 else []
            if PF == 0: pflag()
            def slow_max():
                a.label(f'{tag}_smax')
                a(f'v_mov_b32 v{SR+16}, 0xff800000')
                a(f'v_max_f32 v{m}, v{SR}, v{SR+1}')
                a(f'v_cndmask_b32 v{m}, v{SR+16}, v{m}, s[42:43]')
                for ror in (8, 4, 2, 1):
                    a(f'v_max_f32_dpp v{m}, v{m}, v{m} row_ror:{ror} row_mask:0xf bank_mask:0xf')
                a(f'v_mov_b32 v{t}, v{m}')
                a(f'v_permlane16_swap_b32 v{m}, v{t}')
                a(f'v_max_f32 v{m}, v{m}, v{t}')
                a(f'v_sub_f32 v{SR+2}, v{SR}, v{m}')
                a(f'v_sub_f32 v{SR+3}, v{SR+1}, v{m}')
                a(f'v_exp_f32 v{SR+2}, v{SR+2}')
                a(f'v_exp_f32 v{SR+3}, v{SR+3}')
                a(f's_branch {tag}_smax_ret')
            SLOW.append(slow_max)
            for ror in (8, 4, 2, 1):
                if xq:
                    for o in xq.pop(0): a(o)
                a(f'v_add_f32_dpp v{m}, v{m}, v{m} row_ror:{ror} row_mask:0xf bank_mask:0xf')
                if PF == 1 and ror == 4: pflag()
            a(f'v_mov_b32 v{t}, v{m}')
            if PF == 2: pflag()
            a(f'v_permlane16_swap_b32 v{m}, v{t}')
            a(f'v_add_f32 v{m}, v{m}, v{t}')
            a(f'v_rcp_f32 v{m}, v{m}')
            a(f'v_mul_f32 v{SR}, v{SR+2}, v{m}')
            a(f'v_mul_f32 v{SR+1}, v{SR+3}, v{m}')
            if PF == 25: pflag()
            a(f'v_cvt_pk_bf16_f32 v{SR}, v{SR}, v{SR+1}')
            a('s_mov_b64 exec, s[42:43]')
            a(f'global_store_dword v{A_PST}, v{SR}, s[46:47] {st}')
            a('s_mov_b64 exec, -1')
            if PF == 3: pflag()
            cstamp(a, 4)
            xk_all({0: (0, 1, 2, 3), 1: (2, 3), 2: (), 3: (2, 3)}[XE])
            a(f'v_mov_b32 v{CV}, -1')
            a(f'global_store_dword v{A_PST}, v{CV}, s[48:49] {st}')
            if w == 0:
                a(f's_mov_b64 exec, {RMASK}')
                a(f'global_store_dword v{A_FST}, v{CV}, s[48:49] {st}')
                a('s_mov_b64 exec, -1')
        else:
            early = list(pre)
            if merged and w == 3: early.append(['global_load_dword v116, v105, s[12:13] sc1'])
            def w8rd(pi): return [(f'ds_read_b128 {vr(68+8*(pi%2)+4*u,4)}, v{A_CP} offset:{2048*pi+1024*u}', 'l', f'w8{pi}') for u in range(2)]
            def smf8(pi):
                emit((f'w8{pi}', 'wl', None))
                a(f'v_smfmac_f32_16x16x64_bf16 {vr(ACC+28,4)}, {vr(MA+4*pi,4)}, {vr(68+8*(pi%2),8)}, v{IDX}')
            seq8 = own + others
            for o in w8rd(seq8[0] if False else 0): pass
            q8 = [t for t in seq8]
            def rd8(k):
                t = q8[k]
                return [(f'ds_read_b128 {vr(68+8*(k%2)+4*u,4)}, v{A_CP} offset:{2048*t+1024*u}', 'l', f'w8{k}') for u in range(2)]
            def sm8(k):
                emit((f'w8{k}', 'wl', None))
                a(f'v_smfmac_f32_16x16x64_bf16 {vr(ACC+28,4)}, {vr(MA+4*q8[k],4)}, {vr(68+8*(k%2),8)}, v{IDX}')
                if k + 2 < 7:
                    for o in rd8(k+2): emit(o)
            for o in rd8(0) + rd8(1): emit(o)
            for j in range(7):
                smf(j, own[2])
                if early:
                    for o in early.pop(0): a(o)
            assert not early
            sadd64(a, 56, 28*16384)
            a('s_xor_b32 s35, s35, 0x38000')
            pend = []
            MC = 96
            def m_out(j):
                X = ACC + 4*j; c = MC + (j % 4)
                hh, p = j // 2, j % 2
                return [f'v_add_f32 v{X}, v{X}, v{X+1}', f'v_add_f32 v{X+2}, v{X+2}, v{X+3}', f'v_cvt_pk_bf16_f32 v{c}, v{X}, v{X+2}',
                        (f'ds_write_b32 v{A_MST}, v{c} offset:{4096*p + 512*(hh//2) + 4*(hh%2)}', 'l', 'mx')]
            for j in range(7):
                for n, t in enumerate(others):
                    if j == 0: emit((f'r{t}', 'wl', None))
                    smf(j, t)
                    if n == 1 and j >= 1: pend += m_out(j-1)
                    if pend: emit(pend.pop(0))
                sm8(j)
                if pend: emit(pend.pop(0))
            for o in pend + m_out(6) + m_out(7): emit(o)
            cstamp(a, 2)
            a('s_waitcnt lgkmcnt(0)')
            a('s_barrier')
            if merged and w == 3:
                a('s_waitcnt vmcnt(0)')
                a('v_cmp_ne_u32 vcc, v115, v116')
                a(f's_cbranch_vccnz {tag}_uwait')
                a.label(f'{tag}_uok')
        if pvw:
            skip = f'{tag}_nopv'
            def ubreads():
                for t in range(4):
                    for u in range(2):
                        a(f'ds_read_b128 {vr(UB+8*t+4*u,4)}, v{A_UR} offset:{2048*t+1024*u}')
            ubreads()
            PFR = (108, 109, 110, 111, 116, 117, 118)[:ENV('NPP', 6)]
            for i in range(4): a(f'ds_read_b128 {vr(MB+4*i,4)}, v{A_ML} offset:{1024*i}')
            flag_poll(a, tag, FR=PFR, gap=ENV('PGAP', 12))
            cstamp(a, 1)
            if ENV('PDLY', 3): a(f's_nop {ENV("PDLY", 3)}')
            a.label(f'{tag}_pld')
            order = [8, 9] + list(range(8))
            for t in order:
                va, im = gaddr(1024*t)
                a(f'global_load_dwordx4 {vr(PA+4*t,4)}, {va}, s[46:47] offset:{im} sc1')
            for r in range(4): a(f'v_mov_b32 v{PACC+r}, 0')
            acc = vr(PACC, 4)
            a('s_mov_b64 s[10:11], s[46:47]')
            a('s_waitcnt lgkmcnt(0)')
            MF = ENV('MFLAG', 3)
            ck = max_ops(range(PA+32, PA+40), TMP)
            for n, t in enumerate(order):
                a(f's_waitcnt vmcnt({(9 - n) + (1 if n > MF else 0)})' + (f' lgkmcnt({2*(7-t)})' if 4 <= t < 8 else ''))
                if n == 0: cstamp(a, 5)
                b = vr(MB+8*(t-8), 8) if t >= 8 else vr(UB+8*(t % 4), 8)
                a(f'v_smfmac_f32_16x16x64_bf16 {acc}, {vr(PA+4*t,4)}, {b}, v{IDX}')
                if n == 0: a(ck[0])
                if n == 1:
                    for o in ck[1:]: a(o)
                    a(f'v_cmp_eq_u32 vcc, -1, v{TMP}')
                    a(f's_cbranch_vccnz {tag}_pre')
                    a.label(f'{tag}_pgo')
                if n == MF:
                    a(f's_mov_b64 exec, {RMASK}')
                    a(f'global_store_dword v{A_FST}, v{IDX}, s[50:51] {st}')
                    a('s_mov_b64 exec, -1')
                if t < 4:
                    for u in range(2):
                        a(f'ds_read_b128 {vr(UB+8*t+4*u,4)}, v{A_UR} offset:{2048*(t+4)+1024*u}')
            a(f'v_add_f32 v{PACC}, v{PACC}, v{PACC+1}')
            a(f'v_add_f32 v{PACC+2}, v{PACC+2}, v{PACC+3}')
            a(f'v_cmp_u_f32 vcc, v{PACC}, v{PACC+2}')
            a(f'v_cvt_pk_bf16_f32 v{PACC}, v{PACC}, v{PACC+2}')
            a(f's_cbranch_vccnz {tag}_pnan')
            a.label(f'{tag}_pfin')
            a(f'v_mov_b32_dpp v{PACC+1}, v{PACC} quad_perm:[1,0,3,2] row_mask:0xf bank_mask:0xf')
            a(f'v_perm_b32 v{PACC}, v{PACC}, v{PACC+1}, v{A_PERM}')
            a(f'global_store_dword v{A_MEMST}, v{PACC}, s[50:51] {st}')
            cstamp(a, 6)
            if merged:
                a('s_cmp_lg_u32 s36, 62')
                a(f's_cbranch_scc1 {skip}')
                a(f's_add_u32 s30, s4, {WS_MEM2 + 63*7168 - R_MEM}')
                a('s_addc_u32 s31, s5, 0')
                a(f'global_store_dword v{A_MEMST}, v{PACC}, s[30:31] sc1')
            a.label(skip)
        a('s_mov_b64 s[48:49], s[46:47]')
        a('s_mov_b64 s[46:47], s[50:51]')
        a(f's_add_u32 s44, s46, {R_MEM}')
        a('s_addc_u32 s45, s47, 0')
        a('s_add_u32 s36, s36, 1')
        if not pvw: rest_adv()
        a('s_cmp_lt_u32 s36, 63')
        a(f's_cbranch_scc1 {tag}_loop')
        a(f's_branch {name}_done')
        a.label(f'{tag}_entry')
        if kind == 's': xk_all()
        a(f's_branch {tag}_mem')
        for f in SLOW: f()
        if merged and kind == 'v' and w == 3:
            a.label(f'{tag}_uwait')
            a('s_cmp_ge_u32 s36, 61')
            a(f's_cbranch_scc1 {tag}_uok')
            a('global_load_dword v116, v105, s[12:13] sc1')
            a('s_waitcnt vmcnt(0)')
            a('v_cmp_ne_u32 vcc, v115, v116')
            a(f's_cbranch_vccz {tag}_uok')
            a('s_sleep 4')
            a('s_sub_u32 s40, s40, 1')
            a(f's_cbranch_scc0 {tag}_uwait')
            a('s_mov_b32 s40, 0')
            a(f's_branch {tag}_uok')
        if kind == 's':
            a.label(f'{tag}_redo2')
            a('s_nop 7')
            a('s_sub_u32 s40, s40, 2000')
            a(f's_cbranch_scc0 {tag}_redo3')
            a('s_mov_b32 s40, 0')
            a(f's_branch {tag}_cont2')
            a.label(f'{tag}_redo')
            a('s_nop 7')
            if STAMPS: a('s_add_u32 s76, s76, 1')
            a('s_sub_u32 s40, s40, 1')
            a(f's_cbranch_scc1 {tag}_giveup')
            a.label(f'{tag}_redo3')
            for r in range(28): a(f'v_mov_b32 v{ACC+r}, 0')
            if XE == 3:
                a('s_sub_u32 s54, s54, 32768'); a('s_subb_u32 s55, s55, 0')
                xk_all((0, 1))
            a('s_waitcnt lgkmcnt(0)')
            a(f's_branch {tag}_mem')
        else:
            a.label(f'{tag}_fix2')
            a(f'ds_read_b128 {vr(MA+4*own[2],4)}, v1 offset:{L_MEM + 1024*own[2]}')
            a('s_waitcnt lgkmcnt(0)')
            a(f's_branch {tag}_fix2r')
            a.label(f'{tag}_redo')
            a('s_nop 7')
            if STAMPS: a('s_add_u32 s76, s76, 1')
            a('s_sub_u32 s40, s40, 1')
            a(f's_cbranch_scc1 {tag}_giveup')
            a('s_waitcnt lgkmcnt(0)')
            mem_loads(False)
            a('s_nop 7')
            for r in range(32): a(f'v_mov_b32 v{ACC+r}, 0')
            a('s_waitcnt vmcnt(0)')
            a(f's_branch {tag}_got')
        a.label(f'{tag}_giveup')
        a('s_mov_b32 s40, 0')
        a(f's_branch {tag}_cont')
        if pvw:
            a.label(f'{tag}_pre')
            a('s_nop 7')
            if STAMPS: a('s_add_u32 s87, s87, 1')
            a('s_sub_u32 s40, s40, 1')
            a(f's_cbranch_scc0 {tag}_pld')
            a('s_mov_b32 s40, 0')
            a(f's_branch {tag}_pgo')
            a.label(f'{tag}_pnan')
            for o in max_ops(range(PA, PA+40), TMP): a(o)
            a(f'v_cmp_eq_u32 vcc, -1, v{TMP}')
            a(f's_cbranch_vccz {tag}_pfin')
            if STAMPS: a('s_add_u32 s77, s77, 1')
            a('s_sub_u32 s40, s40, 1')
            a(f's_cbranch_scc1 {tag}_pgive')
            ubreads()
            a(f's_branch {tag}_pld')
            a.label(f'{tag}_pgive')
            a('s_mov_b32 s40, 0')
            a(f's_branch {tag}_pfin')
    for st in (('', 'sc1') if merged else ('',)):
        for kind in 'sv':
            for w in range(4): gen_wave(kind, w, st)
    a(f's_branch {name}_done')
    a.label(f'{name}_spare')
    a(f's_cmp_lg_u32 {role}, 30')
    a(f's_cbranch_scc1 {name}_done')
    a('s_cmp_ge_u32 s22, 2')
    a(f's_cbranch_scc1 {name}_done')
    wait_flags(a, name, WS_FLG + F_XP, 256, va=16, sleep=8)
    a('v_add_u32 v3, 4096, v1')
    a('v_lshlrev_b32 v5, 4, v1')
    a(f'v_add_u32 v9, {R_FP + 64 - R_MEM}, v5')
    a(f'v_add_u32 v5, {WS_FLG + F_PROG}, v5')
    a('s_add_u32 s30, s20, s22')
    a('v_mov_b32 v6, s30')
    a('v_add_u32 v6, -1, v6')
    a('v_lshlrev_b32 v7, 3, v1')
    a('v_mov_b32 v10, -1')
    a('s_mov_b32 s36, s22')
    a(f's_mul_i32 s38, s22, {RS}')
    a('s_mul_i32 s30, s22, 7168')
    a(f's_add_u32 s30, s30, {WS_MEM2 + 7168}')
    sbase(58, 's30')
    a('s_mul_i32 s30, s22, 49152')
    a(f's_add_u32 s30, s30, {WS_XK}')
    sbase(54, 's30')
    for i in range(6):
        a('global_load_dword v8, v7, s[54:55]'); sadd64(a, 54, 8192)
    a('s_lshl_b32 s30, s22, 15')
    a(f's_add_u32 s30, s30, {WS_XK + 3*32768}')
    sbase(54, 's30')
    def fstore(data, base):
        l1 = a.newlabel('fs'); l2 = a.newlabel('fs')
        a(f's_mov_b64 exec, {RMASK}')
        a('s_cmp_lt_u32 s21, 32')
        a(f's_cbranch_scc1 {l1}')
        a(f'global_store_dword v9, v{data}, s[{base}:{base+1}]')
        a(f's_branch {l2}')
        a.label(l1)
        a(f'global_store_dword v9, v{data}, s[{base}:{base+1}] sc1')
        a.label(l2)
        a('s_mov_b64 exec, -1')
    sbase(44, WS_RING + R_MEM)
    sbase(46, WS_RING + R_FP)
    a('s_cmp_lg_u32 s22, 0')
    a(f's_cbranch_scc1 {name}_spl')
    fstore(1, 44)
    a('v_mov_b32 v2, 0')
    a.label(f'{name}_sp0')
    a('global_load_dword v8, v2, s[46:47] sc1')
    a('s_waitcnt vmcnt(0)')
    a('v_cmp_eq_u32 vcc, -1, v8')
    a(f's_cbranch_vccz {name}_sp1')
    a('s_sleep 8')
    a('s_sub_u32 s40, s40, 1')
    a(f's_cbranch_scc0 {name}_sp0')
    a('s_mov_b32 s40, 0')
    a.label(f'{name}_sp1')
    a('v_add_u32 v8, 2, v6')
    a('s_mov_b64 exec, 0xffff')
    a('global_store_dword v5, v8, s[4:5] sc1')
    a('s_mov_b64 exec, -1')
    a.label(f'{name}_spl')
    a(f's_add_u32 s30, s38, {WS_RING + R_MEM}')
    a('s_add_u32 s48, s4, s30')
    a('s_addc_u32 s49, s5, 0')
    a(f's_add_u32 s38, s38, {RS}')
    a(f's_cmp_eq_u32 s38, {4*RS}')
    a('s_cselect_b32 s38, 0, s38')
    a(f's_add_u32 s30, s38, {WS_RING + R_MEM}')
    a('s_add_u32 s44, s4, s30')
    a('s_addc_u32 s45, s5, 0')
    a(f's_add_u32 s38, s38, {RS}')
    a(f's_cmp_eq_u32 s38, {4*RS}')
    a('s_cselect_b32 s38, 0, s38')
    a.label(f'{name}_spp')
    for t in range(7):
        a(f'global_load_dwordx4 {vr(16+4*t,4)}, {"v1" if t < 4 else "v3"}, s[44:45] offset:{1024*(t%4)} sc1')
    a('s_waitcnt vmcnt(0)')
    for o in max_ops(range(16, 44), 8): a(o)
    a('v_cmp_eq_u32 vcc, -1, v8')
    a(f's_cbranch_vccz {name}_spk')
    a('s_sleep 4')
    a('s_sub_u32 s40, s40, 1')
    a(f's_cbranch_scc0 {name}_spp')
    a('s_mov_b32 s40, 0')
    a.label(f'{name}_spk')
    fstore(1, 44)
    fstore(10, 48)
    for t in range(7):
        a(f'global_store_dwordx4 {"v1" if t < 4 else "v3"}, {vr(16+4*t,4)}, s[58:59] offset:{1024*(t%4)} sc1')
    a('v_add_u32 v6, 2, v6')
    a('v_add_u32 v8, 1, v6')
    a('s_mov_b64 exec, 0xffff')
    a('global_store_dword v5, v8, s[4:5] sc1')
    a('s_mov_b64 exec, -1')
    for i in range(4):
        a('global_load_dword v8, v7, s[54:55]'); sadd64(a, 54, 8192)
    sadd64(a, 54, 32768)
    sadd64(a, 58, 14336)
    a('s_add_u32 s36, s36, 2')
    a('s_cmp_lt_u32 s36, 63')
    a(f's_cbranch_scc1 {name}_spl')
    a.label(f'{name}_done')

def gen_k3(a, name='chain_kernel'):
    a(f'.globl {name}\n.p2align 8\n.type {name},@function\n{name}:')
    a('s_cmp_ge_u32 s2, 256')
    a(f's_cbranch_scc1 {name}_end')
    a(f's_load_dwordx2 s[4:5], s[0:1], {KA_WS}')
    a(f's_load_dwordx2 s[6:7], s[0:1], {KA_DBG}')
    stamp_init(a)
    if STAMPS:
        a('s_mov_b32 s76, 0'); a('s_mov_b32 s77, 0'); a('s_mov_b32 s86, 0'); a('s_memrealtime s[78:79]'); a('s_memtime s[82:83]')
    a('s_getreg_b32 s23, hwreg(HW_REG_XCC_ID)')
    a('s_and_b32 s23, s23, 15')
    a('v_lshrrev_b32 v2, 6, v0')
    a('v_readfirstlane_b32 s22, v2')
    a('s_waitcnt lgkmcnt(0)')
    a('s_cmp_lg_u32 s23, 0')
    a(f's_cbranch_scc1 {name}_end')
    a('s_cmp_lg_u32 s22, 0')
    a(f's_cbranch_scc1 {name}_wait')
    a('v_mov_b32 v1, 0')
    a('v_mov_b32 v2, 1')
    a('s_mov_b64 exec, 1')
    a('global_atomic_add v3, v1, v2, s[6:7] sc0')
    a('s_waitcnt vmcnt(0)')
    a(f'v_mov_b32 v1, {L_MISC}')
    a('ds_write_b32 v1, v3')
    a('s_waitcnt lgkmcnt(0)')
    a('s_mov_b64 exec, -1')
    a.label(f'{name}_wait')
    a('s_barrier')
    a(f'v_mov_b32 v1, {L_MISC}')
    a('ds_read_b32 v3, v1')
    a('s_waitcnt lgkmcnt(0)')
    a('v_readfirstlane_b32 s24, v3')
    a('s_cmp_ge_u32 s24, 32')
    a(f's_cbranch_scc1 {name}_end')
    gen_chain(a, name)
    if STAMPS:
        a('s_memrealtime s[80:81]')
        a('s_memtime s[84:85]')
        a('s_waitcnt lgkmcnt(0) vmcnt(0)')
        a('s_mov_b64 exec, 1')
        a('s_lshl_b32 s3, s2, 2')
        a('s_add_u32 s3, s3, s22')
        a('s_lshl_b32 s3, s3, 4')
        a(f's_add_u32 s3, s3, {WS_STAMP + 3*0x20000}')
        a('s_sub_u32 s84, s84, s82')
        a('s_lshl_b32 s86, s86, 4')
        a('s_lshl_b32 s77, s77, 0')
        a('s_lshl_b32 s77, s77, 16')
        a('s_or_b32 s76, s76, s77')
        a('v_mov_b32 v0, s3')
        a('v_mov_b32 v4, s76'); a('v_mov_b32 v5, s86' if ENV('RT', 0) else 'v_mov_b32 v5, s84'); a('v_mov_b32 v6, s78'); a('v_mov_b32 v7, s80')
        a('global_store_dwordx4 v0, v[4:7], s[4:5]')
        a('s_nop 1')
    stamp_end(a, 2, n=9)
    a.label(f'{name}_end')
    a('s_endpgm')
    return dict(name=name, vgpr=256, agpr=256, sgpr=96, grid=256, block=256, lds=LDS_BYTES)
```

```python
from asmlib import *
from layout import *
import os
from k2 import gen_argmax
from prep import wait_flags

def gen_out_item(a, name, seg, cg, st_ld='', merged=False, mid=None):
    ws = 's[4:5]'
    UA, PB, ACC = 16, 96, 8
    a('s_mov_b32 s43, 0')
    a(f's_lshl_b32 s30, {cg}, 2')
    a('s_add_u32 s30, s30, s22')
    a(f's_mul_i32 s31, {seg}, 28')
    a('s_add_u32 s31, s31, s30')
    a('s_lshl_b32 s32, s31, 14')
    a(f's_add_u32 s32, s32, {WS_U + 4096}')
    a('v_add_u32 v2, s32, v1')
    for i in range(16):
        if i == 8: a('v_add_u32 v2, 8192, v2')
        a(f'global_load_dwordx4 {vr(UA+4*i,4)}, v2, {ws} offset:{1024*(i%8) - 4096} {st_ld}')
    def mld():
        a('s_lshl_b32 s32, s31, 12')
        a(f's_add_u32 s32, s32, {WS_M2}')
        a('v_add_u32 v2, s32, v4')
        for t in range(2):
            for u in range(2):
                for sel in range(2):
                    a(f'global_load_dwordx2 {vr(UA+64+8*t+4*u+2*sel,2)}, v2, {ws} offset:{2048*t+1024*u+256*sel} {st_ld}')
    a(f's_mul_i32 s32, {seg}, {16*2560}')
    a(f's_add_u32 s32, s32, {WS_PX}')
    a('s_add_u32 s44, s4, s32')
    a('s_addc_u32 s45, s5, 0')
    a(f's_lshl_b32 s33, {seg}, 5')
    a('s_mul_i32 s32, s33, 896')
    a('s_lshl_b32 s34, s30, 5')
    a('s_add_u32 s32, s32, s34')
    a('v_add_u32 v3, s32, v5')
    a(f'v_add_u32 v7, {16*896}, v3')
    a('global_load_dwordx2 v[132:133], v3, s[8:9]')
    a('global_load_dwordx2 v[134:135], v7, s[8:9]')
    a('s_lshl_b32 s32, s33, 3')
    a(f's_add_u32 s32, s32, {WS_G}')
    a('v_add_u32 v2, s32, v6')
    a(f'global_load_dwordx2 v[136:137], v2, {ws} sc1')
    a(f'global_load_dwordx2 v[138:139], v2, {ws} offset:128 sc1')
    if mid: mid()
    mld()
    LP = 0x1000
    def poffs():
        for k in range(20):
            for sel in range(2):
                for tt in range(2):
                    if k < 16:
                        off = k*2560 + tt*512 + sel*256; va = 128
                    else:
                        t, u = (k-16) // 2, k % 2
                        off = (8*t + 4*u + sel)*2560 + 2048 + tt*256; va = 129
                    yield k, ar(8*k + 4*tt + 2*sel, 2), va, off
    a('s_mul_i32 s32, s22, 10240')
    a('s_add_u32 s46, s44, s32')
    a('s_addc_u32 s47, s45, 0')
    a(f's_add_u32 s32, s32, {LP}')
    for i in range(10):
        if i % 4 == 0:
            a(f's_add_u32 m0, s32, {1024*i}')
            if i: a('s_add_u32 s46, s46, 4096'); a('s_addc_u32 s47, s47, 0')
        a(f'global_load_lds_dwordx4 v1, s[46:47] offset:{1024*(i%4)} {st_ld}')
    a('s_waitcnt vmcnt(0)')
    a('s_barrier')
    for k in range(16): a(f'v_swap_b32 v{UA+4*k+1}, v{UA+4*k+2}')
    def mf(k):
        for tt in range(2):
            acc = vr(ACC + 4*tt, 4)
            a(f'v_mfma_f32_16x16x32_bf16 {acc}, {vr(UA+4*k,4)}, {ar(8*k + 4*tt, 4)}, {acc if k else 0}')
    po = list(poffs())
    for k in range(20 + 3):
        if k < 20:
            for kk, dst, va, off in po[4*k:4*k+4]: a(f'ds_read_b64 {dst}, v{va} offset:{LP + off}')
        if k >= 3:
            a(f's_waitcnt lgkmcnt({min(12, 4*(22-k) if k >= 20 else 12)})')
            mf(k-3)
    a.label(f'{name}_pchk')
    a('v_add_f32 v140, v8, v12')
    a('v_add3_u32 v141, v9, v10, v11') if False else None
    a('v_add_f32 v141, v9, v10')
    a('v_add_f32 v140, v140, v11')
    a('v_add_f32 v140, v140, v141')
    a('v_cmp_u_f32 vcc, v140, v140')
    a(f's_cbranch_vccz {name}_pok')
    a('s_sub_u32 s42, s42, 2000')
    a(f's_cbranch_scc1 {name}_pgv')
    a('s_sleep 2')
    mld()
    cur_hi = None
    for kk, dst, va, off in po:
        hi = off // 4096
        if hi != cur_hi:
            a(f's_add_u32 s46, s44, {hi*4096}')
            a('s_addc_u32 s47, s45, 0')
            cur_hi = hi
        a(f'global_load_dwordx2 {dst}, v{va}, s[46:47] offset:{off % 4096} {st_ld}')
    a('s_waitcnt vmcnt(0)')
    for k in range(20): mf(k)
    a(f's_branch {name}_pchk')
    a.label(f'{name}_pgv')
    a('s_mov_b32 s42, 0')
    a.label(f'{name}_pok')
    a('s_sub_u32 s34, s40, s33')
    a('s_cmp_lt_u32 s34, 32')
    a(f's_cbranch_scc1 {name}_ffnrow')
    a.label(f'{name}_ffnret')
    for tt in range(2):
        A_ = ACC + 4*tt; X = 132 + 2*tt; G = 136 + 2*tt
        if tt == 0 or True:
            a(f'v_lshlrev_b32 v16, 16, v{X}')
            a(f'v_and_b32 v17, 0xffff0000, v{X}')
            a(f'v_lshlrev_b32 v18, 16, v{X+1}')
            a(f'v_and_b32 v19, 0xffff0000, v{X+1}')
        a(f'v_cvt_pk_bf16_f32 v20, v{A_}, v{A_+1}')
        a(f'v_cvt_pk_bf16_f32 v21, v{A_+2}, v{A_+3}')
        a('v_lshlrev_b32 v22, 16, v20')
        a('v_and_b32 v23, 0xffff0000, v20')
        a('v_lshlrev_b32 v24, 16, v21')
        a('v_and_b32 v25, 0xffff0000, v21')
        for i in range(4):
            a(f'v_mul_f32 v{22+i}, v{G}, v{22+i}')
            a(f'v_mul_f32 v{16+i}, v{G+1}, v{16+i}')
        a('v_cvt_pk_bf16_f32 v20, v22, v23')
        a('v_cvt_pk_bf16_f32 v21, v24, v25')
        a('v_cvt_pk_bf16_f32 v26, v16, v17')
        a('v_cvt_pk_bf16_f32 v27, v18, v19')
        for i in range(2):
            a(f'v_lshlrev_b32 v22, 16, v{20+i}')
            a(f'v_and_b32 v23, 0xffff0000, v{20+i}')
            a(f'v_lshlrev_b32 v24, 16, v{26+i}')
            a(f'v_and_b32 v25, 0xffff0000, v{26+i}')
            a('v_add_f32 v22, v22, v24')
            a('v_add_f32 v23, v23, v25')
            a(f'v_cvt_pk_bf16_f32 v{28+2*tt+i}, v22, v23')
        a(f'global_store_dwordx2 v{[3,7][tt]}, {vr(28+2*tt,2)}, s[10:11] {os.environ.get("OST", "")}')
    return

def gen_ffnrow(a, name, st_ld='', merged=False):
    ws = 's[4:5]'
    a.label(f'{name}_ffnrow')
    if merged: wait_flags(a, name, WS_FLG + F_FFN, 28, va=16, budget='s42')
    a('v_lshrrev_b32 v2, 4, v0')
    a('v_lshlrev_b32 v2, 4, v2')
    a('s_lshl_b32 s35, s30, 6')
    a(f's_add_u32 s35, s35, {WS_YP}')
    a('v_add_u32 v2, s35, v2')
    for i in range(4): a(f'v_mov_b32 v{16+i}, 0')
    for blk in range(2):
        for p in range(14):
            if p % 2 == 0 and (p or blk): a('v_add_u32 v2, 3584, v2')
            a(f'global_load_dwordx4 {vr(32+4*p,4)}, v2, {ws} offset:{1792*(p%2)} {st_ld}')
        a('s_waitcnt vmcnt(0)')
        for p in range(14):
            for i in range(4): a(f'v_add_f32 v{16+i}, v{16+i}, v{32+4*p+i}')
    a('v_cvt_pk_bf16_f32 v20, v16, v17')
    a('v_cvt_pk_bf16_f32 v21, v18, v19')
    a('v_lshlrev_b32 v16, 16, v20')
    a('v_and_b32 v17, 0xffff0000, v20')
    a('v_lshlrev_b32 v18, 16, v21')
    a('v_and_b32 v19, 0xffff0000, v21')
    for i in range(4): a(f'v_mul_f32 v{16+i}, s41, v{16+i}')
    a('v_cvt_pk_bf16_f32 v20, v16, v17')
    a('v_cvt_pk_bf16_f32 v21, v18, v19')
    a('v_lshlrev_b32 v16, 16, v20')
    a('v_and_b32 v17, 0xffff0000, v20')
    a('v_lshlrev_b32 v18, 16, v21')
    a('v_and_b32 v19, 0xffff0000, v21')
    a('v_and_b32 v2, 15, v0')
    for tt in range(2):
        X = 132 + 2*tt
        a(f'v_lshlrev_b32 v22, 16, v{X}')
        a(f'v_and_b32 v23, 0xffff0000, v{X}')
        a(f'v_lshlrev_b32 v24, 16, v{X+1}')
        a(f'v_and_b32 v25, 0xffff0000, v{X+1}')
        for i in range(4): a(f'v_add_f32 v{22+i}, v{22+i}, v{16+i}')
        a('v_cvt_pk_bf16_f32 v20, v22, v23')
        a('v_cvt_pk_bf16_f32 v21, v24, v25')
        a(f's_sub_u32 s35, s34, {16*tt}')
        a('v_cmp_eq_u32 vcc, s35, v2')
        a(f'v_cndmask_b32 v{X}, v{X}, v20, vcc')
        a(f'v_cndmask_b32 v{X+1}, v{X+1}, v21, vcc')
    a(f's_branch {name}_ffnret')

def out_setup(a):
    a(f's_load_dwordx2 s[8:9], s[0:1], {KA_X}')
    a(f's_load_dwordx2 s[10:11], s[0:1], {KA_OUT}')
    a('v_and_b32 v0, 63, v0')
    a('v_lshlrev_b32 v1, 4, v0')
    a('v_and_b32 v2, 15, v0')
    a('v_lshrrev_b32 v3, 4, v0')
    a('v_lshrrev_b32 v4, 1, v3')
    a('v_lshlrev_b32 v4, 9, v4')
    a('v_and_b32 v5, 1, v3')
    a('v_lshl_add_u32 v4, v5, 7, v4')
    a('v_lshl_add_u32 v4, v2, 3, v4')
    a('v_lshrrev_b32 v129, 1, v3')
    a('v_mul_u32_u24 v129, 5120, v129')
    a('v_lshl_add_u32 v129, v5, 7, v129')
    a('v_lshl_add_u32 v129, v2, 3, v129')
    a('v_and_b32 v128, 31, v0')
    a('v_lshlrev_b32 v128, 3, v128')
    a('v_lshrrev_b32 v130, 5, v0')
    a('v_lshl_add_u32 v128, v130, 10, v128')
    a('v_mul_u32_u24 v5, 896, v2')
    a('v_lshl_add_u32 v5, v3, 3, v5')
    a('v_lshlrev_b32 v6, 3, v2')
    a('v_and_b32 v130, 31, v0')
    a('v_lshrrev_b32 v131, 1, v130')
    a('v_mul_u32_u24 v131, 2560, v131')
    a('v_and_b32 v130, 1, v130')
    a('v_lshl_add_u32 v130, v130, 8, v131')
    a('v_add_u32 v130, 2048, v130')

def gen_k5(a, name='out_kernel'):
    a(f'.globl {name}\n.p2align 8\n.type {name},@function\n{name}:')
    a('s_cmp_ge_u32 s2, 448')
    a(f's_cbranch_scc1 {name}_end')
    a(f's_load_dwordx2 s[4:5], s[0:1], {KA_WS}')
    a('v_lshrrev_b32 v2, 6, v0')
    a('v_readfirstlane_b32 s22, v2')
    a('s_waitcnt lgkmcnt(0)')
    gen_argmax(a)
    a('s_mov_b32 s40, s27')
    out_setup(a)
    a('s_mul_i32 s24, s2, 9363')
    a('s_lshr_b32 s24, s24, 16')
    a('s_mul_i32 s25, s24, 7')
    a('s_sub_u32 s25, s2, s25')
    a('s_waitcnt lgkmcnt(0)')
    gen_out_item(a, name, 's24', 's25')
    a('s_endpgm')
    gen_ffnrow(a, name)
    a.label(f'{name}_end')
    a('s_endpgm')
    return dict(name=name, vgpr=144, agpr=160, sgpr=64, grid=448, block=256, lds=64)
```

```python
from asmlib import *
from layout import *
from k1 import stamp, stamp_end, stamp_init
from k2 import gen_ugemm, gen_ffn, gen_argmax
from k3 import gen_chain, L_MISC, LDS_BYTES, ENV
from k4 import gen_hs
from prep import gen_img_job, wait_flags, wait_arrivals, get_tag, WgWait, wait_prog
from k6 import gen_mjob
from k5 import gen_out_item, gen_ffnrow, out_setup

NS_REP = 4
import os

def gen_main(a, name='main_kernel'):
    a(f'.globl {name}\n.p2align 8\n.type {name},@function\n{name}:')
    a('s_cmp_ge_u32 s2, 256')
    a(f's_cbranch_scc1 {name}_end')
    a(f's_load_dwordx2 s[4:5], s[0:1], {KA_WS}')
    a(f's_load_dwordx2 s[6:7], s[0:1], {KA_DBG}')
    stamp_init(a)
    if ENV('DBGT', 0):
        a('s_mov_b32 s88, 0'); a('s_memrealtime s[78:79]'); a('s_memtime s[82:83]')
    if STAMPS:
        a('s_mov_b32 s76, 0'); a('s_mov_b32 s77, 0'); a('s_mov_b32 s86, 0'); a('s_mov_b32 s87, 0'); a('s_mov_b32 s88, 0'); a('s_memrealtime s[78:79]'); a('s_memtime s[82:83]')
    a('s_memrealtime s[16:17]')
    a('s_getreg_b32 s23, hwreg(HW_REG_XCC_ID)')
    a('s_and_b32 s23, s23, 7')
    if ENV('FAKEXCC', 0) == 1:
        a('s_and_b32 s23, s2, 3'); a('s_add_u32 s23, s23, 1')
    if ENV('FAKEXCC', 0) == 2:
        a('s_mul_i32 s23, s2, 5'); a('s_and_b32 s23, s23, 15'); a('s_min_u32 s23, s23, 5')
    a('v_lshrrev_b32 v2, 6, v0')
    a('v_readfirstlane_b32 s22, v2')
    a('s_waitcnt lgkmcnt(0)')
    if ENV('CPF', 0):
        a('s_getpc_b64 s[10:11]')
        a('s_lshr_b32 s24, s2, 3')
        a('s_lshl_b32 s24, s24, 2')
        a('s_add_u32 s24, s24, s22')
        a('s_mul_i32 s25, s24, 5462')
        a('s_lshr_b32 s25, s25, 16')
        a('s_mul_i32 s25, s25, 12')
        a('s_sub_u32 s24, s24, s25')
        a('s_lshl_b32 s24, s24, 13')
        a('v_and_b32 v9, 63, v0')
        a('v_lshlrev_b32 v9, 7, v9')
        a('v_add_u32 v9, s24, v9')
        a(f'v_min_u32 v9, CODE_BYTES, v9')
        a('global_load_dword v10, v9, s[10:11]')
    a('s_cmp_lg_u32 s22, 0')
    a(f's_cbranch_scc1 {name}_wait')
    a('s_mov_b64 exec, 1')
    a('s_and_b32 s24, s23, 3')
    a('s_lshl_b32 s24, s24, 6')
    a('s_lshr_b32 s25, s23, 2')
    a('s_lshl_b32 s25, s25, 2')
    a('s_add_u32 s24, s24, s25')
    a('v_mov_b32 v1, s24')
    a('v_mov_b32 v2, 1')
    a('global_atomic_add v3, v1, v2, s[6:7] sc0')
    a('s_waitcnt vmcnt(0)')
    a('v_readfirstlane_b32 s24, v3')
    a('v_mov_b32 v1, 0')
    a('s_cmp_lg_u32 s24, 0')
    a(f's_cbranch_scc1 {name}_notag')
    a('s_or_b32 s20, s16, 1')
    a('v_mov_b32 v6, s20')
    a('v_mov_b32 v7, 0')
    a(f'global_atomic_cmpswap v1, v[6:7], s[6:7] offset:{DBG_TAG}')
    a.label(f'{name}_notag')
    a('s_lshl_b32 s25, s23, 5')
    a('s_add_u32 s25, s25, s24')
    a('v_mov_b32 v3, s25')
    a('s_cmp_lt_u32 s24, 32')
    a(f's_cbranch_scc1 {name}_pub')
    a(f'global_atomic_add v3, v1, v2, s[6:7] offset:{DBG_OVF} sc0')
    a('s_mov_b32 s40, 1000000')
    wait_arrivals(a, name + '_o')
    a('v_readfirstlane_b32 s24, v3')
    a('s_mov_b32 s26, 255')
    for x in range(8):
        lx = a.newlabel('ovf')
        a(f'v_readfirstlane_b32 s25, v{8 + 2*(x%4) + x//4}')
        a('s_min_u32 s25, s25, 32')
        a('s_sub_u32 s27, 32, s25')
        a('s_cmp_lt_u32 s24, s27')
        a(f's_cbranch_scc0 {lx}')
        a('s_add_u32 s26, s24, s25')
        a(f's_add_u32 s26, s26, {32*x}')
        a(f's_branch {name}_ovd')
        a.label(lx)
        a('s_sub_u32 s24, s24, s27')
    a.label(f'{name}_ovd')
    a('v_mov_b32 v3, s26')
    a.label(f'{name}_pub')
    a(f'v_mov_b32 v1, {L_MISC}')
    a('ds_write_b32 v1, v3')
    a('s_waitcnt lgkmcnt(0)')
    a('s_mov_b64 exec, -1')
    a.label(f'{name}_wait')
    a('s_barrier')
    a(f'v_mov_b32 v1, {L_MISC}')
    a('ds_read_b32 v2, v1')
    a('s_waitcnt lgkmcnt(0)')
    a('v_readfirstlane_b32 s24, v2')
    a('s_cmp_ge_u32 s24, 32')
    a(f's_cbranch_scc1 {name}_helper')
    gen_chain(a, name + '_c', merged=True)
    a(f's_branch {name}_fin')
    a.label(f'{name}_helper')
    a('s_sub_u32 s24, s24, 32')
    a('v_mov_b32 v250, v0')
    a('s_mov_b32 s38, s24')
    a('s_and_b32 s21, s24, 31')
    a('s_mul_i32 s21, s21, 7')
    a('s_lshr_b32 s25, s24, 5')
    a('s_add_u32 s21, s21, s25')
    a('s_mov_b32 s24, s21')
    if STAMPS: a('s_add_u32 s74, s21, 100')
    a('s_sub_u32 s25, s24, 140')
    a(f's_cmp_ge_u32 s25, {16*NS_REP}')
    a(f's_cbranch_scc1 {name}_nopf')
    a('s_cmp_ge_u32 s22, 3')
    a(f's_cbranch_scc1 {name}_nopf')
    a('s_mul_i32 s25, s25, 2560')
    a(f's_add_u32 s25, s25, {WS_PX}')
    a('v_min_u32 v1, 159, v0')
    a('v_lshlrev_b32 v1, 4, v1')
    a('v_add_u32 v1, s25, v1')
    for r in range(4): a(f'v_mov_b32 v{4+r}, -1')
    for i in range(64 // NS_REP):
        a('global_store_dwordx4 v1, v[4:7], s[4:5] sc1')
        a(f'v_add_u32 v1, {NS_REP*16*2560}, v1')
    a.label(f'{name}_nopf')
    a('s_sub_u32 s25, s24, 112')
    a('s_cmp_ge_u32 s25, 28')
    a(f's_cbranch_scc1 {name}_nopm')
    a('s_lshl_b32 s25, s25, 12')
    a(f's_add_u32 s25, s25, {WS_M2 + 63*28*4096}')
    a('v_lshlrev_b32 v1, 4, v0')
    a('v_add_u32 v1, s25, v1')
    for r in range(4): a(f'v_mov_b32 v{4+r}, -1')
    a('global_store_dwordx4 v1, v[4:7], s[4:5] sc1')
    a('s_nop 1')
    a.label(f'{name}_nopm')
    a('s_lshr_b32 s25, s38, 3')
    a('s_mul_i32 s26, s25, 9363')
    a('s_lshr_b32 s26, s26, 16')
    a('s_mul_i32 s27, s26, 7')
    a('s_sub_u32 s27, s25, s27')
    a('s_lshl_b32 s26, s26, 3')
    a('s_and_b32 s25, s38, 7')
    a('s_add_u32 s26, s26, s25')
    a('s_mul_i32 s39, s26, 7')
    a('s_add_u32 s39, s39, s27')
    gen_img_job(a, name, 's39', unit='s21')
    a('s_barrier')
    a('v_mov_b32 v0, v250')
    a('s_mov_b32 s24, s21')
    if ENV('BISECT', 0) == 1 or ENV('NOH', 0): a(f's_branch {name}_fin')
    a('s_cmp_lt_u32 s24, 112')
    a(f's_cbranch_scc1 {name}_hu')
    a('s_cmp_lt_u32 s24, 140')
    a(f's_cbranch_scc1 {name}_hf')
    a(f's_cmp_lt_u32 s24, {140 + 16*NS_REP}')
    a(f's_cbranch_scc1 {name}_hs')
    a(f's_branch {name}_ho')
    a.label(f'{name}_hu')
    gen_ugemm(a, name, 's24', 's22', ENV('UN', 16), 4, st=os.environ.get('UST', 'sc1'), sig=True)
    a(f's_cmp_lt_u32 s24, {ENV("NUO", 28)}')
    a(f's_cbranch_scc0 {name}_fin')
    a(f's_branch {name}_ho')
    a.label(f'{name}_hf')
    if ENV('NOF', 0): a(f's_branch {name}_fin')
    a('s_sub_u32 s24, s24, 112')
    a('s_mov_b32 s40, 1000000')
    a('v_and_b32 v3, 63, v0')
    with WgWait(a): wait_prog(a, name, 1, va=4, sleep=80)
    gen_ffn(a, name, st='sc1')
    gen_mjob(a, name, 's24')
    a(f's_branch {name}_fin')
    a.label(f'{name}_hs')
    if ENV('NOS', 0): a(f's_branch {name}_fin')
    a('s_sub_u32 s24, s24, 140')
    a('s_lshr_b32 s25, s24, 4')
    a('s_and_b32 s24, s24, 15')
    a('s_mov_b32 s40, 1000000')
    a('v_and_b32 v3, 63, v0')
    a('s_mul_i32 s26, s24, 112')
    a(f's_add_u32 s26, s26, {WS_FLG + F_IMG}')
    with WgWait(a, True):
        wait_prog(a, name, 1, va=4, sleep=80)
        wait_flags(a, name, 's26', 28, lane='v3', va=4)
    gen_hs(a, name, 's24', 's25', 64 // NS_REP, NS_REP, merged=True)
    a(f's_branch {name}_fin')
    a.label(f'{name}_ho')
    if ENV('NOO', 0): a(f's_branch {name}_fin')
    a('s_waitcnt vmcnt(0) lgkmcnt(0)')
    a('v_mov_b32 v0, v250')
    a('s_mov_b32 s40, 1000000')
    a('v_and_b32 v3, 63, v0')
    with WgWait(a):
        wait_prog(a, name, 1, va=4, sleep=80)
        wait_flags(a, name, WS_FLG + F_IMG, 896, lane='v3', va=4, sleep=40)
    gen_argmax(a)
    a('s_mov_b32 s40, s27')
    out_setup(a)
    a('s_mov_b32 s42, 2000000')
    a('v_cmp_gt_u32 s[48:49], 32, v0')
    a('v_and_b32 v131, 15, v0')
    a('v_lshlrev_b32 v131, 2, v131')
    a(f'v_add_u32 v131, {WS_FLG + F_M}, v131')
    a('s_waitcnt lgkmcnt(0)')
    a.label(f'{name}_oloop')
    a('s_waitcnt vmcnt(0)')
    with WgWait(a):
        a('s_mov_b64 exec, 1')
        a('v_mov_b32 v2, 0')
        a('v_mov_b32 v3, 1')
        a(f'global_atomic_add v7, v2, v3, s[6:7] offset:{DBG_OT} sc0')
        a('s_waitcnt vmcnt(0)')
        a('ds_write_b32 v2, v7 offset:64')
        a('s_mov_b64 exec, -1')
        a('v_readfirstlane_b32 s26, v7')
        a('s_min_u32 s26, s26, 447')
        a('s_mul_i32 s24, s26, 9363')
        a('s_lshr_b32 s24, s24, 16')
        a('s_mul_i32 s25, s24, 7')
        a('s_sub_u32 s25, s26, s25')
        a('s_mul_i32 s30, s24, 448')
        a('s_lshl_b32 s31, s25, 6')
        a('s_add_u32 s30, s30, s31')
        a(f's_add_u32 s30, s30, {WS_FLG + F_U}')
        wait_flags(a, name, 's30', 16, va=140, sleep=30, budget='s42')
        a('s_waitcnt lgkmcnt(0)')
    a('v_mov_b32 v2, 0')
    a('ds_read_b32 v7, v2 offset:64')
    a('s_waitcnt lgkmcnt(0)')
    a('v_readfirstlane_b32 s26, v7')
    a('s_cmp_ge_u32 s26, 448')
    a(f's_cbranch_scc1 {name}_fin')
    a('s_mul_i32 s24, s26, 9363')
    a('s_lshr_b32 s24, s24, 16')
    a('s_mul_i32 s25, s24, 7')
    a('s_sub_u32 s25, s26, s25')
    def mid():
        with WgWait(a):
            a(f's_mul_i32 s32, s24, {16*2560}')
            a(f's_add_u32 s32, s32, {WS_PX}')
            a('v_add_u32 v140, s32, v130')
            a('s_mul_i32 s32, s24, 448')
            a('s_lshl_b32 s35, s25, 6')
            a('s_add_u32 s32, s32, s35')
            a('v_add_u32 v141, s32, v131')
            a('v_cndmask_b32 v140, v141, v140, s[48:49]')
            a('s_cmp_eq_u32 s24, 63')
            a('s_cselect_b32 s35, 0, -1')
            a.label(f'{name}_pw')
            a('global_load_dword v141, v140, s[4:5] sc1')
            a('s_waitcnt vmcnt(0)')
            a('v_cmp_eq_u32 vcc, -1, v141')
            a('v_cmp_ne_u32 s[50:51], s20, v141')
            a('s_and_b32 vcc_hi, s51, s35')
            a('s_cmp_eq_u64 vcc, 0')
            a(f's_cbranch_scc1 {name}_cwd')
            a('s_sleep 2')
            a('s_cmp_ge_u32 s24, 61')
            a(f's_cbranch_scc1 {name}_pws')
            a(f's_sleep {ENV("OSLP", 24)}')
            a.label(f'{name}_pws')
            a('s_sub_u32 s42, s42, 1')
            a(f's_cbranch_scc0 {name}_pw')
            a('s_mov_b32 s42, 0')
            a.label(f'{name}_cwd')
    gen_out_item(a, name, 's24', 's25', st_ld='sc1', merged=True, mid=mid)
    a(f's_branch {name}_oloop')
    gen_ffnrow(a, name, st_ld='sc1', merged=True)
    a.label(f'{name}_fin')
    if STAMPS:
        a('s_memrealtime s[80:81]')
        a('s_memtime s[84:85]')
        a('s_waitcnt lgkmcnt(0) vmcnt(0)')
        a('s_mov_b64 exec, 1')
        a('s_lshl_b32 s3, s2, 2')
        a('s_add_u32 s3, s3, s22')
        a('s_lshl_b32 s3, s3, 4')
        a(f's_add_u32 s3, s3, {WS_STAMP + 3*0x20000}')
        a('s_sub_u32 s84, s84, s82')
        a('s_lshl_b32 s86, s87, 24')
        a('s_or_b32 s76, s76, s86')
        a('s_lshl_b32 s77, s77, 16')
        a('s_or_b32 s76, s76, s77')
        a('v_mov_b32 v0, s3')
        a('v_mov_b32 v4, s84' if ENV('CLK', 0) else 'v_mov_b32 v4, s76'); a('v_mov_b32 v5, s88'); a('v_mov_b32 v6, s78'); a('v_mov_b32 v7, s80')
        a('global_store_dwordx4 v0, v[4:7], s[4:5]')
        a('s_nop 1')
    stamp_end(a, 2, n=9)
    if ENV('DBGT', 0):
        a('s_memrealtime s[80:81]')
        a('s_memtime s[84:85]')
        a('s_waitcnt lgkmcnt(0) vmcnt(0)')
        a('s_mov_b64 exec, 1')
        a('s_cmp_lg_u32 s22, 0')
        a(f's_cbranch_scc1 {name}_end')
        a('v_mov_b32 v0, 0')
        a('s_not_b32 s78, s78')
        a('v_mov_b32 v4, s78'); a('global_atomic_umax v0, v4, s[6:7] offset:16')
        a('v_mov_b32 v5, s88'); a('global_atomic_umax v0, v5, s[6:7] offset:20')
        a('v_mov_b32 v6, s80'); a('global_atomic_umax v0, v6, s[6:7] offset:24')
        a('s_cmp_eq_u32 s88, 0')
        a(f's_cbranch_scc1 {name}_end')
        a('global_atomic_umax v0, v6, s[6:7] offset:28')
        a('s_sub_u32 s84, s84, s82')
        a('v_mov_b32 v7, s84'); a('global_atomic_umax v0, v7, s[6:7] offset:32')
    a.label(f'{name}_end')
    a('s_endpgm')
    a(f'.set CODE_BYTES, {name}_end - {name} - 256')
    return dict(name=name, vgpr=256, agpr=256, sgpr=96, grid=256, block=256, lds=LDS_BYTES)
```

```python
from asmlib import *
from layout import *
from k1 import stamp, stamp_end, stamp_init
import os
from prep import wait_flags, gen_chain_prep, set_flag, WgWait
ENV = lambda k, d: int(os.environ.get(k, d))

L_MEM, L_T, L_S, L_MISC, L_STASH, L_K1, L_U = 0, 0xC000, 0x6000, 0x9400, 0x9800, 0xA000, 0x10000
L_MS = 0x2000
LDS_BYTES = 0x28000
L_MX, L_W8 = 0x2000, 0x4000
L_UV = 0x18000
MA, ACC, SACC, TB, TBZ, K0, KM0, K2, CV, IDX, KM1 = 8, 36, 64, 76, 84, 88, 96, 100, 108, 112, 116
PA, MB, UB, PACC = 8, 48, 64, 96
LOG2E = 0x3fb8aa3b
A_FST, A_FL, A_TW, A_TR, A_MK, A_SR, A_PST, A_SW = 0, 2, 5, 6, 7, 113, 114, 115
A_XK = 87
A_MST = 114
A_CP = 113
A_UR, A_ML, A_MEMST, A_PERM = 100, 101, 102, 103
FR = (104, 105, 106)
TMP = 119
XKF = os.environ.get('XKF', 'sc1')
TMP2 = 99
NREP = ENV('NREP', 4)
RMASK = (1 << NREP) - 1
A_DM = 0

def cstamp(a, i, step=30):
    if not STAMPS or ENV('NOCST', 0): return
    l = a.newlabel('cst')
    a(f's_cmp_lg_u32 s36, {step}')
    a(f's_cbranch_scc1 {l}')
    a(f's_mem{"real" if ENV("RT",0) else ""}time s[{60+2*i}:{61+2*i}]')
    a('s_waitcnt lgkmcnt(0)')
    a.label(l)

def W(j, t):
    g = 7*j + t
    return ar(8*g, 8) if g < 32 else vr(120 + 8*(g-32), 8)

def max_ops(regs, tmp, first=True):
    r = list(regs); out = []
    while r:
        if first:
            if len(r) >= 3: out.append(f'v_max3_u32 v{tmp}, v{r[0]}, v{r[1]}, v{r[2]}'); r = r[3:]
            else: out.append(f'v_max_u32 v{tmp}, v{r[0]}, v{r[1]}'); r = r[2:]
            first = False
        elif len(r) >= 2: out.append(f'v_max3_u32 v{tmp}, v{tmp}, v{r[0]}, v{r[1]}'); r = r[2:]
        else: out.append(f'v_max_u32 v{tmp}, v{tmp}, v{r[0]}'); r = r[1:]
    return out

class Cnt:
    def __init__(self): self.n = 0; self.last = {}
    def reset(self): self.n = 0; self.last = {}
    def issue(self, tag): self.n += 1; self.last[tag] = self.n
    def need(self, tag): return self.n - self.last[tag]

def sadd64(a, lo, imm):
    a(f's_add_u32 s{lo}, s{lo}, {imm}')
    a(f's_addc_u32 s{lo+1}, s{lo+1}, 0')

def flag_ld(r): return f'global_load_dword v{r}, v{A_FL}, s[46:47] sc1'

def flag_poll(a, name, FR=FR, gap=7):
    L = a.newlabel(name + '_fp'); D = a.newlabel(name + '_fd')
    n = len(FR)
    for r in FR[:n-1]:
        a(flag_ld(r))
        a(f's_nop {gap}')
    a.label(L)
    for j in range(n):
        a(flag_ld(FR[(j+n-1) % n]))
        a(f's_waitcnt vmcnt({n-1})')
        a(f'v_cmp_eq_u32 vcc, -1, v{FR[j]}')
        a(f's_cbranch_vccz {D}')
    a('s_sub_u32 s40, s40, 1')
    a(f's_cbranch_scc0 {L}')
    a('s_mov_b32 s40, 0')
    a.label(D)

def gen_chain(a, name, role='s24', merged=False):
    ws = 's[4:5]'
    NEG = 104
    a('s_mov_b32 s40, 2000000')
    if merged:
        gen_chain_prep(a, name, role)
        if ENV('BISECT', 0) == 1: a(f's_branch {name}_done')
        a('v_and_b32 v0, 63, v0')
        stamp(a, 1)
    a('v_and_b32 v0, 63, v0')
    a('v_lshlrev_b32 v1, 4, v0')
    a(f's_and_b32 s25, {role}, 15')
    a(f's_lshr_b32 s26, {role}, 4')
    a('s_lshl_b32 s29, s22, 1')
    a(f's_cmp_ge_u32 {role}, 30')
    a(f's_cbranch_scc1 {name}_spare')
    a('s_lshr_b32 s37, s25, 1')
    if merged:
        with WgWait(a): wait_flags(a, name, WS_FLG + F_XP + 512, 128, va=16, sleep=8)
        a('s_waitcnt vmcnt(0)')
    if ENV('BISECT', 0) == 3:
        a('s_mov_b32 s88, 1'); a(f's_branch {name}_done')
    def sbase(lo, off):
        a(f's_add_u32 s{lo}, s4, {off}')
        a(f's_addc_u32 s{lo+1}, s5, 0')
    C, G, T1, T2, T3 = 8, 9, 10, 11, 12
    a(f'v_and_b32 v{C}, 15, v0')
    a(f'v_lshrrev_b32 v{G}, 4, v0')
    a(f'v_and_b32 v{T1}, 1, v0')
    a(f'v_cmp_eq_u32 vcc, 1, v{T1}')
    a(f'v_mov_b32 v{IDX}, 0x4444')
    a(f'v_mov_b32 v{T1}, 0xeeee')
    a(f'v_cndmask_b32 v{IDX}, v{IDX}, v{T1}, vcc')
    a('v_add_u32 v3, 4096, v1')
    a('v_add_u32 v4, 8192, v1')
    for r in (5, 6, 7, 100, 101, 102, 103, 105, 113, 114, 115, 116): a(f'v_mov_b32 v{r}, v1')
    a(f's_lshl_b32 s30, {role}, 2')
    a('s_add_u32 s30, s30, s22')
    a('s_mul_i32 s30, s30, 4608')
    a(f's_add_u32 s30, s30, {WS_RING + 4096}')
    a(f'v_add_u32 v{T1}, s30, v1')
    for i in range(5): a(f'global_load_dwordx4 {vr(16+4*i,4)}, v{T1}, {ws} offset:{1024*i-4096 if i < 4 else -512} sc1')
    for lo in (8, 10, 12, 14, 52, 54, 56, 58): sbase(lo, WS_RING + 4*RS)
    sbase(44, WS_MEM2)
    sbase(46, WS_RING)
    sbase(48, WS_RING + 3*RS)
    sbase(50, WS_RING + RS)
    a(f's_mov_b32 s38, {2*RS}')
    a('s_mov_b32 s36, 0')
    a(f's_and_b32 s31, {role}, {NREP-1}')
    a('s_lshl_b32 s31, s31, 8')
    a(f's_add_u32 s31, s31, {R_FM}')
    a(f'v_min_u32 v{A_FL}, 27, v0')
    a(f'v_lshlrev_b32 v{A_FL}, 2, v{A_FL}')
    a(f'v_add_u32 v{A_FL}, s31, v{A_FL}')
    a('s_cmp_eq_u32 s26, 1')
    a(f's_cbranch_scc1 {name}_vsetup')
    if ENV('NOB0', 0):
        NSUB = ENV('NSUB', 12)
        a(f'v_min_u32 v{T1}, {NSUB-1}, v0')
        a('s_lshl_b32 s30, s22, 3')
        a(f'v_add_u32 v{T1}, s30, v{T1}')
        a(f'v_subrev_u32 v{T2}, 28, v{T1}')
        a(f'v_min_u32 v{T1}, v{T1}, v{T2}')
        a(f'v_lshlrev_b32 v{A_FL}, 2, v{T1}')
        a(f'v_add_u32 v{A_FL}, s31, v{A_FL}')
    a('s_lshl_b32 s30, s22, 12')
    a(f's_add_u32 s30, s30, {L_T}')
    a(f'v_lshlrev_b32 v{A_TW}, 5, v{C}')
    a(f'v_lshrrev_b32 v{T1}, 2, v{C}')
    a(f'v_lshrrev_b32 v{T2}, 1, v{G}')
    a(f'v_xor_b32 v{T1}, v{T1}, v{T2}')
    a(f'v_lshl_add_u32 v{A_TW}, v{T1}, 3, v{A_TW}')
    a(f'v_and_b32 v{T2}, 1, v{G}')
    a(f'v_lshl_add_u32 v{A_TW}, v{T2}, 2, v{A_TW}')
    a(f'v_add_u32 v{A_TW}, s30, v{A_TW}')
    a(f'v_add_u32 v{T1}, s30, v1')
    for r in range(4): a(f'v_mov_b32 v{16+r}, 0')
    a('s_waitcnt vmcnt(0)')
    for r in range(4): a(f'v_mov_b32 v{16+r}, 0')
    for i in range(4): a(f'ds_write_b128 v{T1}, v[16:19] offset:{1024*i}')
    a(f'v_and_b32 v{T1}, 3, v0')
    a(f'v_xor_b32 v{T1}, v{T1}, v{G}')
    a(f'v_lshrrev_b32 v{A_TR}, 2, v0')
    a(f'v_lshlrev_b32 v{A_TR}, 5, v{A_TR}')
    a(f'v_lshl_add_u32 v{A_TR}, v{T1}, 3, v{A_TR}')
    a(f'v_add_u32 v{A_TR}, s30, v{A_TR}')
    a(f'v_lshrrev_b32 v{T1}, 1, v{G}')
    a(f'v_and_b32 v{T2}, 1, v{G}')
    a(f'v_lshlrev_b32 v{A_MK}, 4, v{T1}')
    a(f'v_lshl_add_u32 v{A_MK}, v{T2}, 3, v{A_MK}')
    a(f'v_and_b32 v{T3}, 7, v0')
    a(f'v_lshl_add_u32 v{A_MK}, v{T3}, 5, v{A_MK}')
    a('s_mul_i32 s30, s22, 14')
    a('s_and_b32 s30, s30, 7')
    a('s_lshl_b32 s30, s30, 7')
    a('s_mul_i32 s31, s22, 3072')
    a('s_add_u32 s30, s30, s31')
    a(f'v_add_u32 v{A_MK}, s30, v{A_MK}')
    a(f'v_mul_u32_u24 v{A_SW}, 208, v{C}')
    a(f'v_lshl_add_u32 v{A_SW}, v{G}, 4, v{A_SW}')
    a('s_mul_i32 s30, s22, 3328')
    a(f's_add_u32 s30, s30, {L_S}')
    a(f'v_add_u32 v{A_SW}, s30, v{A_SW}')
    a(f'v_lshrrev_b32 v{T1}, 5, v0')
    a(f'v_add_u32 v{T1}, s29, v{T1}')
    a(f'v_and_b32 v{T2}, 31, v0')
    a(f'v_mul_u32_u24 v{A_SR}, 208, v{T1}')
    a(f'v_lshl_add_u32 v{A_SR}, v{T2}, 3, v{A_SR}')
    a(f'v_add_u32 v{A_SR}, {L_S}, v{A_SR}')
    a(f'v_lshrrev_b32 v{A_PST}, 3, v{T2}')
    a(f'v_lshlrev_b32 v{A_PST}, 8, v{A_PST}')
    a(f'v_and_b32 v{T3}, 7, v{T2}')
    a(f'v_lshl_add_u32 v{A_PST}, v{T3}, 2, v{A_PST}')
    a('s_lshl_b32 s30, s25, 9')
    a(f'v_add_u32 v{A_PST}, s30, v{A_PST}')
    a(f'v_and_b32 v{C}, 3, v{T2}')
    a(f'v_lshlrev_b32 v{C}, 2, v{C}')
    a('s_lshr_b32 s30, s25, 1')
    a('s_lshl_b32 s30, s30, 8')
    a('s_and_b32 s31, s25, 1')
    a('s_lshl_b32 s32, s31, 4')
    a('s_add_u32 s30, s30, s32')
    a('s_add_u32 s30, s30, 8192')
    a(f'v_add_u32 v{C}, s30, v{C}')
    a(f'v_cmp_lt_u32 vcc, 15, v{T2}')
    a(f'v_cndmask_b32 v{A_PST}, v{A_PST}, v{C}, vcc')
    a(f'v_lshl_add_u32 v{A_PST}, v{T1}, 5, v{A_PST}')
    a(f'v_cmp_gt_u32 vcc, 20, v{T2}')
    a('s_mov_b64 s[42:43], vcc')
    a('s_lshl_b32 s31, s25, 2')
    a(f's_add_u32 s31, s31, {R_FP}')
    a(f'v_lshlrev_b32 v{A_FST}, 8, v0')
    a(f'v_add_u32 v{A_FST}, s31, v{A_FST}')
    a('s_lshl_b32 s30, s22, 13')
    a(f's_add_u32 s30, s30, {WS_XK}')
    sbase(54, 's30')
    a('s_lshl_b32 s30, s25, 2')
    a('s_add_u32 s30, s30, s22')
    a(f's_mul_i32 s30, s30, {7168}')
    a(f's_add_u32 s30, s30, {WS_U + 2*28*16384}')
    sbase(8, 's30')
    a(f's_branch {name}_go')
    a.label(f'{name}_vsetup')
    a('s_and_b32 s33, s22, 1')
    a('s_lshl_b32 s30, s25, 1')
    a('s_add_u32 s33, s33, s30')
    a('s_and_b32 s30, s22, 1')
    a('s_lshl_b32 s31, s30, 14')
    a(f's_add_u32 s31, s31, {L_UV}')
    a(f'v_add_u32 v{A_UR}, s31, v1')
    a('s_lshl_b32 s31, s30, 12')
    a(f's_add_u32 s31, s31, {L_MX}')
    a(f'v_add_u32 v{A_ML}, s31, v1')
    a(f'v_lshrrev_b32 v{A_MEMST}, 3, v{C}')
    a(f'v_lshlrev_b32 v{A_MEMST}, 4, v{A_MEMST}')
    a(f'v_lshl_add_u32 v{A_MEMST}, v{G}, 6, v{A_MEMST}')
    a(f'v_and_b32 v{T3}, 1, v{C}')
    a(f'v_lshl_add_u32 v{A_MEMST}, v{T3}, 5, v{A_MEMST}')
    a(f'v_bfe_u32 v{A_PERM}, v{C}, 1, 2')
    a(f'v_lshl_add_u32 v{A_MEMST}, v{A_PERM}, 2, v{A_MEMST}')
    a('s_lshl_b32 s30, s33, 8')
    a(f's_add_u32 s30, s30, {R_MEM}')
    a(f'v_add_u32 v{A_MEMST}, s30, v{A_MEMST}')
    a(f'v_cmp_eq_u32 vcc, 1, v{T3}')
    a(f'v_mov_b32 v{A_PERM}, 0x01000504')
    a(f'v_mov_b32 v{T3}, 0x07060302')
    a(f'v_cndmask_b32 v{A_PERM}, v{A_PERM}, v{T3}, vcc')
    a(f'v_lshrrev_b32 v{T1}, 1, v{G}')
    a(f'v_lshlrev_b32 v{A_MST}, 8, v{T1}')
    a(f'v_lshl_add_u32 v{A_MST}, v{C}, 4, v{A_MST}')
    a(f'v_and_b32 v{T1}, 1, v{G}')
    a(f'v_lshl_add_u32 v{A_MST}, v{T1}, 3, v{A_MST}')
    a('s_lshl_b32 s30, s22, 10')
    a(f's_add_u32 s30, s30, {L_MX}')
    a(f'v_add_u32 v{A_MST}, s30, v{A_MST}')
    a(f's_mul_i32 s30, s22, {TILE_B}')
    a(f's_add_u32 s30, s30, {L_W8}')
    a(f'v_add_u32 v{A_CP}, s30, v1')
    for k in range(3):
        a(f's_add_u32 s30, s29, {k}')
        a('s_add_u32 s30, s30, s37')
        for _ in range(2):
            a('s_cmp_ge_u32 s30, 7')
            a('s_cselect_b32 s31, 7, 0')
            a('s_sub_u32 s30, s30, s31')
        a('s_lshl_b32 s30, s30, 10')
        a(f'v_add_u32 v{5+k}, s30, v1')
    a(f'v_mov_b32 v{NEG}, -1')
    a('v_mov_b32 v115, s20')
    a('v_min_u32 v105, 7, v0')
    a('v_lshlrev_b32 v105, 2, v105')
    a('s_cmp_ge_u32 s22, 2')
    a(f's_cbranch_scc1 {name}_npv')
    a(f's_and_b32 s30, s33, {NREP-1}')
    a('s_lshl_b32 s30, s30, 8')
    a(f's_add_u32 s30, s30, {R_FP}')
    a(f'v_min_u32 v{A_FL}, 16, v0')
    a(f'v_lshlrev_b32 v{A_FL}, 2, v{A_FL}')
    a(f'v_add_u32 v{A_FL}, s30, v{A_FL}')
    a.label(f'{name}_npv')
    a('v_mov_b32 v20, v0')
    a('s_lshl_b32 s30, s33, 2')
    a(f's_add_u32 s30, s30, {R_FM}')
    a(f'v_lshlrev_b32 v{A_FST}, 8, v0')
    a(f'v_add_u32 v{A_FST}, s30, v{A_FST}')
    sbase(10, WS_RING + 4*RS)
    a('s_lshl_b32 s31, s25, 5')
    a(f's_add_u32 s31, s31, {WS_FLG + F_U}')
    sbase(12, 's31')
    a('s_mov_b32 s39, s31')
    a('s_lshl_b32 s30, s25, 15')
    a('s_lshl_b32 s31, s22, 13')
    a('s_add_u32 s30, s30, s31')
    a(f's_add_u32 s30, s30, {WS_U}')
    sbase(56, 's30')
    a(f's_add_u32 s35, s31, {L_UV}')
    def dma_u(i):
        return [f's_add_u32 m0, s35, {4096*(i//4)}', f'global_load_lds_dwordx4 {"v1" if i < 4 else "v3"}, s[56:57] offset:{1024*(i%4)} sc1']
    a.label(f'{name}_go')
    stamp(a, 4)
    a('v_lshrrev_b32 v68, 4, v1')
    a('s_mul_i32 s30, s22, 7')
    a('s_lshr_b32 s30, s30, 2')
    a('s_lshl_b32 s30, s30, 2')
    a('v_min_u32 v64, 11, v68')
    a('s_cmp_eq_u32 s22, 0')
    a('s_cselect_b32 s31, 7, 27')
    a('v_add_u32 v64, s30, v64')
    a('v_min_u32 v64, s31, v64')
    a(f's_mul_i32 s30, {role}, 28')
    a('v_add_u32 v64, s30, v64')
    a('v_bfe_u32 v65, v68, 2, 2')
    a('v_mul_u32_u24 v65, 28, v65')
    a('v_and_b32 v66, 3, v68')
    a('v_add_u32 v65, v65, v66')
    a('s_lshr_b32 s37, s25, 1')
    a('s_lshl_b32 s30, s37, 2')
    a('s_mul_i32 s31, s22, 112')
    a('s_add_u32 s30, s30, s31')
    a('s_add_u32 s30, s30, 448')
    a('v_add_u32 v65, s30, v65')
    a('s_cmp_eq_u32 s26, 1')
    a('s_cselect_b64 vcc, -1, 0')
    a('v_cndmask_b32 v64, v64, v65, vcc')
    if merged:
        a('s_waitcnt vmcnt(0)')
        wait_flags(a, name, WS_FLG + F_IMG0, 64, lane='v64', va=65, sleep=3)
        stamp(a, 2)
    a('s_cmp_eq_u32 s26, 1')
    a(f's_cbranch_scc1 {name}_vw')
    a('s_mul_i32 s27, s25, 28')
    a('s_mul_i32 s28, s22, 7')
    a('s_add_u32 s27, s27, s28')
    a(f's_mul_i32 s27, s27, {TILE_B}')
    def wloads(w, batch):
        for j in range(7):
            grp = (7*w + j) // 4
            ts = [(grp + i) % 7 for i in (range(3) if batch == 0 else range(3, 7))]
            for t in sorted(ts):
                g = 7*j + t
                off = j*TILE_B + t*2048
                a(f's_add_u32 s30, s27, {off}')
                a('v_add_u32 v67, s30, v1')
                for u in range(2):
                    dst = ar(8*g+4*u, 4) if g < 32 else vr(120 + 8*(g-32) + 4*u, 4)
                    a(f'global_load_dwordx4 {dst}, v67, {ws} offset:{1024*u} sc1')
    for batch in range(2):
        for w in range(4):
            if w < 3:
                a(f's_cmp_lg_u32 s22, {w}')
                a(f's_cbranch_scc1 {name}_wl{batch}{w+1}')
            wloads(w, batch)
            if w < 3:
                a(f's_branch {name}_wld{batch}')
                a.label(f'{name}_wl{batch}{w+1}')
        a.label(f'{name}_wld{batch}')
        if batch == 0 and merged:
            a('v_and_b32 v69, 3, v68')
            a(f'v_add_u32 v69, {(F_XP - F_IMG)//4}, v69')
            a('v_cmp_lt_u32 vcc, 15, v68')
            a('v_cndmask_b32 v69, v64, v69, vcc')
            wait_flags(a, name, WS_FLG + F_IMG, 64, lane='v69', va=65, sleep=3)
    a('s_lshl_b32 s30, s22, 11')
    for kt in range(2):
        va = "v1" if kt == 0 else "v3"
        a(f'global_load_dwordx4 {vr(K0+4*kt,4)}, {va}, s[54:55] {XKF}')
        a(f's_add_u32 m0, s30, {L_K1 + 1024*kt - 1024}')
        a(f'global_load_lds_dwordx4 {va}, s[54:55] offset:1024 {XKF}')
        a(f'global_load_dwordx4 {vr(K2+4*kt,4)}, {va}, s[54:55] offset:2048 {XKF}')
        a(f'global_load_dwordx2 {vr([TBZ+2, CV+2][kt],2)}, {va}, s[54:55] offset:3072 {XKF}')
    sadd64(a, 54, 32768)
    a(f's_branch {name}_wdone')
    a.label(f'{name}_vw')
    a('s_mul_i32 s27, s22, 112')
    a('s_lshl_b32 s28, s25, 1')
    a('s_add_u32 s27, s27, s28')
    a(f's_mul_i32 s27, s27, {TILE_B}')
    a(f's_add_u32 s27, s27, {WS_VIMG}')
    a(f's_mul_i32 s34, s22, {TILE_B}')
    a(f's_add_u32 s34, s34, {L_W8}')
    for pi in range(7):
        if pi == 3 and merged:
            wait_flags(a, name, WS_FLG + F_IMG, 64, lane='v64', va=65, sleep=3)
        a(f's_add_u32 s31, s37, {pi}')
        a('s_cmp_ge_u32 s31, 7')
        a('s_cselect_b32 s32, 7, 0')
        a('s_sub_u32 s31, s31, s32')
        a('s_lshl_b32 s31, s31, 11')
        a('s_add_u32 s31, s31, s27')
        for j in range(8):
            a(f's_add_u32 s30, s31, {((j//2)*28 + j%2)*TILE_B}')
            a('v_add_u32 v67, s30, v1')
            if j < 7:
                g = 7*j + pi
                for u in range(2):
                    dst = ar(8*g+4*u, 4) if g < 32 else vr(120 + 8*(g-32) + 4*u, 4)
                    a(f'global_load_dwordx4 {dst}, v67, {ws} offset:{1024*u} sc1')
            else:
                a(f's_add_u32 m0, s34, {2048*pi}')
                for u in range(2): a(f'global_load_lds_dwordx4 v67, {ws} offset:{1024*u} sc1')
    a.label(f'{name}_wdone')
    stamp(a, 3, 's_waitcnt vmcnt(0)')
    a('s_cmp_eq_u32 s26, 0')
    a(f's_cbranch_scc1 {name}_go2')
    if merged:
        a('s_waitcnt vmcnt(0)')
        a('v_bfe_u32 v20, v1, 4, 3')
        a('v_bfe_u32 v21, v1, 7, 1')
        a('v_mul_u32_u24 v21, 112, v21')
        a('v_add_u32 v20, v20, v21')
        wait_flags(a, name, 's39', 64, lane='v20', va=16, sleep=4)
    for i in range(8):
        for o in dma_u(i): a(o)
    sadd64(a, 56, 28*16384); sadd64(a, 12, 896)
    a('s_xor_b32 s35, s35, 0x38000')
    a.label(f'{name}_go2')
    for r in range(32): a(f'v_mov_b32 v{ACC+r}, 0')
    a('s_waitcnt lgkmcnt(0)')
    if STAMPS or ENV('DBGT', 0):
        a('s_mov_b32 s74, s24'); a('s_memrealtime s[88:89]'); a('s_waitcnt lgkmcnt(0)')
    a('s_lshl_b32 s30, s26, 2')
    a('s_add_u32 s30, s30, s22')
    if merged:
        a('s_cmp_lt_u32 s21, 32')
        a('s_cselect_b32 s31, 8, 0')
        a('s_add_u32 s30, s30, s31')
    for k in range(16 if merged else 8):
        a(f's_cmp_eq_u32 s30, {k}')
        a(f's_cbranch_scc1 {name}_{"fs"[k//8]}{"sv"[(k//4)%2]}{k%4}_entry')

    def gaddr(off):
        if off < 4096: return 'v1', off
        if off < 8192: return 'v3', off - 4096
        return 'v4', off - 8192

    def gen_wave(kind, w, st):
        tag = f'{name}_{"s" if st else "f"}{kind}{w}'
        own = [2*w, 2*w+1, 2*w+2] if w < 3 else [6, 0, 1]
        wr = own[:2] if w < 3 else own[:1]
        others = [t for t in range(7) if t not in own]
        pvw = kind == 'v' and w < 2
        NB0 = ENV('NOB0', 0)
        poller = (w == 1 or NB0) if kind == 's' else (w == 2)
        SLOW = []
        L = Cnt(); V = Cnt()
        def emit(op):
            if isinstance(op, str): a(op); return
            text, k, tg = op
            if k == 'wl': a(f's_waitcnt lgkmcnt({L.need(text)})'); return
            if k == 'wv': a(f's_waitcnt vmcnt({V.need(text)})'); return
            a(text)
            (L if k == 'l' else V).issue(tg)
        def smf(j, t):
            a(f'v_smfmac_f32_16x16x64_bf16 {vr(ACC+4*j,4)}, {vr(MA+4*t,4)}, {W(j,t)}, v{IDX}')
        def rest_adv():
            a(f's_add_u32 s30, s38, {WS_RING}')
            a('s_add_u32 s50, s4, s30')
            a('s_addc_u32 s51, s5, 0')
            a(f's_add_u32 s38, s38, {RS}')
            a(f's_cmp_eq_u32 s38, {4*RS}')
            a('s_cselect_b32 s38, 0, s38')
            if kind == 'v':
                if w == 3 and merged: sadd64(a, 12, 448)
                if w < 2: a(f'v_xor_b32 v{A_UR}, 0x38000, v{A_UR}')
            else:
                sadd64(a, 8, 28*16384)
            for r in range(28 if kind == 's' else 32): a(f'v_mov_b32 v{ACC+r}, 0')
        def mem_loads(em=True):
            for n, t in enumerate(own):
                tx = f'global_load_dwordx4 {vr(MA+4*t,4)}, v{5+n}, s[44:45] sc1'
                if em: emit((tx, 'v', f'm{t}'))
                else: a(tx)
                if n < 2 and em and ENV('MSP', 1): a(f's_nop {ENV("MSPN", 3)}')
        def kreg(k, kt):
            if k == 1: return MA + 4*own[kt]
            if k == 3: return [TBZ+2, CV+2][kt]
            return {0: K0, 2: K2}[k] + 4*kt
        def xk1(k, kt):
            va = "v1" if kt == 0 else "v3"
            if k == 1: return [f's_mov_b32 m0, {L_K1 + 2048*w + 1024*kt - 1024}', f'global_load_lds_dwordx4 {va}, s[54:55] offset:1024 {XKF}']
            n = 2 if k == 3 else 4
            return [f'global_load_dwordx{n} {vr(kreg(k,kt),n)}, {va}, s[54:55] offset:{1024*k} {XKF}']
        def xk_all(ks=(0, 1, 2, 3), adv=True):
            for k in ks:
                for kt in range(2):
                    for o in xk1(k, kt): a(o)
            if adv: sadd64(a, 54, 32768)
        XE = ENV('XEARLY', 0)
        cps = {2: [0, 1, 2, 3], 3: [4, 5, 6]}.get(w, []) if kind == 'v' else []
        CPB, CP2 = 64, 80
        def stage_reads():
            for n, i in enumerate(cps):
                a(f'ds_read_b128 {vr(CPB+4*n,4)}, v1 offset:{L_MS + 1024*i}')
                a(f'ds_read_b128 {vr(CP2+4*n,4)}, v1 offset:{L_MEM + 1024*i}')
            a('s_waitcnt lgkmcnt(0)')
        def mem2_copy():
            l2 = a.newlabel('nm2')
            a('s_cmp_lg_u32 s25, 15')
            a(f's_cbranch_scc1 {l2}')
            for n, t in enumerate(cps):
                va, im = gaddr(1024*t)
                a(f'global_store_dwordx4 {va}, {vr(MA+4*t,4)}, s[58:59] offset:{im} sc1')
            a.label(l2)
        a.label(f'{tag}_loop')
        if poller and ENV('XST', 0):
            a('s_waitcnt vmcnt(0)'); cstamp(a, 1, 31)
        if poller: flag_poll(a, tag, FR=(96, 97, 98, 99, 117, 118)[:ENV('NMP', 5)], gap=ENV('MGAP', 11))
        if not (kind == 's' and NB0): a('s_barrier')
        if not pvw: cstamp(a, 5, 31)
        a.label(f'{tag}_mem')
        DIRECT = kind == 's' and ENV('DIRECT', 1)
        if DIRECT:
            others.sort(key=lambda t: (t - own[0]) % 7)
            def mld(t):
                va, im = gaddr(1024*t)
                return (f'global_load_dwordx4 {vr(MA+4*t,4)}, {va}, s[44:45] offset:{im} sc1', 'v', f'm{t}')
            seq = own + others
            NPRE = ENV('NPRE', 4)
            for n in range(NPRE):
                emit(mld(seq[n]))
                if n < NPRE - 1: a(f's_nop {ENV("DSP", 11)}')
            need = sorted(set(range((14*w)//8, (14*w+13)//8 + 1)))
            def pw(t): return (f'ds_write_b128 v1, {vr(MA+4*t,4)} offset:{L_MEM + 3072*w + 1024*(t - need[0])}', 'l', f'pw{t}')
            fl = {}
            for n in range(NPRE, 7): fl.setdefault((0, 2*(n-NPRE)+1), []).append(mld(seq[n]))
            for p in range(3):
                if own[p] in need: fl.setdefault((p, 0), []).append(pw(own[p]))
            def c2(t, first=False):
                r = MA + 4*t
                return [f'v_max3_u32 v{TMP}, v{r}, v{r+1}, v{r+2}' if first else f'v_max3_u32 v{TMP}, v{TMP}, v{r}, v{r+1}',
                        f'v_max_u32 v{TMP}, v{TMP}, v{r+3}' if first else f'v_max3_u32 v{TMP}, v{TMP}, v{r+2}, v{r+3}']
            for p in range(2):
                cc = c2(own[p], p == 0)
                fl.setdefault((p, 2), []).append(cc[0]); fl.setdefault((p, 4), []).append(cc[1])
            for p in range(3):
                emit((f'm{own[p]}', 'wv', None))
                if p == 0:
                    cstamp(a, 0); cstamp(a, 6, 31)
                if p == 2: break
                for j in range(7):
                    smf(j, own[p])
                    for o in fl.get((p, j), []): emit(o)
            cstamp(a, 1)
            late_w = [t for t in need if t not in own[:2]]
        else:
            mem_loads()
            if kind == 'v':
                a('s_barrier')
                if pvw:
                    lk = a.newlabel('w0s')
                    a('s_cmp_eq_u32 s36, 0')
                    a(f's_cbranch_scc1 {lk}')
                    rest_adv()
                    a.label(lk)
                NU0 = ENV('NU0', 4)
                uq = [] if ENV('NOU', 0) else [dma_u(i) for i in range(8)]
                for _ in range(NU0):
                    if uq:
                        m_, d_ = uq.pop(0); a(m_); emit((d_, 'v', 'u'))
            a.label(f'{tag}_got')
            chk = max_ops([MA+4*t+r for t in own[:2] for r in range(4)], TMP)
            fill0 = {0: [(f'm{own[1]}', 'wv', None)] + ([(f'ds_write_b128 v1, {vr(MA+4*wr[1],4)} offset:{L_MEM + 1024*wr[1]}', 'l', 'w1')] if len(wr) > 1 else []),
                     1: [chk[0]], 2: [chk[1]], 3: [chk[2]], 4: [chk[3]], 5: [f'v_cmp_eq_u32 vcc, -1, v{TMP}'], 6: [f's_cbranch_vccnz {tag}_redo']}
            emit((f'm{own[0]}', 'wv', None))
            cstamp(a, 0)
            if not pvw: cstamp(a, 6, 31)
            emit((f'ds_write_b128 v1, {vr(MA+4*wr[0],4)} offset:{L_MEM + 1024*wr[0]}', 'l', 'w0'))
            for j in range(7):
                smf(j, own[0])
                for o in fill0[j]: emit(o)
            a.label(f'{tag}_cont')
            smf(0, own[1])
            pre = []
            if kind == 'v':
                pre += uq
                if pvw:
                    pre.append([f'global_store_dword v{A_MEMST}, v{NEG}, s[10:11] {st}', f's_mov_b64 exec, {RMASK}', f'global_store_dword v{A_FST}, v{NEG}, s[10:11] {st}', 's_mov_b64 exec, -1'])
            c2 = MA + 4*own[2]
            for j in range(1, 7):
                smf(j, own[1])
                if pre:
                    ops = pre.pop(0)
                    for o in ops:
                        a(o)
                        if o.startswith('global_'): V.issue('x')
                if j == 4:
                    emit((f'm{own[2]}', 'wv', None))
                    a(f'v_max3_u32 v{TMP}, v{c2}, v{c2+1}, v{c2+2}')
                if j == 5: a(f'v_max_u32 v{TMP}, v{TMP}, v{c2+3}')
                if j == 6: a(f'v_cmp_eq_u32 vcc, -1, v{TMP}')
            a('s_waitcnt lgkmcnt(0)'); L.reset()
            a('s_barrier')
            a(f's_cbranch_vccnz {tag}_fix2')
            a.label(f'{tag}_fix2r')
            if not pvw: cstamp(a, 1)
            for t in others: emit((f'ds_read_b128 {vr(MA+4*t,4)}, v1 offset:{L_MEM + 1024*t}', 'l', f'r{t}'))
        F = {}
        def add(sl, ops): F[sl] = F.get(sl, []) + list(ops)
        if kind == 's':
            def cvt_write(j):
                return [f'v_add_f32 v{CV}, v{ACC+4*j}, v{ACC+4*j+1}',
                        f'v_add_f32 v{CV+1}, v{ACC+4*j+2}, v{ACC+4*j+3}',
                        f'v_cvt_pk_bf16_f32 v{CV}, v{CV}, v{CV+1}',
                        (f'ds_write_b32 v{A_TW}, v{CV} offset:{512*j}', 'l', f'cw{j}')]
            def tbr(k): return TB + 4*(k % 2) if k < 3 else TBZ
            def s_reads(k):
                o = [(f'ds_read_b64_tr_b16 {vr(tbr(k),2)}, v{A_TR} offset:{1024*k}', 'l', f'sr{k}')]
                if k < 3: o.append((f'ds_read_b64_tr_b16 {vr(tbr(k)+2,2)}, v{A_TR} offset:{1024*k+512}', 'l', f'sr{k}'))
                return o
            def kmr(k): return KM0 if k % 2 == 0 else KM1
            def km_read(k):
                if k == 3: return (f'ds_read_b64 {vr(kmr(k),2)}, v{A_MK} offset:{512*k}', 'l', f'km{k}')
                return (f'ds_read2_b64 {vr(kmr(k),4)}, v{A_MK} offset0:{64*k} offset1:{64*k+32}', 'l', f'km{k}')
            def s_mfma(k, fill=()):
                fill = list(fill)
                deps = [f'sr{k}', f'km{k}'] + (['k1'] if k == 1 else [])
                a(f's_waitcnt lgkmcnt({min(L.need(d) for d in deps)})')
                for kt in range(3):
                    acc = vr(SACC+4*kt, 4)
                    src = kreg(k, kt) if kt < 2 else kmr(k)
                    if k == 3: a(f'v_mfma_f32_16x16x16_bf16 {acc}, {vr(src,2)}, {vr(tbr(k),2)}, {acc}')
                    else: a(f'v_mfma_f32_16x16x32_bf16 {acc}, {vr(src,4)}, {vr(tbr(k),4)}, {acc if k else 0}')
                    if fill:
                        for o in fill.pop(0): emit(o)
            assert DIRECT
            f2 = [[(f'ds_read_b128 {vr(kreg(1,0),4)}, v1 offset:{L_K1 + 2048*w}', 'l', 'k1')],
                  [(f'ds_read_b128 {vr(kreg(1,1),4)}, v1 offset:{L_K1 + 2048*w + 1024}', 'l', 'k1')]]
            if own[2] in late_w: f2.insert(0, [pw(own[2])])
            if not ENV('NOTOUCH', 1):
                nl = ENV('NTL', 56)
                add((0, 3), [f'v_lshlrev_b32 v{CV}, 3, v1', (f's_mov_b64 exec, {(1 << nl) - 1}' if nl < 32 else f's_mov_b32 exec_hi, {(1 << (nl - 32)) - 1}'),
                          f'global_load_dword v{2 if w != 1 else 0}, v{CV}, s[8:9] sc1', 's_mov_b64 exec, -1'])
            f2 += [[o] for o in c2(own[2])] + [[f'v_cmp_eq_u32 vcc, -1, v{TMP}']]
            f2 += [[]] * (6 - len(f2)) + [[f's_cbranch_vccnz {tag}_redo', f'{tag}_cont:']]
            for j in range(7):
                smf(j, own[2])
                if f2:
                    for o in f2.pop(0): emit(o)
            for n, t in enumerate(others):
                if t in late_w: add((0, n), [pw(t)])

            add((1, 0), [km_read(0), km_read(1)])
            if XE == 3:
                add((2, 0), [('k1', 'wl', None)] + xk1(1, 0)); add((4, 0), xk1(1, 1))
            for j in range(1, 7):
                cw = cvt_write(j-1)
                add((j, 1), [cw[0]]); add((j, 2), [cw[1]]); add((j, 3), [cw[2]]); add((j+1, 0), [cw[3]])
            add((3,0), s_reads(0)[:1]); add((3,1), s_reads(0)[1:]); add((5,0), s_reads(1)[:1]); add((5,1), s_reads(1)[1:])
            for j in range(7):
                for n, t in enumerate(others):
                    if j == 0: emit((f'm{t}', 'wv', None))
                    smf(j, t)
                    for o in F.get((j, n), []): emit(o)
                if j == 4: s_mfma(0, [[], xk1(0, 0) if XE == 3 else [], [km_read(2)] + (xk1(0, 1) if XE == 3 else [])])
            cstamp(a, 2)
            cw6 = cvt_write(6)
            for o in F[(7, 0)]: emit(o)
            s_mfma(1, [s_reads(2), [cw6[0], cw6[1]], [cw6[2], cw6[3]] + s_reads(3) + [km_read(3)]])
            s_mfma(2)
            s_mfma(3)
            for kt in range(3):
                a(f'ds_write_b128 v{A_SW}, {vr(SACC+4*kt,4)} offset:{64*kt}')
                if kt == 0: a(f'v_cmp_u_f32 vcc, v{SACC}, v{SACC}')
            a(f's_cbranch_vccnz {tag}_redo2')
            a.label(f'{tag}_cont2')
            a('s_waitcnt lgkmcnt(0)'); L.reset()
            a('s_barrier')
            cstamp(a, 3)
            SR = 8
            for i in range(4):
                emit((f'ds_read_b64 {vr(SR+2*i,2)}, v{A_SR} offset:{3328*i}', 'l', f's{i}'))
            a('s_mov_b32 s30, 0x42800000')
            if XE in (1, 2): xk_all((0, 1), False)
            def pflag():
                if w == 0:
                    a(f's_mov_b64 exec, {RMASK}')
                    a(f'global_store_dword v{A_FST}, v{IDX}, s[46:47] {st}')
                    a('s_mov_b64 exec, -1')
            PF = ENV('PFLAG', 2)
            if PF == -1: pflag()
            def pk(d, x, y): a(f'v_pk_add_f32 {vr(SR+d,2)}, {vr(SR+x,2)}, {vr(SR+y,2)}')
            emit(('s1', 'wl', None)); pk(0, 0, 2)
            emit(('s3', 'wl', None)); pk(4, 4, 6); pk(0, 0, 4)
            if PF == -2: pflag()
            m, t = SR+4, SR+5
            a(f'v_max_f32 v{m}, |v{SR}|, |v{SR+1}|')
            a(f'v_exp_f32 v{SR+2}, v{SR}')
            a(f'v_cmp_nge_f32 vcc, s30, v{m}')
            a(f'v_exp_f32 v{SR+3}, v{SR+1}')
            a('s_and_b64 vcc, vcc, s[42:43]')
            a(f's_cbranch_vccnz {tag}_smax')
            a.label(f'{tag}_smax_ret')
            a(f'v_add_f32 v{m}, v{SR+2}, v{SR+3}')
            a(f'v_cndmask_b32 v{m}, 0, v{m}, s[42:43]')
            xq = [xk1(k, kt) for k in (2, 3) for kt in range(2)] if XE == 2 else []
            if PF == 0: pflag()
            def slow_max():
                a.label(f'{tag}_smax')
                a(f'v_mov_b32 v{SR+16}, 0xff800000')
                a(f'v_max_f32 v{m}, v{SR}, v{SR+1}')
                a(f'v_cndmask_b32 v{m}, v{SR+16}, v{m}, s[42:43]')
                for ror in (8, 4, 2, 1):
                    a(f'v_max_f32_dpp v{m}, v{m}, v{m} row_ror:{ror} row_mask:0xf bank_mask:0xf')
                a(f'v_mov_b32 v{t}, v{m}')
                a(f'v_permlane16_swap_b32 v{m}, v{t}')
                a(f'v_max_f32 v{m}, v{m}, v{t}')
                a(f'v_sub_f32 v{SR+2}, v{SR}, v{m}')
                a(f'v_sub_f32 v{SR+3}, v{SR+1}, v{m}')
                a(f'v_exp_f32 v{SR+2}, v{SR+2}')
                a(f'v_exp_f32 v{SR+3}, v{SR+3}')
                a(f's_branch {tag}_smax_ret')
            SLOW.append(slow_max)
            for ror in (8, 4, 2, 1):
                if xq:
                    for o in xq.pop(0): a(o)
                a(f'v_add_f32_dpp v{m}, v{m}, v{m} row_ror:{ror} row_mask:0xf bank_mask:0xf')
                if PF == 1 and ror == 4: pflag()
            a(f'v_mov_b32 v{t}, v{m}')
            if PF == 2: pflag()
            a(f'v_permlane16_swap_b32 v{m}, v{t}')
            a(f'v_add_f32 v{m}, v{m}, v{t}')
            a(f'v_rcp_f32 v{m}, v{m}')
            a(f'v_mul_f32 v{SR}, v{SR+2}, v{m}')
            a(f'v_mul_f32 v{SR+1}, v{SR+3}, v{m}')
            if PF == 25: pflag()
            a(f'v_cvt_pk_bf16_f32 v{SR}, v{SR}, v{SR+1}')
            a('s_mov_b64 exec, s[42:43]')
            a(f'global_store_dword v{A_PST}, v{SR}, s[46:47] {st}')
            a('s_mov_b64 exec, -1')
            if PF == 3: pflag()
            cstamp(a, 4)
            xk_all({0: (0, 1, 2, 3), 1: (2, 3), 2: (), 3: (2, 3)}[XE])
            a(f'v_mov_b32 v{CV}, -1')
            a(f'global_store_dword v{A_PST}, v{CV}, s[48:49] {st}')
            if w == 0:
                a(f's_mov_b64 exec, {RMASK}')
                a(f'global_store_dword v{A_FST}, v{CV}, s[48:49] {st}')
                a('s_mov_b64 exec, -1')
        else:
            early = list(pre)
            if merged and w == 3: early.append(['global_load_dword v116, v105, s[12:13] sc1'])
            def w8rd(pi): return [(f'ds_read_b128 {vr(68+8*(pi%2)+4*u,4)}, v{A_CP} offset:{2048*pi+1024*u}', 'l', f'w8{pi}') for u in range(2)]
            def smf8(pi):
                emit((f'w8{pi}', 'wl', None))
                a(f'v_smfmac_f32_16x16x64_bf16 {vr(ACC+28,4)}, {vr(MA+4*pi,4)}, {vr(68+8*(pi%2),8)}, v{IDX}')
            seq8 = own + others
            for o in w8rd(seq8[0] if False else 0): pass
            q8 = [t for t in seq8]
            def rd8(k):
                t = q8[k]
                return [(f'ds_read_b128 {vr(68+8*(k%2)+4*u,4)}, v{A_CP} offset:{2048*t+1024*u}', 'l', f'w8{k}') for u in range(2)]
            def sm8(k):
                emit((f'w8{k}', 'wl', None))
                a(f'v_smfmac_f32_16x16x64_bf16 {vr(ACC+28,4)}, {vr(MA+4*q8[k],4)}, {vr(68+8*(k%2),8)}, v{IDX}')
                if k + 2 < 7:
                    for o in rd8(k+2): emit(o)
            for o in rd8(0) + rd8(1): emit(o)
            for j in range(7):
                smf(j, own[2])
                if early:
                    for o in early.pop(0): a(o)
            assert not early
            sadd64(a, 56, 28*16384)
            a('s_xor_b32 s35, s35, 0x38000')
            pend = []
            MC = 96
            def m_out(j):
                X = ACC + 4*j; c = MC + (j % 4)
                hh, p = j // 2, j % 2
                return [f'v_add_f32 v{X}, v{X}, v{X+1}', f'v_add_f32 v{X+2}, v{X+2}, v{X+3}', f'v_cvt_pk_bf16_f32 v{c}, v{X}, v{X+2}',
                        (f'ds_write_b32 v{A_MST}, v{c} offset:{4096*p + 512*(hh//2) + 4*(hh%2)}', 'l', 'mx')]
            for j in range(7):
                for n, t in enumerate(others):
                    if j == 0: emit((f'r{t}', 'wl', None))
                    smf(j, t)
                    if n == 1 and j >= 1: pend += m_out(j-1)
                    if pend: emit(pend.pop(0))
                sm8(j)
                if pend: emit(pend.pop(0))
            for o in pend + m_out(6) + m_out(7): emit(o)
            cstamp(a, 2)
            a('s_waitcnt lgkmcnt(0)')
            a('s_barrier')
            if merged and w == 3:
                a('s_waitcnt vmcnt(0)')
                a('v_cmp_ne_u32 vcc, v115, v116')
                a(f's_cbranch_vccnz {tag}_uwait')
                a.label(f'{tag}_uok')
        if pvw:
            skip = f'{tag}_nopv'
            def ubreads():
                for t in range(4):
                    for u in range(2):
                        a(f'ds_read_b128 {vr(UB+8*t+4*u,4)}, v{A_UR} offset:{2048*t+1024*u}')
            ubreads()
            PFR = (108, 109, 110, 111, 116, 117, 118)[:ENV('NPP', 6)]
            for i in range(4): a(f'ds_read_b128 {vr(MB+4*i,4)}, v{A_ML} offset:{1024*i}')
            flag_poll(a, tag, FR=PFR, gap=ENV('PGAP', 12))
            cstamp(a, 1)
            if ENV('PDLY', 3): a(f's_nop {ENV("PDLY", 3)}')
            a.label(f'{tag}_pld')
            order = [8, 9] + list(range(8))
            for t in order:
                va, im = gaddr(1024*t)
                a(f'global_load_dwordx4 {vr(PA+4*t,4)}, {va}, s[46:47] offset:{im} sc1')
            for r in range(4): a(f'v_mov_b32 v{PACC+r}, 0')
            acc = vr(PACC, 4)
            a('s_mov_b64 s[10:11], s[46:47]')
            a('s_waitcnt lgkmcnt(0)')
            MF = ENV('MFLAG', 3)
            ck = max_ops(range(PA+32, PA+40), TMP)
            for n, t in enumerate(order):
                a(f's_waitcnt vmcnt({(9 - n) + (1 if n > MF else 0)})' + (f' lgkmcnt({2*(7-t)})' if 4 <= t < 8 else ''))
                if n == 0: cstamp(a, 5)
                b = vr(MB+8*(t-8), 8) if t >= 8 else vr(UB+8*(t % 4), 8)
                a(f'v_smfmac_f32_16x16x64_bf16 {acc}, {vr(PA+4*t,4)}, {b}, v{IDX}')
                if n == 0: a(ck[0])
                if n == 1:
                    for o in ck[1:]: a(o)
                    a(f'v_cmp_eq_u32 vcc, -1, v{TMP}')
                    a(f's_cbranch_vccnz {tag}_pre')
                    a.label(f'{tag}_pgo')
                if n == MF:
                    a(f's_mov_b64 exec, {RMASK}')
                    a(f'global_store_dword v{A_FST}, v{IDX}, s[50:51] {st}')
                    a('s_mov_b64 exec, -1')
                if t < 4:
                    for u in range(2):
                        a(f'ds_read_b128 {vr(UB+8*t+4*u,4)}, v{A_UR} offset:{2048*(t+4)+1024*u}')
            a(f'v_add_f32 v{PACC}, v{PACC}, v{PACC+1}')
            a(f'v_add_f32 v{PACC+2}, v{PACC+2}, v{PACC+3}')
            a(f'v_cmp_u_f32 vcc, v{PACC}, v{PACC+2}')
            a(f'v_cvt_pk_bf16_f32 v{PACC}, v{PACC}, v{PACC+2}')
            a(f's_cbranch_vccnz {tag}_pnan')
            a.label(f'{tag}_pfin')
            a(f'v_mov_b32_dpp v{PACC+1}, v{PACC} quad_perm:[1,0,3,2] row_mask:0xf bank_mask:0xf')
            a(f'v_perm_b32 v{PACC}, v{PACC}, v{PACC+1}, v{A_PERM}')
            a(f'global_store_dword v{A_MEMST}, v{PACC}, s[50:51] {st}')
            cstamp(a, 6)
            if merged:
                a('s_cmp_lg_u32 s36, 62')
                a(f's_cbranch_scc1 {skip}')
                a(f's_add_u32 s30, s4, {WS_MEM2 + 63*7168 - R_MEM}')
                a('s_addc_u32 s31, s5, 0')
                a(f'global_store_dword v{A_MEMST}, v{PACC}, s[30:31] sc1')
            a.label(skip)
        a('s_mov_b64 s[48:49], s[46:47]')
        a('s_mov_b64 s[46:47], s[50:51]')
        a(f's_add_u32 s44, s46, {R_MEM}')
        a('s_addc_u32 s45, s47, 0')
        a('s_add_u32 s36, s36, 1')
        if not pvw: rest_adv()
        a('s_cmp_lt_u32 s36, 63')
        a(f's_cbranch_scc1 {tag}_loop')
        a(f's_branch {name}_done')
        a.label(f'{tag}_entry')
        a(f's_branch {tag}_mem')
        for f in SLOW: f()
        if merged and kind == 'v' and w == 3:
            a.label(f'{tag}_uwait')
            a('s_cmp_ge_u32 s36, 61')
            a(f's_cbranch_scc1 {tag}_uok')
            a('global_load_dword v116, v105, s[12:13] sc1')
            a('s_waitcnt vmcnt(0)')
            a('v_cmp_ne_u32 vcc, v115, v116')
            a(f's_cbranch_vccz {tag}_uok')
            a('s_sleep 4')
            a('s_sub_u32 s40, s40, 1')
            a(f's_cbranch_scc0 {tag}_uwait')
            a('s_mov_b32 s40, 0')
            a(f's_branch {tag}_uok')
        if kind == 's':
            a.label(f'{tag}_redo2')
            a('s_nop 7')
            a('s_sub_u32 s40, s40, 2000')
            a(f's_cbranch_scc0 {tag}_redo3')
            a('s_mov_b32 s40, 0')
            a(f's_branch {tag}_cont2')
            a.label(f'{tag}_redo')
            a('s_nop 7')
            if STAMPS: a('s_add_u32 s76, s76, 1')
            a('s_sub_u32 s40, s40, 1')
            a(f's_cbranch_scc1 {tag}_giveup')
            a.label(f'{tag}_redo3')
            for r in range(28): a(f'v_mov_b32 v{ACC+r}, 0')
            if XE == 3:
                a('s_sub_u32 s54, s54, 32768'); a('s_subb_u32 s55, s55, 0')
                xk_all((0, 1))
            a('s_waitcnt lgkmcnt(0)')
            a(f's_branch {tag}_mem')
        else:
            a.label(f'{tag}_fix2')
            a(f'ds_read_b128 {vr(MA+4*own[2],4)}, v1 offset:{L_MEM + 1024*own[2]}')
            a('s_waitcnt lgkmcnt(0)')
            a(f's_branch {tag}_fix2r')
            a.label(f'{tag}_redo')
            a('s_nop 7')
            if STAMPS: a('s_add_u32 s76, s76, 1')
            a('s_sub_u32 s40, s40, 1')
            a(f's_cbranch_scc1 {tag}_giveup')
            a('s_waitcnt lgkmcnt(0)')
            mem_loads(False)
            a('s_nop 7')
            for r in range(32): a(f'v_mov_b32 v{ACC+r}, 0')
            a('s_waitcnt vmcnt(0)')
            a(f's_branch {tag}_got')
        a.label(f'{tag}_giveup')
        a('s_mov_b32 s40, 0')
        a(f's_branch {tag}_cont')
        if pvw:
            a.label(f'{tag}_pre')
            a('s_nop 7')
            if STAMPS: a('s_add_u32 s87, s87, 1')
            a('s_sub_u32 s40, s40, 1')
            a(f's_cbranch_scc0 {tag}_pld')
            a('s_mov_b32 s40, 0')
            a(f's_branch {tag}_pgo')
            a.label(f'{tag}_pnan')
            for o in max_ops(range(PA, PA+40), TMP): a(o)
            a(f'v_cmp_eq_u32 vcc, -1, v{TMP}')
            a(f's_cbranch_vccz {tag}_pfin')
            if STAMPS: a('s_add_u32 s77, s77, 1')
            a('s_sub_u32 s40, s40, 1')
            a(f's_cbranch_scc1 {tag}_pgive')
            ubreads()
            a(f's_branch {tag}_pld')
            a.label(f'{tag}_pgive')
            a('s_mov_b32 s40, 0')
            a(f's_branch {tag}_pfin')
    for st in (('', 'sc1') if merged else ('',)):
        for kind in 'sv':
            for w in range(4): gen_wave(kind, w, st)
    a(f's_branch {name}_done')
    a.label(f'{name}_spare')
    a(f's_cmp_lg_u32 {role}, 30')
    a(f's_cbranch_scc1 {name}_done')
    a('s_cmp_ge_u32 s22, 2')
    a(f's_cbranch_scc1 {name}_done')
    wait_flags(a, name, WS_FLG + F_XP, 256, va=16, sleep=8)
    a('v_add_u32 v3, 4096, v1')
    a('v_lshlrev_b32 v5, 4, v1')
    a(f'v_add_u32 v9, {R_FP + 64 - R_MEM}, v5')
    a(f'v_add_u32 v5, {WS_FLG + F_PROG}, v5')
    a('s_add_u32 s30, s20, s22')
    a('v_mov_b32 v6, s30')
    a('v_add_u32 v6, -1, v6')
    a('v_lshlrev_b32 v7, 3, v1')
    a('v_mov_b32 v10, -1')
    a('s_mov_b32 s36, s22')
    a(f's_mul_i32 s38, s22, {RS}')
    a('s_mul_i32 s30, s22, 7168')
    a(f's_add_u32 s30, s30, {WS_MEM2 + 7168}')
    sbase(58, 's30')
    a('s_mul_i32 s30, s22, 49152')
    a(f's_add_u32 s30, s30, {WS_XK}')
    sbase(54, 's30')
    for i in range(6):
        a('global_load_dword v8, v7, s[54:55]'); sadd64(a, 54, 8192)
    a('s_lshl_b32 s30, s22, 15')
    a(f's_add_u32 s30, s30, {WS_XK + 3*32768}')
    sbase(54, 's30')
    def fstore(data, base):
        l1 = a.newlabel('fs'); l2 = a.newlabel('fs')
        a(f's_mov_b64 exec, {RMASK}')
        a('s_cmp_lt_u32 s21, 32')
        a(f's_cbranch_scc1 {l1}')
        a(f'global_store_dword v9, v{data}, s[{base}:{base+1}]')
        a(f's_branch {l2}')
        a.label(l1)
        a(f'global_store_dword v9, v{data}, s[{base}:{base+1}] sc1')
        a.label(l2)
        a('s_mov_b64 exec, -1')
    sbase(44, WS_RING + R_MEM)
    sbase(46, WS_RING + R_FP)
    a('s_cmp_lg_u32 s22, 0')
    a(f's_cbranch_scc1 {name}_spl')
    fstore(1, 44)
    a('v_mov_b32 v2, 0')
    a.label(f'{name}_sp0')
    a('global_load_dword v8, v2, s[46:47] sc1')
    a('s_waitcnt vmcnt(0)')
    a('v_cmp_eq_u32 vcc, -1, v8')
    a(f's_cbranch_vccz {name}_sp1')
    a('s_sleep 8')
    a('s_sub_u32 s40, s40, 1')
    a(f's_cbranch_scc0 {name}_sp0')
    a('s_mov_b32 s40, 0')
    a.label(f'{name}_sp1')
    a('v_add_u32 v8, 2, v6')
    a('s_mov_b64 exec, 0xffff')
    a('global_store_dword v5, v8, s[4:5] sc1')
    a('s_mov_b64 exec, -1')
    a.label(f'{name}_spl')
    a(f's_add_u32 s30, s38, {WS_RING + R_MEM}')
    a('s_add_u32 s48, s4, s30')
    a('s_addc_u32 s49, s5, 0')
    a(f's_add_u32 s38, s38, {RS}')
    a(f's_cmp_eq_u32 s38, {4*RS}')
    a('s_cselect_b32 s38, 0, s38')
    a(f's_add_u32 s30, s38, {WS_RING + R_MEM}')
    a('s_add_u32 s44, s4, s30')
    a('s_addc_u32 s45, s5, 0')
    a(f's_add_u32 s38, s38, {RS}')
    a(f's_cmp_eq_u32 s38, {4*RS}')
    a('s_cselect_b32 s38, 0, s38')
    a.label(f'{name}_spp')
    for t in range(7):
        a(f'global_load_dwordx4 {vr(16+4*t,4)}, {"v1" if t < 4 else "v3"}, s[44:45] offset:{1024*(t%4)} sc1')
    a('s_waitcnt vmcnt(0)')
    for o in max_ops(range(16, 44), 8): a(o)
    a('v_cmp_eq_u32 vcc, -1, v8')
    a(f's_cbranch_vccz {name}_spk')
    a('s_sleep 4')
    a('s_sub_u32 s40, s40, 1')
    a(f's_cbranch_scc0 {name}_spp')
    a('s_mov_b32 s40, 0')
    a.label(f'{name}_spk')
    fstore(1, 44)
    fstore(10, 48)
    for t in range(7):
        a(f'global_store_dwordx4 {"v1" if t < 4 else "v3"}, {vr(16+4*t,4)}, s[58:59] offset:{1024*(t%4)} sc1')
    a('v_add_u32 v6, 2, v6')
    a('v_add_u32 v8, 1, v6')
    a('s_mov_b64 exec, 0xffff')
    a('global_store_dword v5, v8, s[4:5] sc1')
    a('s_mov_b64 exec, -1')
    for i in range(4):
        a('global_load_dword v8, v7, s[54:55]'); sadd64(a, 54, 8192)
    sadd64(a, 54, 32768)
    sadd64(a, 58, 14336)
    a('s_add_u32 s36, s36, 2')
    a('s_cmp_lt_u32 s36, 63')
    a(f's_cbranch_scc1 {name}_spl')
    a.label(f'{name}_done')

def gen_k3(a, name='chain_kernel'):
    a(f'.globl {name}\n.p2align 8\n.type {name},@function\n{name}:')
    a('s_cmp_ge_u32 s2, 256')
    a(f's_cbranch_scc1 {name}_end')
    a(f's_load_dwordx2 s[4:5], s[0:1], {KA_WS}')
    a(f's_load_dwordx2 s[6:7], s[0:1], {KA_DBG}')
    stamp_init(a)
    if STAMPS:
        a('s_mov_b32 s76, 0'); a('s_mov_b32 s77, 0'); a('s_mov_b32 s86, 0'); a('s_memrealtime s[78:79]'); a('s_memtime s[82:83]')
    a('s_getreg_b32 s23, hwreg(HW_REG_XCC_ID)')
    a('s_and_b32 s23, s23, 15')
    a('v_lshrrev_b32 v2, 6, v0')
    a('v_readfirstlane_b32 s22, v2')
    a('s_waitcnt lgkmcnt(0)')
    a('s_cmp_lg_u32 s23, 0')
    a(f's_cbranch_scc1 {name}_end')
    a('s_cmp_lg_u32 s22, 0')
    a(f's_cbranch_scc1 {name}_wait')
    a('v_mov_b32 v1, 0')
    a('v_mov_b32 v2, 1')
    a('s_mov_b64 exec, 1')
    a('global_atomic_add v3, v1, v2, s[6:7] sc0')
    a('s_waitcnt vmcnt(0)')
    a(f'v_mov_b32 v1, {L_MISC}')
    a('ds_write_b32 v1, v3')
    a('s_waitcnt lgkmcnt(0)')
    a('s_mov_b64 exec, -1')
    a.label(f'{name}_wait')
    a('s_barrier')
    a(f'v_mov_b32 v1, {L_MISC}')
    a('ds_read_b32 v3, v1')
    a('s_waitcnt lgkmcnt(0)')
    a('v_readfirstlane_b32 s24, v3')
    a('s_cmp_ge_u32 s24, 32')
    a(f's_cbranch_scc1 {name}_end')
    gen_chain(a, name)
    if STAMPS:
        a('s_memrealtime s[80:81]')
        a('s_memtime s[84:85]')
        a('s_waitcnt lgkmcnt(0) vmcnt(0)')
        a('s_mov_b64 exec, 1')
        a('s_lshl_b32 s3, s2, 2')
        a('s_add_u32 s3, s3, s22')
        a('s_lshl_b32 s3, s3, 4')
        a(f's_add_u32 s3, s3, {WS_STAMP + 3*0x20000}')
        a('s_sub_u32 s84, s84, s82')
        a('s_lshl_b32 s86, s86, 4')
        a('s_lshl_b32 s77, s77, 0')
        a('s_lshl_b32 s77, s77, 16')
        a('s_or_b32 s76, s76, s77')
        a('v_mov_b32 v0, s3')
        a('v_mov_b32 v4, s76'); a('v_mov_b32 v5, s86' if ENV('RT', 0) else 'v_mov_b32 v5, s84'); a('v_mov_b32 v6, s78'); a('v_mov_b32 v7, s80')
        a('global_store_dwordx4 v0, v[4:7], s[4:5]')
        a('s_nop 1')
    stamp_end(a, 2, n=9)
    a.label(f'{name}_end')
    a('s_endpgm')
    return dict(name=name, vgpr=256, agpr=256, sgpr=96, grid=256, block=256, lds=LDS_BYTES)
```

```python
from asmlib import *
from layout import *
from k1 import stamp, stamp_end, stamp_init
from k2 import gen_ugemm, gen_ffn, gen_argmax
from k3 import gen_chain, L_MISC, LDS_BYTES, ENV
from k4 import gen_hs
from prep import gen_img_job, wait_flags, wait_arrivals, get_tag, WgWait, wait_prog
from k6 import gen_mjob
from k5 import gen_out_item, gen_ffnrow, out_setup

NS_REP = 4
import os

def job_of(a, hidx):
    a(f's_lshr_b32 s25, {hidx}, 3')
    a('s_mul_i32 s26, s25, 9363')
    a('s_lshr_b32 s26, s26, 16')
    a('s_mul_i32 s27, s26, 7')
    a('s_sub_u32 s27, s25, s27')
    a('s_lshl_b32 s26, s26, 3')
    a(f's_and_b32 s25, {hidx}, 7')
    a('s_add_u32 s26, s26, s25')
    a('s_mul_i32 s39, s26, 7')
    a('s_add_u32 s39, s39, s27')

def warm_touch(a, name):
    a('s_cmp_eq_u32 s23, 0')
    a(f's_cbranch_scc1 {name}_nowarm')
    a('s_sub_u32 s38, s23, 1')
    a('s_lshl_b32 s38, s38, 5')
    a('s_bfe_u32 s25, s2, 0x50003')
    a('s_add_u32 s38, s38, s25')
    job_of(a, 's38')
    a('s_and_b32 s25, s26, 15')
    a('s_cmp_ge_u32 s26, 16')
    a('s_cselect_b32 s28, s12, s8')
    a('s_cselect_b32 s29, s13, s9')
    a('s_cselect_b32 s30, s14, s10')
    a('s_cselect_b32 s31, s15, s11')
    a('v_lshrrev_b32 v9, 2, v0')
    a('v_and_b32 v10, 3, v0')
    a('v_lshlrev_b32 v11, 13, v9')
    a('v_lshl_add_u32 v11, v10, 7, v11')
    a('s_lshl_b32 s33, s25, 9')
    a('v_add_u32 v11, s33, v11')
    a('s_cmp_ge_u32 s26, 16')
    a(f's_cbranch_scc1 {name}_wV')
    a('s_lshl_b32 s32, s27, 19')
    a('v_add_u32 v12, s32, v11')
    a(f's_branch {name}_wD')
    a.label(f'{name}_wV')
    a('v_mul_u32_u24 v12, 896, v0')
    a('s_mul_i32 s32, s25, 229376')
    a('s_lshl_b32 s34, s27, 7')
    a('s_add_u32 s32, s32, s34')
    a('v_add_u32 v12, s32, v12')
    a.label(f'{name}_wD')
    a('global_load_dword v248, v12, s[30:31]')
    a('s_and_b32 s32, s27, 3')
    a(f's_mul_i32 s32, s32, {112*8192}')
    a('v_add_u32 v11, s32, v11')
    a('global_load_dword v249, v11, s[28:29]')
    a(f'v_add_u32 v11, {48*8192}, v11')
    a('global_load_dword v255, v11, s[28:29]')
    a('s_waitcnt vmcnt(3)')
    a(f's_branch {name}_warmd')
    a.label(f'{name}_nowarm')
    a('s_waitcnt vmcnt(0)')
    a.label(f'{name}_warmd')

def gen_main(a, name='main_kernel'):
    a(f'.globl {name}\n.p2align 8\n.type {name},@function\n{name}:')
    a('s_cmp_ge_u32 s2, 256')
    a(f's_cbranch_scc1 {name}_end')
    a(f's_load_dwordx2 s[4:5], s[0:1], {KA_WS}')
    a(f's_load_dwordx2 s[6:7], s[0:1], {KA_DBG}')
    stamp_init(a)
    if ENV('DBGT', 0):
        a('s_mov_b32 s88, 0'); a('s_memrealtime s[78:79]'); a('s_memtime s[82:83]')
    if STAMPS:
        a('s_mov_b32 s76, 0'); a('s_mov_b32 s77, 0'); a('s_mov_b32 s86, 0'); a('s_mov_b32 s87, 0'); a('s_mov_b32 s88, 0'); a('s_memrealtime s[78:79]'); a('s_memtime s[82:83]')
    a('s_memrealtime s[16:17]')
    a(f's_load_dwordx4 s[8:11], s[0:1], {KA_WQ}')
    a(f's_load_dwordx4 s[12:15], s[0:1], {KA_WV}')
    a('s_getreg_b32 s23, hwreg(HW_REG_XCC_ID)')
    a('s_and_b32 s23, s23, 7')
    if ENV('FAKEXCC', 0) == 1:
        a('s_and_b32 s23, s2, 3'); a('s_add_u32 s23, s23, 1')
    if ENV('FAKEXCC', 0) == 2:
        a('s_mul_i32 s23, s2, 5'); a('s_and_b32 s23, s23, 15'); a('s_min_u32 s23, s23, 5')
    a('v_lshrrev_b32 v2, 6, v0')
    a('v_readfirstlane_b32 s22, v2')
    a('s_waitcnt lgkmcnt(0)')
    if ENV('CPF', 0):
        a('s_getpc_b64 s[10:11]')
        a('s_lshr_b32 s24, s2, 3')
        a('s_lshl_b32 s24, s24, 2')
        a('s_add_u32 s24, s24, s22')
        a('s_mul_i32 s25, s24, 5462')
        a('s_lshr_b32 s25, s25, 16')
        a('s_mul_i32 s25, s25, 12')
        a('s_sub_u32 s24, s24, s25')
        a('s_lshl_b32 s24, s24, 13')
        a('v_and_b32 v9, 63, v0')
        a('v_lshlrev_b32 v9, 7, v9')
        a('v_add_u32 v9, s24, v9')
        a(f'v_min_u32 v9, CODE_BYTES, v9')
        a('global_load_dword v10, v9, s[10:11]')
    a('s_cmp_lg_u32 s22, 0')
    a(f's_cbranch_scc1 {name}_noat')
    a('s_mov_b64 exec, 1')
    a('s_and_b32 s24, s23, 3')
    a('s_lshl_b32 s24, s24, 6')
    a('s_lshr_b32 s25, s23, 2')
    a('s_lshl_b32 s25, s25, 2')
    a('s_add_u32 s24, s24, s25')
    a('v_mov_b32 v1, s24')
    a('v_mov_b32 v2, 1')
    a('global_atomic_add v3, v1, v2, s[6:7] sc0')
    a('s_mov_b64 exec, -1')
    a.label(f'{name}_noat')
    if ENV('WARM', 0): warm_touch(a, name)
    else: a('s_waitcnt vmcnt(0)')
    a('s_cmp_lg_u32 s22, 0')
    a(f's_cbranch_scc1 {name}_wait')
    a('s_mov_b64 exec, 1')
    a('v_readfirstlane_b32 s24, v3')
    a('v_mov_b32 v1, 0')
    a('s_cmp_lg_u32 s24, 0')
    a(f's_cbranch_scc1 {name}_notag')
    a('s_or_b32 s20, s16, 1')
    a('v_mov_b32 v6, s20')
    a('v_mov_b32 v7, 0')
    a(f'global_atomic_cmpswap v1, v[6:7], s[6:7] offset:{DBG_TAG}')
    a.label(f'{name}_notag')
    a('s_lshl_b32 s25, s23, 5')
    a('s_add_u32 s25, s25, s24')
    a('v_mov_b32 v3, s25')
    a('s_cmp_lt_u32 s24, 32')
    a(f's_cbranch_scc1 {name}_pub')
    a(f'global_atomic_add v3, v1, v2, s[6:7] offset:{DBG_OVF} sc0')
    a('s_mov_b32 s40, 1000000')
    wait_arrivals(a, name + '_o')
    a('v_readfirstlane_b32 s24, v3')
    a('s_mov_b32 s26, 255')
    for x in range(8):
        lx = a.newlabel('ovf')
        a(f'v_readfirstlane_b32 s25, v{8 + 2*(x%4) + x//4}')
        a('s_min_u32 s25, s25, 32')
        a('s_sub_u32 s27, 32, s25')
        a('s_cmp_lt_u32 s24, s27')
        a(f's_cbranch_scc0 {lx}')
        a('s_add_u32 s26, s24, s25')
        a(f's_add_u32 s26, s26, {32*x}')
        a(f's_branch {name}_ovd')
        a.label(lx)
        a('s_sub_u32 s24, s24, s27')
    a.label(f'{name}_ovd')
    a('v_mov_b32 v3, s26')
    a.label(f'{name}_pub')
    a(f'v_mov_b32 v1, {L_MISC}')
    a('ds_write_b32 v1, v3')
    a('s_waitcnt lgkmcnt(0)')
    a('s_mov_b64 exec, -1')
    a.label(f'{name}_wait')
    a('s_barrier')
    a(f'v_mov_b32 v1, {L_MISC}')
    a('ds_read_b32 v2, v1')
    a('s_waitcnt lgkmcnt(0)')
    a('v_readfirstlane_b32 s24, v2')
    a('s_cmp_ge_u32 s24, 32')
    a(f's_cbranch_scc1 {name}_helper')
    gen_chain(a, name + '_c', merged=True)
    a(f's_branch {name}_fin')
    a.label(f'{name}_helper')
    a('s_sub_u32 s24, s24, 32')
    a('v_mov_b32 v250, v0')
    a('s_mov_b32 s38, s24')
    a('s_and_b32 s21, s24, 31')
    a('s_mul_i32 s21, s21, 7')
    a('s_lshr_b32 s25, s24, 5')
    a('s_add_u32 s21, s21, s25')
    a('s_mov_b32 s24, s21')
    if STAMPS: a('s_add_u32 s74, s21, 100')
    a('s_sub_u32 s25, s24, 140')
    a(f's_cmp_ge_u32 s25, {16*NS_REP}')
    a(f's_cbranch_scc1 {name}_nopf')
    a('s_cmp_ge_u32 s22, 3')
    a(f's_cbranch_scc1 {name}_nopf')
    a('s_mul_i32 s25, s25, 2560')
    a(f's_add_u32 s25, s25, {WS_PX}')
    a('v_min_u32 v1, 159, v0')
    a('v_lshlrev_b32 v1, 4, v1')
    a('v_add_u32 v1, s25, v1')
    for r in range(4): a(f'v_mov_b32 v{4+r}, -1')
    for i in range(64 // NS_REP):
        a('global_store_dwordx4 v1, v[4:7], s[4:5] sc1')
        a(f'v_add_u32 v1, {NS_REP*16*2560}, v1')
    a.label(f'{name}_nopf')
    a('s_sub_u32 s25, s24, 112')
    a('s_cmp_ge_u32 s25, 28')
    a(f's_cbranch_scc1 {name}_nopm')
    a('s_lshl_b32 s25, s25, 12')
    a(f's_add_u32 s25, s25, {WS_M2 + 63*28*4096}')
    a('v_lshlrev_b32 v1, 4, v0')
    a('v_add_u32 v1, s25, v1')
    for r in range(4): a(f'v_mov_b32 v{4+r}, -1')
    a('global_store_dwordx4 v1, v[4:7], s[4:5] sc1')
    a('s_nop 1')
    a.label(f'{name}_nopm')
    job_of(a, 's38')
    gen_img_job(a, name, 's39', unit='s21')
    a('s_barrier')
    a('v_mov_b32 v0, v250')
    a('s_mov_b32 s24, s21')
    if ENV('BISECT', 0) == 1 or ENV('NOH', 0): a(f's_branch {name}_fin')
    a('s_cmp_lt_u32 s24, 112')
    a(f's_cbranch_scc1 {name}_hu')
    a('s_cmp_lt_u32 s24, 140')
    a(f's_cbranch_scc1 {name}_hf')
    a(f's_cmp_lt_u32 s24, {140 + 16*NS_REP}')
    a(f's_cbranch_scc1 {name}_hs')
    a(f's_branch {name}_ho')
    a.label(f'{name}_hu')
    gen_ugemm(a, name, 's24', 's22', ENV('UN', 16), 4, st=os.environ.get('UST', 'sc1'), sig=True)
    a(f's_cmp_lt_u32 s24, {ENV("NUO", 28)}')
    a(f's_cbranch_scc0 {name}_fin')
    a(f's_branch {name}_ho')
    a.label(f'{name}_hf')
    if ENV('NOF', 0): a(f's_branch {name}_fin')
    a('s_sub_u32 s24, s24, 112')
    a('s_mov_b32 s40, 1000000')
    a('v_and_b32 v3, 63, v0')
    with WgWait(a): wait_prog(a, name, 1, va=4, sleep=80)
    gen_ffn(a, name, st='sc1')
    gen_mjob(a, name, 's24')
    a(f's_branch {name}_fin')
    a.label(f'{name}_hs')
    if ENV('NOS', 0): a(f's_branch {name}_fin')
    a('s_sub_u32 s24, s24, 140')
    a('s_lshr_b32 s25, s24, 4')
    a('s_and_b32 s24, s24, 15')
    a('s_mov_b32 s40, 1000000')
    a('v_and_b32 v3, 63, v0')
    a('s_mul_i32 s26, s24, 112')
    a(f's_add_u32 s26, s26, {WS_FLG + F_IMG}')
    with WgWait(a, True):
        wait_prog(a, name, 1, va=4, sleep=80)
        wait_flags(a, name, 's26', 28, lane='v3', va=4)
    gen_hs(a, name, 's24', 's25', 64 // NS_REP, NS_REP, merged=True)
    a(f's_branch {name}_fin')
    a.label(f'{name}_ho')
    if ENV('NOO', 0): a(f's_branch {name}_fin')
    a('s_waitcnt vmcnt(0) lgkmcnt(0)')
    a('v_mov_b32 v0, v250')
    a('s_mov_b32 s40, 1000000')
    a('v_and_b32 v3, 63, v0')
    with WgWait(a):
        wait_prog(a, name, 1, va=4, sleep=80)
        wait_flags(a, name, WS_FLG + F_IMG, 896, lane='v3', va=4, sleep=40)
    gen_argmax(a)
    a('s_mov_b32 s40, s27')
    out_setup(a)
    a('s_mov_b32 s42, 2000000')
    a('v_cmp_gt_u32 s[48:49], 32, v0')
    a('v_and_b32 v131, 15, v0')
    a('v_lshlrev_b32 v131, 2, v131')
    a(f'v_add_u32 v131, {WS_FLG + F_M}, v131')
    a('s_waitcnt lgkmcnt(0)')
    a.label(f'{name}_oloop')
    a('s_waitcnt vmcnt(0)')
    with WgWait(a):
        a('s_mov_b64 exec, 1')
        a('v_mov_b32 v2, 0')
        a('v_mov_b32 v3, 1')
        a(f'global_atomic_add v7, v2, v3, s[6:7] offset:{DBG_OT} sc0')
        a('s_waitcnt vmcnt(0)')
        a('ds_write_b32 v2, v7 offset:64')
        a('s_mov_b64 exec, -1')
        a('v_readfirstlane_b32 s26, v7')
        a('s_min_u32 s26, s26, 447')
        a('s_mul_i32 s24, s26, 9363')
        a('s_lshr_b32 s24, s24, 16')
        a('s_mul_i32 s25, s24, 7')
        a('s_sub_u32 s25, s26, s25')
        a('s_mul_i32 s30, s24, 448')
        a('s_lshl_b32 s31, s25, 6')
        a('s_add_u32 s30, s30, s31')
        a(f's_add_u32 s30, s30, {WS_FLG + F_U}')
        wait_flags(a, name, 's30', 16, va=140, sleep=30, budget='s42')
        a('s_waitcnt lgkmcnt(0)')
    a('v_mov_b32 v2, 0')
    a('ds_read_b32 v7, v2 offset:64')
    a('s_waitcnt lgkmcnt(0)')
    a('v_readfirstlane_b32 s26, v7')
    a('s_cmp_ge_u32 s26, 448')
    a(f's_cbranch_scc1 {name}_fin')
    a('s_mul_i32 s24, s26, 9363')
    a('s_lshr_b32 s24, s24, 16')
    a('s_mul_i32 s25, s24, 7')
    a('s_sub_u32 s25, s26, s25')
    def mid():
        with WgWait(a):
            a(f's_mul_i32 s32, s24, {16*2560}')
            a(f's_add_u32 s32, s32, {WS_PX}')
            a('v_add_u32 v140, s32, v130')
            a('s_mul_i32 s32, s24, 448')
            a('s_lshl_b32 s35, s25, 6')
            a('s_add_u32 s32, s32, s35')
            a('v_add_u32 v141, s32, v131')
            a('v_cndmask_b32 v140, v141, v140, s[48:49]')
            a('s_cmp_eq_u32 s24, 63')
            a('s_cselect_b32 s35, 0, -1')
            a.label(f'{name}_pw')
            a('global_load_dword v141, v140, s[4:5] sc1')
            a('s_waitcnt vmcnt(0)')
            a('v_cmp_eq_u32 vcc, -1, v141')
            a('v_cmp_ne_u32 s[50:51], s20, v141')
            a('s_and_b32 vcc_hi, s51, s35')
            a('s_cmp_eq_u64 vcc, 0')
            a(f's_cbranch_scc1 {name}_cwd')
            a('s_sleep 2')
            a('s_cmp_ge_u32 s24, 61')
            a(f's_cbranch_scc1 {name}_pws')
            a(f's_sleep {ENV("OSLP", 24)}')
            a.label(f'{name}_pws')
            a('s_sub_u32 s42, s42, 1')
            a(f's_cbranch_scc0 {name}_pw')
            a('s_mov_b32 s42, 0')
            a.label(f'{name}_cwd')
    gen_out_item(a, name, 's24', 's25', st_ld='sc1', merged=True, mid=mid)
    a(f's_branch {name}_oloop')
    gen_ffnrow(a, name, st_ld='sc1', merged=True)
    a.label(f'{name}_fin')
    if STAMPS:
        a('s_memrealtime s[80:81]')
        a('s_memtime s[84:85]')
        a('s_waitcnt lgkmcnt(0) vmcnt(0)')
        a('s_mov_b64 exec, 1')
        a('s_lshl_b32 s3, s2, 2')
        a('s_add_u32 s3, s3, s22')
        a('s_lshl_b32 s3, s3, 4')
        a(f's_add_u32 s3, s3, {WS_STAMP + 3*0x20000}')
        a('s_sub_u32 s84, s84, s82')
        a('s_lshl_b32 s86, s87, 24')
        a('s_or_b32 s76, s76, s86')
        a('s_lshl_b32 s77, s77, 16')
        a('s_or_b32 s76, s76, s77')
        a('v_mov_b32 v0, s3')
        a('v_mov_b32 v4, s84' if ENV('CLK', 0) else 'v_mov_b32 v4, s76'); a('v_mov_b32 v5, s88'); a('v_mov_b32 v6, s78'); a('v_mov_b32 v7, s80')
        a('global_store_dwordx4 v0, v[4:7], s[4:5]')
        a('s_nop 1')
    stamp_end(a, 2, n=9)
    if ENV('DBGT', 0):
        a('s_memrealtime s[80:81]')
        a('s_memtime s[84:85]')
        a('s_waitcnt lgkmcnt(0) vmcnt(0)')
        a('s_mov_b64 exec, 1')
        a('s_cmp_lg_u32 s22, 0')
        a(f's_cbranch_scc1 {name}_end')
        a('v_mov_b32 v0, 0')
        a('s_not_b32 s78, s78')
        a('v_mov_b32 v4, s78'); a('global_atomic_umax v0, v4, s[6:7] offset:16')
        a('v_mov_b32 v5, s88'); a('global_atomic_umax v0, v5, s[6:7] offset:20')
        a('v_mov_b32 v6, s80'); a('global_atomic_umax v0, v6, s[6:7] offset:24')
        a('s_cmp_eq_u32 s88, 0')
        a(f's_cbranch_scc1 {name}_end')
        a('global_atomic_umax v0, v6, s[6:7] offset:28')
        a('s_sub_u32 s84, s84, s82')
        a('v_mov_b32 v7, s84'); a('global_atomic_umax v0, v7, s[6:7] offset:32')
    a.label(f'{name}_end')
    a('s_endpgm')
    a(f'.set CODE_BYTES, {name}_end - {name} - 256')
    return dict(name=name, vgpr=256, agpr=256, sgpr=96, grid=256, block=256, lds=LDS_BYTES)
```

```python
from asmlib import *
from layout import *
from k1 import wave_sum2, stamp
import os
IMGST = os.environ.get('IMGST', 'sc1')

def set_flag(a, off_sgpr_or_imm, vt=1, ws='s[4:5]'):
    a('s_waitcnt vmcnt(0)')
    a(f'v_mov_b32 v{vt}, {off_sgpr_or_imm}')
    a(f'v_mov_b32 v{vt+1}, s20')
    a('s_mov_b64 exec, 1')
    a(f'global_store_dword v{vt}, v{vt+1}, {ws} sc1')
    a('s_mov_b64 exec, -1')

def wait_flags(a, name, base, nwords, lane='v0', va=1, sleep=8, budget='s40', ws='s[4:5]'):
    k = (nwords + 63) // 64
    L = a.newlabel(name + '_wf'); D = a.newlabel(name + '_wd')
    a(f'v_lshlrev_b32 v{va}, 2, {lane}')
    if nwords < 64: a(f'v_min_u32 v{va}, {4*(nwords-1)}, v{va}')
    else: assert nwords % 64 == 0
    a(f'v_add_u32 v{va}, {base}, v{va}')
    a.label(L)
    for i in range(k): a(f'global_load_dword v{va+1+i}, v{va}, {ws} offset:{256*i} sc1')
    a('s_waitcnt vmcnt(0)')
    for i in range(k):
        a(f'v_xor_b32 v{va+1+i}, s20, v{va+1+i}')
        if i: a(f'v_or_b32 v{va+1}, v{va+1}, v{va+1+i}')
    a(f'v_cmp_ne_u32 vcc, 0, v{va+1}')
    a(f's_cbranch_vccz {D}')
    a(f's_sleep {sleep}')
    a(f's_sub_u32 {budget}, {budget}, 1')
    a(f's_cbranch_scc0 {L}')
    a(f's_mov_b32 {budget}, 0')
    a.label(D)

class WgWait:
    def __init__(self, a, inv=False): self.a = a; self.l = a.newlabel('wgw'); self.inv = inv
    def __enter__(self):
        self.a('s_cmp_lg_u32 s22, 0'); self.a(f's_cbranch_scc1 {self.l}')
    def __exit__(self, *x):
        if self.inv:
            self.a('buffer_inv sc1'); self.a('s_waitcnt vmcnt(0)')
        self.a.label(self.l); self.a('s_barrier')

def wait_prog(a, name, need, va=1, sleep=60, budget='s40'):
    L = a.newlabel(name + '_pg'); D = a.newlabel(name + '_pd')
    a('s_and_b32 s3, s2, 15')
    a('s_lshl_b32 s3, s3, 8')
    a(f's_add_u32 s3, s3, {WS_FLG + F_PROG}')
    a(f'v_mov_b32 v{va}, s3')
    a.label(L)
    a(f'global_load_dword v{va+1}, v{va}, s[4:5] sc1')
    a('s_waitcnt vmcnt(0)')
    a(f'v_readfirstlane_b32 s3, v{va+1}')
    a('s_sub_u32 s3, s3, s20')
    a(f's_sub_u32 s3, s3, {need}')
    a('s_cmp_lt_u32 s3, 128')
    a(f's_cbranch_scc1 {D}')
    a(f's_sleep {sleep}')
    a(f's_sub_u32 {budget}, {budget}, 1')
    a(f's_cbranch_scc0 {L}')
    a(f's_mov_b32 {budget}, 0')
    a.label(D)

def get_tag(a, name, v=1):
    L = a.newlabel(name + '_gt'); D = a.newlabel(name + '_gd')
    a(f'v_mov_b32 v{v}, 0')
    a.label(L)
    a(f'global_load_dword v{v+1}, v{v}, s[6:7] offset:{DBG_TAG} sc1')
    a('s_waitcnt vmcnt(0)')
    a(f'v_readfirstlane_b32 s20, v{v+1}')
    a('s_cmp_lg_u32 s20, 0')
    a(f's_cbranch_scc1 {D}')
    a('s_sleep 2')
    a('s_sub_u32 s40, s40, 1')
    a(f's_cbranch_scc0 {L}')
    a('s_mov_b32 s40, 0')
    a.label(D)

def wait_arrivals(a, name):
    L = a.newlabel(name + '_aw'); D = a.newlabel(name + '_ad')
    a('v_mov_b32 v7, 0')
    a.label(L)
    for i in range(4): a(f'global_load_dwordx2 v[{8+2*i}:{9+2*i}], v7, s[6:7] offset:{64*i} sc1')
    a('s_waitcnt vmcnt(0)')
    a('v_add3_u32 v16, v8, v9, v10')
    a('v_add3_u32 v16, v16, v11, v12')
    a('v_add3_u32 v16, v16, v13, v14')
    a('v_add_u32 v16, v16, v15')
    a('v_readfirstlane_b32 s25, v16')
    a('s_cmp_ge_u32 s25, 256')
    a(f's_cbranch_scc1 {D}')
    a('s_sleep 4')
    a('s_sub_u32 s40, s40, 1')
    a(f's_cbranch_scc0 {L}')
    a('s_mov_b32 s40, 0')
    a.label(D)

def gen_img_job(a, name, job='s24', unit='s24'):
    AOP, ACC, BOP = 16, 144, 208
    a(f's_load_dwordx4 s[8:11], s[0:1], {KA_WQ}')
    a(f's_load_dwordx4 s[12:15], s[0:1], {KA_WV}')
    a(f's_mul_i32 s25, {job}, 9363')
    a('s_lshr_b32 s25, s25, 16')
    a('s_mul_i32 s26, s25, 7')
    a(f's_sub_u32 s26, {job}, s26')
    a('s_lshr_b32 s23, s25, 4')
    a('s_and_b32 s25, s25, 15')
    a('v_and_b32 v3, 63, v0')
    a('v_and_b32 v8, 15, v3')
    a('v_lshrrev_b32 v9, 4, v3')
    a('s_waitcnt lgkmcnt(0)')
    a('s_cmp_eq_u32 s23, 1')
    a('s_cselect_b32 s28, s12, s8')
    a('s_cselect_b32 s29, s13, s9')
    a(f's_cselect_b32 s30, {WS_VIMG}, {WS_AIMG}')
    a('s_cselect_b32 s31, 1.0, 0x3db8aa3b')
    a(f's_cbranch_scc1 {name}_stV')
    a('v_lshrrev_b32 v14, 5, v0')
    a('v_and_b32 v15, 31, v0')
    a('s_lshl_b32 s34, s26, 6')
    a('v_add_u32 v1, s34, v14')
    a('v_lshlrev_b32 v1, 13, v1')
    a('s_lshl_b32 s33, s25, 9')
    a('v_lshl_add_u32 v1, v15, 4, v1')
    a('v_add_u32 v1, s33, v1')
    for i in range(8):
        a(f'global_load_dwordx4 {vr(BOP + 4*i, 4)}, v1, s[10:11]')
        if i < 7: a('v_add_u32 v1, 0x10000, v1')
    a('v_mul_u32_u24 v2, 528, v14')
    a('v_lshl_add_u32 v2, v15, 4, v2')
    a('s_mov_b32 s35, 4224')
    a(f's_branch {name}_stD')
    a.label(f'{name}_stV')
    a('v_lshrrev_b32 v14, 3, v0')
    a('v_and_b32 v15, 7, v0')
    a('v_mul_u32_u24 v1, 896, v14')
    a('v_lshl_add_u32 v1, v15, 4, v1')
    a('s_mul_i32 s33, s25, 229376')
    a('s_lshl_b32 s34, s26, 7')
    a('s_add_u32 s33, s33, s34')
    a('v_add_u32 v1, s33, v1')
    for i in range(8):
        a(f'global_load_dwordx4 {vr(BOP + 4*i, 4)}, v1, s[14:15]')
        if i < 7: a('v_add_u32 v1, 28672, v1')
    a('v_mul_u32_u24 v2, 144, v14')
    a('v_lshl_add_u32 v2, v15, 4, v2')
    a('s_mov_b32 s35, 4608')
    a.label(f'{name}_stD')
    LA = 0xA000
    a('s_add_u32 s36, s22, s26')
    a('s_cmp_ge_u32 s36, 7')
    a('s_cselect_b32 s32, 7, 0')
    a('s_sub_u32 s36, s36, s32')
    a('s_add_u32 s37, s36, 4')
    a('s_cmp_ge_u32 s37, 7')
    a('s_cselect_b32 s32, 7, 0')
    a('s_sub_u32 s37, s37, s32')
    a('v_lshlrev_b32 v10, 13, v9')
    a('v_lshl_add_u32 v10, v8, 4, v10')
    a('s_lshl_b32 s33, s25, 9')
    a('v_add_u32 v10, s33, v10')
    a('s_lshl_b32 s32, s36, 19')
    a('s_add_u32 s16, s28, s32')
    a('s_addc_u32 s17, s29, 0')
    a('s_lshl_b32 s32, s37, 19')
    a('s_add_u32 s18, s28, s32')
    a('s_addc_u32 s19, s29, 0')
    def areg(sl, hh, i): return (vr if sl == 0 else ar)((AOP if sl == 0 else 0) + 64*hh + 4*i, 4)
    def aload_ops(sl):
        ops = []
        for qd in range(4):
            ops.append([f's_add_u32 s32, s22, {qd}', 's_and_b32 s32, s32, 3', 's_lshl_b32 s32, s32, 17', 'v_add_u32 v11, s32, v10'])
            for i4 in range(4):
                for hh in range(2):
                    ops.append([f'global_load_dwordx4 {areg(sl, hh, 4*qd + i4)}, v11, s[{16+2*sl}:{17+2*sl}] offset:{256*hh}'])
                if i4 < 3: ops.append(['v_add_u32 v11, 0x8000, v11'])
        return ops
    a('s_cmp_eq_u32 s22, 3')
    a(f's_cbranch_scc1 {name}_skA')
    for l in aload_ops(0):
        for o in l: a(o)
    a(f's_branch {name}_skAd')
    a.label(f'{name}_skA')
    a('s_waitcnt vmcnt(0)')
    a.label(f'{name}_skAd')
    for i in range(8):
        a(f's_waitcnt vmcnt({32 + 7 - i})')
        a(f'ds_write_b128 v2, {vr(BOP + 4*i, 4)}')
        if i < 7: a('v_add_u32 v2, s35, v2')
    a('s_mul_i32 s32, s22, 17408')
    a(f's_add_u32 s32, s32, {LA}')
    a('v_mul_u32_u24 v12, 272, v9')
    a('v_lshl_add_u32 v12, v8, 4, v12')
    a('v_add_u32 v12, s32, v12')
    a('v_lshrrev_b32 v13, 3, v8')
    a('v_lshlrev_b32 v13, 4, v13')
    a('v_bfe_u32 v11, v8, 2, 1')
    a('v_lshl_add_u32 v13, v11, 2, v13')
    a('v_and_b32 v11, 3, v8')
    a('v_add_u32 v13, v13, v11')
    a('v_mul_u32_u24 v13, 272, v13')
    a('v_lshl_add_u32 v13, v9, 4, v13')
    a('v_add_u32 v13, s32, v13')
    a('s_waitcnt lgkmcnt(0)')
    a('s_barrier')
    stamp(a, 3)
    a('s_mov_b32 s40, 1000000')
    get_tag(a, name, v=5)
    a(f's_lshl_b32 s38, {job}, 2')
    a('s_add_u32 s38, s38, s22')
    a('s_lshl_b32 s38, s38, 2')
    a(f's_add_u32 s38, s38, {WS_FLG + F_IMG0}')
    a('s_cmp_lg_u32 s22, 3')
    a(f's_cbranch_scc1 {name}_nx')
    set_flag(a, 's38', vt=5)
    a(f's_cmp_ge_u32 {unit}, 128')
    a(f's_cbranch_scc1 {name}_nx2')
    a('v_mov_b32 v251, v10'); a('v_mov_b32 v252, v12'); a('v_mov_b32 v253, v13')
    a('s_mov_b64 s[44:45], s[16:17]'); a('s_mov_b64 s[46:47], s[18:19]'); a('s_mov_b32 s48, s25'); a('s_mov_b32 s49, s26')
    a(f's_mov_b32 s34, {0xA000 + 3*17408}')
    gen_xprep(a, name, unit, 's34')
    a('v_mov_b32 v10, v251'); a('v_mov_b32 v12, v252'); a('v_mov_b32 v13, v253')
    a('s_mov_b64 s[16:17], s[44:45]'); a('s_mov_b64 s[18:19], s[46:47]'); a('s_mov_b32 s25, s48'); a('s_mov_b32 s26, s49')
    a.label(f'{name}_nx2')
    for l in aload_ops(0):
        for o in l: a(o)
    a.label(f'{name}_nx')
    a('s_mul_i32 s33, s25, 28')
    a('s_lshl_b32 s34, s26, 2')
    a('s_add_u32 s33, s33, s34')
    a('s_mul_i32 s33, s33, 14')
    a('s_lshl_b32 s33, s33, 10')
    a('s_add_u32 s33, s33, s30')
    a('v_lshlrev_b32 v1, 4, v3')
    a('v_add_u32 v1, s33, v1')
    a('s_lshl_b32 s34, s37, 11')
    a('v_add_u32 v15, s34, v1')
    a('s_lshl_b32 s34, s36, 11')
    a('v_add_u32 v1, s34, v1')
    def epi():
        a('v_mov_b32 v4, v1')
        for jn in range(4):
            for u in range(2):
                X = ACC + 16*(2*u) + 4*jn; Y = ACC + 16*(2*u+1) + 4*jn
                for r in range(0, 4, 2):
                    a(f'v_pk_mul_f32 {vr(X+r,2)}, {vr(X+r,2)}, s[42:43]')
                    a(f'v_pk_mul_f32 {vr(Y+r,2)}, {vr(Y+r,2)}, s[42:43]')
                o = 216 + 4*((2*jn+u) % 8)
                a(f'v_cvt_pk_bf16_f32 v{o}, v{X}, v{X+1}')
                a(f'v_cvt_pk_bf16_f32 v{o+1}, v{Y}, v{Y+1}')
                a(f'v_cvt_pk_bf16_f32 v{o+2}, v{X+2}, v{X+3}')
                a(f'v_cvt_pk_bf16_f32 v{o+3}, v{Y+2}, v{Y+3}')
                a(f'global_store_dwordx4 v4, {vr(o,4)}, s[4:5] offset:{1024*u} sc1')
            if jn < 3: a(f'v_add_u32 v4, {TILE_B}, v4')
    a('s_mov_b32 s42, s31'); a('s_mov_b32 s43, s31')
    a('s_cmp_eq_u32 s23, 1')
    a(f's_cbranch_scc1 {name}_bV')
    a('v_mul_u32_u24 v2, 528, v8')
    a('v_lshl_add_u32 v2, v9, 4, v2')
    for k in range(8):
        for jn in range(4): a(f'ds_read_b128 {ar(128 + 16*k + 4*jn, 4)}, v2 offset:{8448*jn + 64*k}')
    a(f's_branch {name}_bD')
    a.label(f'{name}_bV')
    a('v_lshrrev_b32 v2, 2, v8')
    a('v_lshl_add_u32 v2, v9, 3, v2')
    a('v_mul_u32_u24 v2, 144, v2')
    a('v_and_b32 v14, 3, v8')
    a('v_lshl_add_u32 v2, v14, 3, v2')
    for k in range(8):
        for jn in range(4):
            a(f'ds_read_b64_tr_b16 {ar(128 + 16*k + 4*jn, 2)}, v2 offset:{4608*k + 32*jn}')
            a(f'ds_read_b64_tr_b16 {ar(128 + 16*k + 4*jn + 2, 2)}, v2 offset:{4608*k + 576 + 32*jn}')
    a.label(f'{name}_bD')
    for qd in range(4):
        a(f's_add_u32 s32, s22, {qd}'); a('s_and_b32 s32, s32, 3'); a('s_lshl_b32 s33, s32, 17'); a(f'v_add_u32 v{208+qd}, s33, v10')
        a('s_mul_i32 s32, s32, 4352'); a(f'v_add_u32 v{212+qd}, s32, v12')
    a('s_mov_b32 s41, 0')
    OPS = [216, 232 - 0]
    OP = 216
    a('s_waitcnt vmcnt(0)')
    stamp(a, 4)
    a.label(f'{name}_ul')
    for hh in range(2):
        a('s_cmp_eq_u32 s41, 0')
        a(f's_cbranch_scc0 {name}_w1{hh}')
        for sl in range(2):
            if sl: a.label(f'{name}_w1{hh}')
            for i in range(16):
                a(f'ds_write_b128 v{212 + i//4}, {areg(sl, hh, i)} offset:{1088*(i%4)}')
            if sl == 0: a(f's_branch {name}_wd{hh}')
        a.label(f'{name}_wd{hh}')
        a('s_waitcnt lgkmcnt(0)')
        def rd(kk):
            for q in range(4):
                a(f'ds_read_b128 {vr(OP + 16*(kk%2) + 4*q, 4)}, v13 offset:{(32*(q//2) + 8*(q%2))*272 + 64*kk}')
        rd(0)
        for kk in range(4):
            if kk < 3:
                rd(kk+1)
                a('s_waitcnt lgkmcnt(4)')
            else:
                a('s_waitcnt lgkmcnt(0)')
            for q in range(4):
                for jn in range(4):
                    acc = vr(ACC + 16*q + 4*jn, 4)
                    a(f'v_mfma_f32_16x16x32_bf16 {acc}, {vr(OP + 16*(kk%2) + 4*q, 4)}, {ar(128 + 16*(4*hh+kk) + 4*jn, 4)}, {acc if (kk or hh) else 0}')
    epi()
    a('v_mov_b32 v1, v15')
    a('s_cmp_eq_u32 s22, 3')
    a(f's_cbranch_scc1 {name}_jd')
    a('s_cmp_eq_u32 s41, 1')
    a(f's_cbranch_scc1 {name}_jd')
    a('s_mov_b32 s41, 1')
    NE = int(os.environ.get('NA1E', '0'))
    for i in range(16):
        va = 208 + i//4
        for h2 in range(2): a(f'global_load_dwordx4 {areg(1, h2, i)}, v{va}, s[18:19] offset:{256*h2}')
        a(f'v_add_u32 v{va}, 0x8000, v{va}')
    a('s_waitcnt vmcnt(32)')
    a('v_mov_b32 v5, s38'); a('v_mov_b32 v6, s20')
    a('s_mov_b64 exec, 1')
    a('global_store_dword v5, v6, s[4:5] sc1')
    a('s_mov_b64 exec, -1')
    stamp(a, 6)
    a('s_waitcnt vmcnt(1)')
    stamp(a, 5)
    a(f's_branch {name}_ul')
    a.label(f'{name}_jd')
    stamp(a, 1)
    if IMGST == '':
        a('buffer_wbl2 sc1'); a('s_waitcnt vmcnt(0)')
    a(f's_lshl_b32 s33, {job}, 2')
    a('s_add_u32 s33, s33, s22')
    a('s_lshl_b32 s33, s33, 2')
    a(f's_add_u32 s33, s33, {WS_FLG + F_IMG}')
    set_flag(a, 's33')
    stamp(a, 2)

def gen_xprep(a, name, unit, lds_base):
    a(f's_load_dwordx2 s[16:17], s[0:1], {KA_X}')
    a(f's_load_dwordx2 s[18:19], s[0:1], {KA_WR}')
    a(f's_load_dwordx2 s[12:13], s[0:1], {KA_GW}')
    a('v_lshlrev_b32 v1, 4, v3')
    a(f's_mul_i32 s25, {unit}, 14336')
    a('v_add_u32 v2, s25, v1')
    a('v_add_u32 v4, 8192, v2')
    a('v_min_u32 v5, 880, v1')
    a('s_waitcnt lgkmcnt(0)')
    for i in range(14):
        a(f'global_load_dwordx4 {vr(16+4*i,4)}, v{2 if i < 4 or (i < 8) else 4}, s[16:17] offset:{1024*i if i < 4 else (1024*(i-8) if i >= 8 else 0)}' if (i < 4 or 8 <= i < 12) else
          f'global_load_dwordx4 {vr(16+4*i,4)}, v{4 if i < 8 else 6}, s[16:17] offset:{1024*(i-8) if i < 8 else 1024*(i-12)}')
        if i == 3: a('v_add_u32 v6, 4096, v4')
    a('global_load_dwordx4 v[72:75], v5, s[18:19]')
    a('global_load_dwordx4 v[76:79], v5, s[12:13]')
    for i in range(14):
        a(f'v_add_u32 v10, {64*i}, v3')
        a('v_mul_u32_u24 v11, 1171, v10')
        a('v_lshrrev_b32 v11, 16, v11')
        a('v_add_lshl_u32 v10, v10, v11, 4')
        a(f'v_add_u32 v10, {lds_base}, v10')
        a(f's_waitcnt vmcnt({15 - i})')
        a(f'ds_write_b128 v10, {vr(16+4*i,4)}')
    a(f'v_add_u32 v10, {lds_base}, v5')
    a('s_waitcnt vmcnt(0)')
    a(f'ds_write_b128 v10, v[72:75] offset:{16*912}')
    a(f'ds_write_b128 v10, v[76:79] offset:{17*912}')
    a('v_lshrrev_b32 v11, 1, v9')
    a('v_lshlrev_b32 v11, 5, v11')
    a('v_and_b32 v12, 1, v9')
    a('v_lshl_add_u32 v11, v12, 3, v11')
    a(f'v_add_u32 v11, {lds_base}, v11')
    a('v_mul_u32_u24 v12, 912, v8')
    a('v_add_u32 v13, v12, v11')
    a('v_lshl_add_u32 v12, v9, 3, v12')
    a(f'v_add_u32 v12, {lds_base}, v12')
    a(f's_add_u32 s25, s25, {WS_XP}')
    a('v_add_u32 v2, s25, v1')
    a(f's_lshr_b32 s26, {unit}, 1')
    a('s_lshl_b32 s26, s26, 15')
    a(f's_and_b32 s27, {unit}, 1')
    a('s_lshl_b32 s27, s27, 12')
    a('s_add_u32 s26, s26, s27')
    a(f's_add_u32 s26, s26, {WS_XK}')
    a('v_add_u32 v4, s26, v1')
    a('s_waitcnt lgkmcnt(0)')
    for w in range(4):
        for k in range(4):
            o = (224*w + 64*k) // 8
            r = 80 + 16*w + 4*k
            if k < 3: a(f'ds_read2_b64 {vr(r,4)}, v12 offset0:{o} offset1:{o+4}')
            else:
                a(f'ds_read_b64 {vr(r,2)}, v12 offset:{8*o}')
                a(f'v_mov_b32 v{r+2}, 0'); a(f'v_mov_b32 v{r+3}, 0')
    a('s_waitcnt lgkmcnt(0)')
    for w in range(4):
        for k in range(4):
            a(f'global_store_dwordx4 v4, {vr(80+16*w+4*k,4)}, s[4:5] offset:{1024*k} sc1')
        if w < 3: a('v_add_u32 v4, 8192, v4')
    a('v_mov_b32 v14, 0')
    a('v_mov_b32 v15, 0')
    a(f'v_add_u32 v10, {16*912}, v11')
    a('s_mov_b32 s27, 0')
    a.label(f'{name}_xb')
    x = 16
    a('ds_read2_b64 v[16:19], v13 offset0:0 offset1:2')
    a('ds_read2_b64 v[144:147], v10 offset0:0 offset1:2')
    a('ds_read2_b64 v[148:151], v10 offset0:114 offset1:116')
    a('v_add_u32 v13, 64, v13')
    a('v_add_u32 v10, 64, v10')
    a('s_waitcnt lgkmcnt(2)')
    for i in range(4):
        a(f'v_lshlrev_b32 v{152+2*i}, 16, v{x+i}')
        a(f'v_and_b32 v{153+2*i}, 0xffff0000, v{x+i}')
    a(f'v_swap_b32 v{x+1}, v{x+2}')
    a(f'global_store_dwordx4 v2, {vr(x,4)}, s[4:5] sc1')
    a('v_add_u32 v2, 1024, v2')
    a('s_waitcnt lgkmcnt(0)')
    for i in range(4):
        a(f'v_lshlrev_b32 v160, 16, v{144+i}')
        a(f'v_and_b32 v161, 0xffff0000, v{144+i}')
        a(f'v_fmac_f32 v14, v{152+2*i}, v160')
        a(f'v_fmac_f32 v14, v{153+2*i}, v161')
        a(f'v_lshlrev_b32 v160, 16, v{148+i}')
        a(f'v_and_b32 v161, 0xffff0000, v{148+i}')
        a(f'v_mul_f32 v160, v{152+2*i}, v160')
        a(f'v_mul_f32 v161, v{153+2*i}, v161')
        a('v_cvt_pk_bf16_f32 v160, v160, v161')
        a('v_and_b32 v161, 0xffff0000, v160')
        a('v_lshlrev_b32 v160, 16, v160')
        a('v_add_f32 v15, v15, v160')
        a('v_add_f32 v15, v15, v161')
    a('s_add_u32 s27, s27, 1')
    a('s_cmp_lt_u32 s27, 14')
    a(f's_cbranch_scc1 {name}_xb')
    for sw in ('v_permlane16_swap_b32', 'v_permlane32_swap_b32'):
        a('v_mov_b32 v160, v14'); a('v_mov_b32 v161, v15')
        a(f'{sw} v14, v160'); a(f'{sw} v15, v161')
        a('v_add_f32 v14, v14, v160'); a('v_add_f32 v15, v15, v161')
    a('v_cvt_pk_bf16_f32 v98, v14, v15')
    a('v_lshlrev_b32 v99, 16, v98')
    a('v_ashrrev_i32 v100, 31, v99')
    a('v_or_b32 v100, 0x80000000, v100')
    a('v_xor_b32 v99, v99, v100')
    a('v_and_b32 v99, 0xffff0000, v99')
    a(f's_lshl_b32 s26, {unit}, 4')
    a('v_add_u32 v102, s26, v8')
    a('v_sub_u32 v103, 2047, v102')
    a('v_or_b32 v99, v103, v99')
    a('v_and_b32 v100, 0xffff0000, v98')
    a('v_mul_f32 v100, 0xbfb8aa3b, v100')
    a('v_exp_f32 v100, v100')
    a('v_add_f32 v100, 1.0, v100')
    a('v_rcp_f32 v100, v100')
    a('v_cvt_pk_bf16_f32 v100, v100, v100')
    a('v_and_b32 v100, 0xffff0000, v100')
    a('v_sub_f32 v101, 1.0, v100')
    a('v_cvt_pk_bf16_f32 v101, v101, v101')
    a('v_and_b32 v101, 0xffff0000, v101')
    a('v_lshlrev_b32 v103, 3, v102')
    a(f'v_add_u32 v103, {WS_G}, v103')
    a('v_lshlrev_b32 v102, 2, v102')
    a(f'v_add_u32 v102, {WS_KEY}, v102')
    a('s_mov_b64 exec, 0xffff')
    a('global_store_dword v102, v99, s[4:5] sc1')
    a('global_store_dwordx2 v103, v[100:101], s[4:5] sc1')
    a('s_mov_b64 exec, -1')
    a(f's_lshl_b32 s26, {unit}, 2')
    a(f's_add_u32 s26, s26, {WS_FLG + F_XP}')
    set_flag(a, 's26')

def gen_chain_prep(a, name, role='s24'):
    a(f's_load_dwordx2 s[14:15], s[0:1], {KA_MEM0}')
    a('v_and_b32 v3, 63, v0')
    for r in range(4): a(f'v_mov_b32 v{4+r}, -1')
    a(f's_lshl_b32 s25, {role}, 12')
    a(f's_add_u32 s25, s25, {WS_RING}')
    a('v_lshlrev_b32 v1, 4, v0')
    a('v_add_u32 v1, s25, v1')
    for i in range(6):
        if i == 5:
            a(f's_cmp_ge_u32 {role}, 20')
            a(f's_cbranch_scc1 {name}_rf')
        a('global_store_dwordx4 v1, v[4:7], s[4:5] sc1')
        if i < 5: a('v_add_u32 v1, 0x20000, v1')
    a.label(f'{name}_rf')
    a(f's_lshl_b32 s25, {role}, 12')
    a(f's_add_u32 s25, s25, {WS_MEM2 + 7168}')
    a('v_lshlrev_b32 v1, 4, v0')
    a('v_add_u32 v1, s25, v1')
    for i in range(4):
        if i == 3:
            a(f's_cmp_ge_u32 {role}, 15')
            a(f's_cbranch_scc1 {name}_mf')
        a('global_store_dwordx4 v1, v[4:7], s[4:5] sc1')
        if i < 3: a('v_add_u32 v1, 0x20000, v1')
    a.label(f'{name}_mf')
    a('s_waitcnt lgkmcnt(0)')
    a(f's_cmp_lg_u32 {role}, 0')
    a(f's_cbranch_scc1 {name}_nm0')
    a('v_bfe_u32 v8, v0, 1, 3')
    a('v_mul_u32_u24 v8, 896, v8')
    a('v_lshrrev_b32 v9, 4, v0')
    a('v_lshl_add_u32 v8, v9, 5, v8')
    a('v_and_b32 v9, 1, v0')
    a('v_lshl_add_u32 v8, v9, 4, v8')
    a('v_lshlrev_b32 v9, 4, v0')
    a(f'v_add_u32 v9, {WS_MEM2}, v9')
    a('v_add_u32 v10, 4096, v9')
    a('global_load_dwordx4 v[12:15], v8, s[14:15]')
    a('s_waitcnt vmcnt(0)')
    a('global_store_dwordx4 v9, v[12:15], s[4:5] sc1')
    a('s_cmp_eq_u32 s22, 3')
    a(f's_cbranch_scc1 {name}_nm0')
    a('global_load_dwordx4 v[16:19], v8, s[14:15] offset:512')
    a('s_waitcnt vmcnt(0)')
    a('global_store_dwordx4 v10, v[16:19], s[4:5] sc1')
    a('s_nop 1')
    a.label(f'{name}_nm0')
    get_tag(a, name)
    a(f's_lshl_b32 s36, {role}, 2')
    a('s_add_u32 s36, s36, s22')
    a('s_lshl_b32 s36, s36, 2')
    a(f's_add_u32 s36, s36, {WS_FLG + F_XP + 512}')
    set_flag(a, 's36')
    wait_arrivals(a, name)
    a('v_readfirstlane_b32 s21, v8')
```

```python
from asmlib import *
from layout import *
from k1 import stamp, stamp_end, stamp_init
from k2 import gen_ugemm, gen_ffn, gen_argmax
from k3 import gen_chain, L_MISC, LDS_BYTES, ENV
from k4 import gen_hs
from prep import gen_img_job, wait_flags, wait_arrivals, get_tag, WgWait, wait_prog
from k6 import gen_mjob
from k5 import gen_out_item, gen_ffnrow, out_setup

NS_REP = 4
import os

def job_of(a, hidx):
    a(f's_lshr_b32 s25, {hidx}, 3')
    a('s_mul_i32 s26, s25, 9363')
    a('s_lshr_b32 s26, s26, 16')
    a('s_mul_i32 s27, s26, 7')
    a('s_sub_u32 s27, s25, s27')
    a('s_lshl_b32 s26, s26, 3')
    a(f's_and_b32 s25, {hidx}, 7')
    a('s_add_u32 s26, s26, s25')
    a('s_mul_i32 s39, s26, 7')
    a('s_add_u32 s39, s39, s27')

def warm_touch(a, name):
    a('s_cmp_eq_u32 s23, 0')
    a(f's_cbranch_scc1 {name}_nowarm')
    a('s_sub_u32 s38, s23, 1')
    a('s_lshl_b32 s38, s38, 5')
    a('s_bfe_u32 s25, s2, 0x50003')
    a('s_add_u32 s38, s38, s25')
    job_of(a, 's38')
    a('s_and_b32 s25, s26, 15')
    a('s_cmp_ge_u32 s26, 16')
    a('s_cselect_b32 s28, s12, s8')
    a('s_cselect_b32 s29, s13, s9')
    a('s_cselect_b32 s30, s14, s10')
    a('s_cselect_b32 s31, s15, s11')
    a('v_lshrrev_b32 v9, 2, v0')
    a('v_and_b32 v10, 3, v0')
    a('v_lshlrev_b32 v11, 13, v9')
    a('v_lshl_add_u32 v11, v10, 7, v11')
    a('s_lshl_b32 s33, s25, 9')
    a('v_add_u32 v11, s33, v11')
    a('s_cmp_ge_u32 s26, 16')
    a(f's_cbranch_scc1 {name}_wV')
    a('s_lshl_b32 s32, s27, 19')
    a('v_add_u32 v12, s32, v11')
    a(f's_branch {name}_wD')
    a.label(f'{name}_wV')
    a('v_mul_u32_u24 v12, 896, v0')
    a('s_mul_i32 s32, s25, 229376')
    a('s_lshl_b32 s34, s27, 7')
    a('s_add_u32 s32, s32, s34')
    a('v_add_u32 v12, s32, v12')
    a.label(f'{name}_wD')
    a('global_load_dword v248, v12, s[30:31]')
    a('s_and_b32 s32, s27, 3')
    a(f's_mul_i32 s32, s32, {112*8192}')
    a('v_add_u32 v11, s32, v11')
    a('global_load_dword v249, v11, s[28:29]')
    a(f'v_add_u32 v11, {48*8192}, v11')
    a('global_load_dword v255, v11, s[28:29]')
    a('s_waitcnt vmcnt(3)')
    a(f's_branch {name}_warmd')
    a.label(f'{name}_nowarm')
    a('s_waitcnt vmcnt(0)')
    a.label(f'{name}_warmd')

ENTRY = 'gated_mix__memory_aug_recurrent_mem_tr__moe_arch_mod__prompt_kernel'
def gen_main(a, name='mk'):
    a(f'.globl {ENTRY}\n.p2align 8\n.type {ENTRY},@function\n{ENTRY}:')
    a('s_cmp_ge_u32 s2, 256')
    a(f's_cbranch_scc1 {name}_end')
    a(f's_load_dwordx2 s[4:5], s[0:1], {KA_WS}')
    a(f's_load_dwordx2 s[6:7], s[0:1], {KA_DBG}')
    stamp_init(a)
    if ENV('DBGT', 0):
        a('s_mov_b32 s88, 0'); a('s_memrealtime s[78:79]'); a('s_memtime s[82:83]')
    if STAMPS:
        a('s_mov_b32 s76, 0'); a('s_mov_b32 s77, 0'); a('s_mov_b32 s86, 0'); a('s_mov_b32 s87, 0'); a('s_mov_b32 s88, 0'); a('s_memrealtime s[78:79]'); a('s_memtime s[82:83]')
    a('s_memrealtime s[16:17]')
    a(f's_load_dwordx4 s[8:11], s[0:1], {KA_WQ}')
    a(f's_load_dwordx4 s[12:15], s[0:1], {KA_WV}')
    a('s_getreg_b32 s23, hwreg(HW_REG_XCC_ID)')
    a('s_and_b32 s23, s23, 7')
    if ENV('FAKEXCC', 0) == 1:
        a('s_and_b32 s23, s2, 3'); a('s_add_u32 s23, s23, 1')
    if ENV('FAKEXCC', 0) == 2:
        a('s_mul_i32 s23, s2, 5'); a('s_and_b32 s23, s23, 15'); a('s_min_u32 s23, s23, 5')
    a('v_lshrrev_b32 v2, 6, v0')
    a('v_readfirstlane_b32 s22, v2')
    a('s_waitcnt lgkmcnt(0)')
    if ENV('CPF', 0):
        a('s_getpc_b64 s[10:11]')
        a('s_lshr_b32 s24, s2, 3')
        a('s_lshl_b32 s24, s24, 2')
        a('s_add_u32 s24, s24, s22')
        a('s_mul_i32 s25, s24, 5462')
        a('s_lshr_b32 s25, s25, 16')
        a('s_mul_i32 s25, s25, 12')
        a('s_sub_u32 s24, s24, s25')
        a('s_lshl_b32 s24, s24, 13')
        a('v_and_b32 v9, 63, v0')
        a('v_lshlrev_b32 v9, 7, v9')
        a('v_add_u32 v9, s24, v9')
        a(f'v_min_u32 v9, CODE_BYTES, v9')
        a('global_load_dword v10, v9, s[10:11]')
    a('s_cmp_lg_u32 s22, 0')
    a(f's_cbranch_scc1 {name}_noat')
    a('s_mov_b64 exec, 1')
    a('s_and_b32 s24, s23, 3')
    a('s_lshl_b32 s24, s24, 6')
    a('s_lshr_b32 s25, s23, 2')
    a('s_lshl_b32 s25, s25, 2')
    a('s_add_u32 s24, s24, s25')
    a('v_mov_b32 v1, s24')
    a('v_mov_b32 v2, 1')
    a('global_atomic_add v3, v1, v2, s[6:7] sc0')
    a('s_mov_b64 exec, -1')
    a.label(f'{name}_noat')
    if ENV('WARM', 0): warm_touch(a, name)
    else: a('s_waitcnt vmcnt(0)')
    a('s_cmp_lg_u32 s22, 0')
    a(f's_cbranch_scc1 {name}_wait')
    a('s_mov_b64 exec, 1')
    a('v_readfirstlane_b32 s24, v3')
    a('v_mov_b32 v1, 0')
    a('s_cmp_lg_u32 s24, 0')
    a(f's_cbranch_scc1 {name}_notag')
    a('s_or_b32 s20, s16, 1')
    a('v_mov_b32 v6, s20')
    a('v_mov_b32 v7, 0')
    a(f'global_atomic_cmpswap v1, v[6:7], s[6:7] offset:{DBG_TAG}')
    a.label(f'{name}_notag')
    a('s_lshl_b32 s25, s23, 5')
    a('s_add_u32 s25, s25, s24')
    a('v_mov_b32 v3, s25')
    a('s_cmp_lt_u32 s24, 32')
    a(f's_cbranch_scc1 {name}_pub')
    a(f'global_atomic_add v3, v1, v2, s[6:7] offset:{DBG_OVF} sc0')
    a('s_mov_b32 s40, 1000000')
    wait_arrivals(a, name + '_o')
    a('v_readfirstlane_b32 s24, v3')
    a('s_mov_b32 s26, 255')
    for x in range(8):
        lx = a.newlabel('ovf')
        a(f'v_readfirstlane_b32 s25, v{8 + 2*(x%4) + x//4}')
        a('s_min_u32 s25, s25, 32')
        a('s_sub_u32 s27, 32, s25')
        a('s_cmp_lt_u32 s24, s27')
        a(f's_cbranch_scc0 {lx}')
        a('s_add_u32 s26, s24, s25')
        a(f's_add_u32 s26, s26, {32*x}')
        a(f's_branch {name}_ovd')
        a.label(lx)
        a('s_sub_u32 s24, s24, s27')
    a.label(f'{name}_ovd')
    a('v_mov_b32 v3, s26')
    a.label(f'{name}_pub')
    a(f'v_mov_b32 v1, {L_MISC}')
    a('ds_write_b32 v1, v3')
    a('s_waitcnt lgkmcnt(0)')
    a('s_mov_b64 exec, -1')
    a.label(f'{name}_wait')
    a('s_barrier')
    a(f'v_mov_b32 v1, {L_MISC}')
    a('ds_read_b32 v2, v1')
    a('s_waitcnt lgkmcnt(0)')
    a('v_readfirstlane_b32 s24, v2')
    a('s_cmp_ge_u32 s24, 32')
    a(f's_cbranch_scc1 {name}_helper')
    gen_chain(a, name + '_c', merged=True)
    a(f's_branch {name}_fin')
    a.label(f'{name}_helper')
    a('s_sub_u32 s24, s24, 32')
    a('v_mov_b32 v250, v0')
    a('s_mov_b32 s38, s24')
    a('s_and_b32 s21, s24, 31')
    a('s_mul_i32 s21, s21, 7')
    a('s_lshr_b32 s25, s24, 5')
    a('s_add_u32 s21, s21, s25')
    a('s_mov_b32 s24, s21')
    if STAMPS: a('s_add_u32 s74, s21, 100')
    a('s_sub_u32 s25, s24, 140')
    a(f's_cmp_ge_u32 s25, {16*NS_REP}')
    a(f's_cbranch_scc1 {name}_nopf')
    a('s_cmp_ge_u32 s22, 3')
    a(f's_cbranch_scc1 {name}_nopf')
    a('s_mul_i32 s25, s25, 2560')
    a(f's_add_u32 s25, s25, {WS_PX}')
    a('v_min_u32 v1, 159, v0')
    a('v_lshlrev_b32 v1, 4, v1')
    a('v_add_u32 v1, s25, v1')
    for r in range(4): a(f'v_mov_b32 v{4+r}, -1')
    for i in range(64 // NS_REP):
        a('global_store_dwordx4 v1, v[4:7], s[4:5] sc1')
        a(f'v_add_u32 v1, {NS_REP*16*2560}, v1')
    a.label(f'{name}_nopf')
    a('s_sub_u32 s25, s24, 112')
    a('s_cmp_ge_u32 s25, 28')
    a(f's_cbranch_scc1 {name}_nopm')
    a('s_lshl_b32 s25, s25, 12')
    a(f's_add_u32 s25, s25, {WS_M2 + 63*28*4096}')
    a('v_lshlrev_b32 v1, 4, v0')
    a('v_add_u32 v1, s25, v1')
    for r in range(4): a(f'v_mov_b32 v{4+r}, -1')
    a('global_store_dwordx4 v1, v[4:7], s[4:5] sc1')
    a('s_nop 1')
    a.label(f'{name}_nopm')
    job_of(a, 's38')
    gen_img_job(a, name, 's39', unit='s21')
    a('s_barrier')
    a('v_mov_b32 v0, v250')
    a('s_mov_b32 s24, s21')
    if ENV('BISECT', 0) == 1 or ENV('NOH', 0): a(f's_branch {name}_fin')
    a('s_cmp_lt_u32 s24, 112')
    a(f's_cbranch_scc1 {name}_hu')
    a('s_cmp_lt_u32 s24, 140')
    a(f's_cbranch_scc1 {name}_hf')
    a(f's_cmp_lt_u32 s24, {140 + 16*NS_REP}')
    a(f's_cbranch_scc1 {name}_hs')
    a(f's_branch {name}_ho')
    a.label(f'{name}_hu')
    gen_ugemm(a, name, 's24', 's22', ENV('UN', 16), 4, st=os.environ.get('UST', 'sc1'), sig=True)
    a(f's_cmp_lt_u32 s24, {ENV("NUO", 28)}')
    a(f's_cbranch_scc0 {name}_fin')
    a(f's_branch {name}_ho')
    a.label(f'{name}_hf')
    if ENV('NOF', 0): a(f's_branch {name}_fin')
    a('s_sub_u32 s24, s24, 112')
    a('s_mov_b32 s40, 1000000')
    a('v_and_b32 v3, 63, v0')
    with WgWait(a): wait_prog(a, name, 1, va=4, sleep=80)
    gen_ffn(a, name, st='sc1')
    gen_mjob(a, name, 's24')
    a(f's_branch {name}_fin')
    a.label(f'{name}_hs')
    if ENV('NOS', 0): a(f's_branch {name}_fin')
    a('s_sub_u32 s24, s24, 140')
    a('s_lshr_b32 s25, s24, 4')
    a('s_and_b32 s24, s24, 15')
    a('s_mov_b32 s40, 1000000')
    a('v_and_b32 v3, 63, v0')
    a('s_mul_i32 s26, s24, 112')
    a(f's_add_u32 s26, s26, {WS_FLG + F_IMG}')
    with WgWait(a, True):
        wait_prog(a, name, 1, va=4, sleep=80)
        wait_flags(a, name, 's26', 28, lane='v3', va=4)
    gen_hs(a, name, 's24', 's25', 64 // NS_REP, NS_REP, merged=True)
    a(f's_branch {name}_fin')
    a.label(f'{name}_ho')
    if ENV('NOO', 0): a(f's_branch {name}_fin')
    a('s_waitcnt vmcnt(0) lgkmcnt(0)')
    a('v_mov_b32 v0, v250')
    a('s_mov_b32 s40, 1000000')
    a('v_and_b32 v3, 63, v0')
    with WgWait(a):
        wait_prog(a, name, 1, va=4, sleep=80)
        wait_flags(a, name, WS_FLG + F_IMG, 896, lane='v3', va=4, sleep=40)
    gen_argmax(a)
    a('s_mov_b32 s40, s27')
    out_setup(a)
    a('s_mov_b32 s42, 2000000')
    a('v_cmp_gt_u32 s[48:49], 32, v0')
    a('v_and_b32 v131, 15, v0')
    a('v_lshlrev_b32 v131, 2, v131')
    a(f'v_add_u32 v131, {WS_FLG + F_M}, v131')
    a('s_waitcnt lgkmcnt(0)')
    a.label(f'{name}_oloop')
    a('s_waitcnt vmcnt(0)')
    with WgWait(a):
        a('s_mov_b64 exec, 1')
        a('v_mov_b32 v2, 0')
        a('v_mov_b32 v3, 1')
        a(f'global_atomic_add v7, v2, v3, s[6:7] offset:{DBG_OT} sc0')
        a('s_waitcnt vmcnt(0)')
        a('ds_write_b32 v2, v7 offset:64')
        a('s_mov_b64 exec, -1')
        a('v_readfirstlane_b32 s26, v7')
        a('s_min_u32 s26, s26, 447')
        a('s_mul_i32 s24, s26, 9363')
        a('s_lshr_b32 s24, s24, 16')
        a('s_mul_i32 s25, s24, 7')
        a('s_sub_u32 s25, s26, s25')
        a('s_mul_i32 s30, s24, 448')
        a('s_lshl_b32 s31, s25, 6')
        a('s_add_u32 s30, s30, s31')
        a(f's_add_u32 s30, s30, {WS_FLG + F_U}')
        wait_flags(a, name, 's30', 16, va=140, sleep=30, budget='s42')
        a('s_waitcnt lgkmcnt(0)')
    a('v_mov_b32 v2, 0')
    a('ds_read_b32 v7, v2 offset:64')
    a('s_waitcnt lgkmcnt(0)')
    a('v_readfirstlane_b32 s26, v7')
    a('s_cmp_ge_u32 s26, 448')
    a(f's_cbranch_scc1 {name}_fin')
    a('s_mul_i32 s24, s26, 9363')
    a('s_lshr_b32 s24, s24, 16')
    a('s_mul_i32 s25, s24, 7')
    a('s_sub_u32 s25, s26, s25')
    def mid():
        with WgWait(a):
            a(f's_mul_i32 s32, s24, {16*2560}')
            a(f's_add_u32 s32, s32, {WS_PX}')
            a('v_add_u32 v140, s32, v130')
            a('s_mul_i32 s32, s24, 448')
            a('s_lshl_b32 s35, s25, 6')
            a('s_add_u32 s32, s32, s35')
            a('v_add_u32 v141, s32, v131')
            a('v_cndmask_b32 v140, v141, v140, s[48:49]')
            a('s_cmp_eq_u32 s24, 63')
            a('s_cselect_b32 s35, 0, -1')
            a.label(f'{name}_pw')
            a('global_load_dword v141, v140, s[4:5] sc1')
            a('s_waitcnt vmcnt(0)')
            a('v_cmp_eq_u32 vcc, -1, v141')
            a('v_cmp_ne_u32 s[50:51], s20, v141')
            a('s_and_b32 vcc_hi, s51, s35')
            a('s_cmp_eq_u64 vcc, 0')
            a(f's_cbranch_scc1 {name}_cwd')
            a('s_sleep 2')
            a('s_cmp_ge_u32 s24, 61')
            a(f's_cbranch_scc1 {name}_pws')
            a(f's_sleep {ENV("OSLP", 24)}')
            a.label(f'{name}_pws')
            a('s_sub_u32 s42, s42, 1')
            a(f's_cbranch_scc0 {name}_pw')
            a('s_mov_b32 s42, 0')
            a.label(f'{name}_cwd')
    gen_out_item(a, name, 's24', 's25', st_ld='sc1', merged=True, mid=mid)
    a(f's_branch {name}_oloop')
    gen_ffnrow(a, name, st_ld='sc1', merged=True)
    a.label(f'{name}_fin')
    if STAMPS:
        a('s_memrealtime s[80:81]')
        a('s_memtime s[84:85]')
        a('s_waitcnt lgkmcnt(0) vmcnt(0)')
        a('s_mov_b64 exec, 1')
        a('s_lshl_b32 s3, s2, 2')
        a('s_add_u32 s3, s3, s22')
        a('s_lshl_b32 s3, s3, 4')
        a(f's_add_u32 s3, s3, {WS_STAMP + 3*0x20000}')
        a('s_sub_u32 s84, s84, s82')
        a('s_lshl_b32 s86, s87, 24')
        a('s_or_b32 s76, s76, s86')
        a('s_lshl_b32 s77, s77, 16')
        a('s_or_b32 s76, s76, s77')
        a('v_mov_b32 v0, s3')
        a('v_mov_b32 v4, s84' if ENV('CLK', 0) else 'v_mov_b32 v4, s76'); a('v_mov_b32 v5, s88'); a('v_mov_b32 v6, s78'); a('v_mov_b32 v7, s80')
        a('global_store_dwordx4 v0, v[4:7], s[4:5]')
        a('s_nop 1')
    stamp_end(a, 2, n=9)
    if ENV('DBGT', 0):
        a('s_memrealtime s[80:81]')
        a('s_memtime s[84:85]')
        a('s_waitcnt lgkmcnt(0) vmcnt(0)')
        a('s_mov_b64 exec, 1')
        a('s_cmp_lg_u32 s22, 0')
        a(f's_cbranch_scc1 {name}_end')
        a('v_mov_b32 v0, 0')
        a('s_not_b32 s78, s78')
        a('v_mov_b32 v4, s78'); a('global_atomic_umax v0, v4, s[6:7] offset:16')
        a('v_mov_b32 v5, s88'); a('global_atomic_umax v0, v5, s[6:7] offset:20')
        a('v_mov_b32 v6, s80'); a('global_atomic_umax v0, v6, s[6:7] offset:24')
        a('s_cmp_eq_u32 s88, 0')
        a(f's_cbranch_scc1 {name}_end')
        a('global_atomic_umax v0, v6, s[6:7] offset:28')
        a('s_sub_u32 s84, s84, s82')
        a('v_mov_b32 v7, s84'); a('global_atomic_umax v0, v7, s[6:7] offset:32')
    a.label(f'{name}_end')
    a('s_endpgm')
    pass
    return dict(name=ENTRY, vgpr=256, agpr=256, sgpr=96, grid=256, block=256, lds=LDS_BYTES)
```
